```python
import torch

def _softmax(x, axis=-1):
    return torch.softmax(x, dim=axis)
def _gelu(x):
    return torch.nn.functional.gelu(x, approximate="tanh")
def _silu(x):
    return torch.nn.functional.silu(x)
def _sigmoid(x):
    return torch.sigmoid(x)
def _layernorm(x, axis=-1, eps=1e-5):
    m = x.mean(dim=axis, keepdim=True)
    v = x.var(dim=axis, keepdim=True, unbiased=False)
    return (x - m) / torch.sqrt(v + eps)
def _scatter_add(tgt, idx, src, axis=0):
    return tgt.clone().index_add_(axis, idx, src)
def _segment_sum(src, seg, n):
    out = torch.zeros((n,) + src.shape[1:], dtype=src.dtype)
    return out.index_add_(0, seg, src)
def _pad(x, pw):
    flat = tuple(v for pair in reversed(pw) for v in pair)
    return torch.nn.functional.pad(x, flat)

kernel_name = 'parallel_sum__sliding_local_dilated__dense_activation_gelu__prompt'

def setup_inputs():

    _w = (lambda a: (lambda t: t.to(torch.bfloat16) if t.is_floating_point() else t)(torch.as_tensor(a)))
    def _A_setup():
        B, S, D = 1, 2048, 1024
        return {
            "x": _w((lambda *s: torch.randn(*s, dtype=torch.bfloat16) * 0.05)(B, S, D)),
            "wqkv": _w((lambda *s: torch.randn(*s, dtype=torch.bfloat16) * 0.05)(D, 3 * D)),
            "wo": _w((lambda *s: torch.randn(*s, dtype=torch.bfloat16) * 0.05)(D, D)),
        }
    _A_in = _A_setup()

    def _B_setup():
        B, S, D, F = 1, 2048, 1024, 3584
        return {
            "x": _w((lambda *s: torch.randn(*s, dtype=torch.bfloat16) * 0.05)(B, S, D)),
            "w1": _w((lambda *s: torch.randn(*s, dtype=torch.bfloat16) * 3.2)(D, F) * (D ** -0.5)),
            "b1": _w((lambda *s: torch.randn(*s, dtype=torch.bfloat16) * 3.2)(F) * 0.01),
            "w2": _w((lambda *s: torch.randn(*s, dtype=torch.bfloat16) * 0.4)(F, D) * (F ** -0.5)),
            "b2": _w((lambda *s: torch.randn(*s, dtype=torch.bfloat16) * 0.4)(D) * 0.01),
        }
    _B_in = _B_setup()

    return {
        "A_x": _A_in["x"],
        "A_wqkv": _A_in["wqkv"],
        "A_wo": _A_in["wo"],
        "B_x": _B_in["x"],
        "B_w1": _B_in["w1"],
        "B_b1": _B_in["b1"],
        "B_w2": _B_in["w2"],
        "B_b2": _B_in["b2"],
    }

def reference(A_x, A_wqkv, A_wo, B_x, B_w1, B_b1, B_w2, B_b2):
    def _A_ref(x, wqkv, wo):
        B, S, D = x.shape
        H = 32; Dh = D // H
        W, dil = 8, 2
        qkv = (lambda x, *d: x.permute(*d))((x @ wqkv).reshape(B, S, 3, H, Dh), 2, 0, 3, 1, 4)
        q, k, v = qkv[0], qkv[1], qkv[2]
        scale = Dh ** -0.5
        pos = torch.arange(S)
        off = torch.arange(W) * dil
        idx = pos[:, None] - off[None, :]
        mask = idx >= 0
        idx_c = torch.where(mask, idx, 0).reshape(-1)
        kg = k[:, :, idx_c, :].reshape(B, H, S, W, Dh)
        vg = v[:, :, idx_c, :].reshape(B, H, S, W, Dh)
        logits = torch.einsum("bhsd,bhswd->bhsw", q, kg) * scale
        logits = torch.where(mask[None, None, :, :], logits, -1e9)
        attn = _softmax(logits, axis=-1)
        o = torch.einsum("bhsw,bhswd->bhsd", attn, vg)
        return (lambda x, *d: x.permute(*d))(o, 0, 2, 1, 3).reshape(B, S, D) @ wo

    def _B_ref(x, w1, b1, w2, b2):
        h = torch.einsum("bsd,df->bsf", x, w1) + b1
        h = _gelu(h)
        return torch.einsum("bsf,fd->bsd", h, w2) + b2

    x = A_x
    xn = _layernorm(x, axis=-1)
    return x + _A_ref(xn, A_wqkv, A_wo) + _B_ref(xn, B_w1, B_b1, B_w2, B_b2)
```

```python
import re

TRANS = ("v_exp_", "v_log_", "v_rcp_", "v_rsq_", "v_sqrt_", "v_sin_", "v_cos_")

def regs_of(tok):
    tok = tok.strip()
    tok = tok.lstrip("-")
    if tok.startswith("abs("): tok = tok[4:-1]
    if tok.startswith("|"): tok = tok.strip("|")
    m = re.fullmatch(r"([vas])(\d+)", tok)
    if m: return {(m.group(1), int(m.group(2)))}
    m = re.fullmatch(r"([vas])\[(\d+):(\d+)\]", tok)
    if m: return {(m.group(1), i) for i in range(int(m.group(2)), int(m.group(3)) + 1)}
    if tok == "vcc": return {("s", 106), ("s", 107)}
    if tok == "m0": return {("s", 124)}
    if tok == "exec": return {("s", 126), ("s", 127)}
    return set()

class Ins:
    def __init__(self, text):
        self.text = text
        t = text.split(";")[0].strip()
        self.op = t.split()[0] if t else ""
        rest = t[len(self.op):].strip()
        ops = [o.strip() for o in rest.split(",")] if rest else []
        if ops:
            last = ops[-1].split()
            self.mods = " ".join(last[1:]); ops[-1] = last[0] if last else ""
        else: self.mods = ""
        ops2 = []
        for o in ops:
            o0 = o.split()[0] if o.split() else o
            ops2.append(o0)
        self.ops = ops2
        op = self.op
        self.is_label = t.endswith(":") or op.startswith(".")
        self.mfma = op.startswith("v_mfma")
        self.valu = op.startswith("v_") and not self.mfma
        self.trans = op.startswith(TRANS)
        self.vmem = op.startswith(("buffer_", "global_"))
        self.ds = op.startswith("ds_")
        self.salu = op.startswith("s_")
        self.dma = self.vmem and " lds" in (" " + t)
        R = [regs_of(o) for o in ops2]
        self.w = set(); self.r = set(); self.c = set(); self.ab = set(); self.stdata = set()
        if self.is_label: return
        if self.mfma:
            self.w = R[0]; self.ab = R[1] | R[2]; self.c = R[3]; self.r = self.ab | self.c
        elif self.valu:
            if op.startswith("v_permlane") and "swap" in op:
                self.w = R[0] | R[1]; self.r = R[0] | R[1]
            elif op.startswith("v_cmp"):
                self.w = R[0]; self.r = set().union(*R[1:])
            elif op.startswith(("v_add_co", "v_sub_co", "v_addc_co", "v_subb_co")):
                self.w = R[0] | R[1]; self.r = set().union(*R[2:])
            elif op.startswith("v_nop"): pass
            else:
                self.w = R[0]; self.r = set().union(*R[1:]) if len(R) > 1 else set()
                if op.startswith(("v_fmac", "v_dot2c", "v_pk_fmac")) or "_dpp" in op: self.r |= R[0]
        elif self.vmem:
            if self.dma: self.r = set().union(*R) | {("s", 124)}
            elif "load" in op: self.w = R[0]; self.r = set().union(*R[1:])
            elif "store" in op or "atomic" in op:
                self.r = set().union(*R)
                d = R[0] if op.startswith("buffer_") else R[1]
                if "x3" in op or "x4" in op: self.stdata = d
                if "atomic" in op and "sc0" in t: self.w = R[0]
        elif self.ds:
            if "read" in op or "permute" in op or "swizzle" in op: self.w = R[0]; self.r = set().union(*R[1:])
            else: self.r = set().union(*R)
        elif self.salu:
            if op.startswith(("s_cmp", "s_waitcnt", "s_barrier", "s_nop", "s_cbranch", "s_branch", "s_endpgm", "s_sleep", "s_setprio")):
                self.r = set().union(*R) if R else set()
            else:
                self.w = R[0] if R else set(); self.r = set().union(*R[1:]) if len(R) > 1 else set()
    def states(self):
        if self.is_label: return 0
        if self.op == "s_nop": return int(self.ops[0]) + 1
        return 1

def vg(s): return {x for x in s if x[0] in "va"}
def sg(s): return {x for x in s if x[0] == "s"}

def need(p, c):
    n = 0
    if p.valu:
        if c.mfma and vg(p.w) & c.r: n = max(n, 2)
        if c.valu:
            if p.trans and vg(p.w) & c.r: n = max(n, 1)
            if (c.op.startswith("v_permlane") or "_dpp" in c.op) and vg(p.w) & c.r: n = max(n, 2)
            if c.op.startswith(("v_readlane", "v_readfirstlane")) and vg(p.w) & c.r: n = max(n, 1)
            if sg(p.w) & c.r: n = max(n, 4 if c.op.startswith(("v_readlane", "v_writelane")) else 2)
            if "sdwa" in p.op and vg(p.w) & (c.r | c.w): n = max(n, 1)
        if p.op.startswith("v_dot") and vg(p.w) & (c.r | c.w) and not (c.op == p.op and p.w == c.w): n = max(n, 3)
        if c.vmem and sg(p.w) & c.r: n = max(n, 5)
        if c.salu and sg(p.w) & c.r: n = max(n, 2)
    if p.mfma:
        big = "32x32" in p.op
        if c.mfma:
            if p.w & c.ab: n = max(n, 12 if big else 8)
            if p.w & c.c and p.w != c.c: n = max(n, 10 if big else 6)
            if p.w & c.w and p.w != c.c: n = max(n, 10 if big else 6)
        elif c.valu or c.vmem or c.ds:
            if p.w & (c.r | c.w): n = max(n, 12 if big else 8)
            if c.valu and p.c & c.w: n = max(n, 7 if big else 3)
    if p.stdata and p.stdata & c.w: n = max(n, 2)
    if p.salu and ("s", 124) in p.w and c.dma: n = max(n, 1)
    return n

class Asm:
    def __init__(self): self.lines = []
    def __call__(self, text):
        for l in text.split("\n"):
            l = l.strip()
            if l: self.lines.append(l)
    def finish(self, verbose=False):
        out = []; hist = []; npad = 0
        for l in self.lines:
            if l.startswith(";"): out.append(l); continue
            ins = Ins(l)
            if not ins.is_label:
                dist = 0; pad = 0
                for p in reversed(hist):
                    if dist >= 12: break
                    k = need(p, ins) - dist
                    if k > pad: pad = k
                    dist += p.states()
                if pad > 0:
                    nop = Ins(f"s_nop {pad-1}"); out.append("  " + nop.text); hist.append(nop); npad += pad
                    if verbose: print("pad", pad, "before", l)
                hist.append(ins)
                if len(hist) > 40: hist = hist[-20:]
                out.append("  " + l)
            else: out.append(l)
        self.npad = npad
        return "\n".join(out) + "\n"

def kdesc(name, vgpr=512, acc=256, sgpr=102):
    return f""".amdhsa_kernel {name}
  .amdhsa_next_free_vgpr {vgpr}
  .amdhsa_next_free_sgpr {sgpr}
  .amdhsa_accum_offset {acc}
  .amdhsa_group_segment_fixed_size 0
  .amdhsa_kernarg_size 88
  .amdhsa_user_sgpr_count 2
  .amdhsa_user_sgpr_kernarg_segment_ptr 1
  .amdhsa_system_sgpr_workgroup_id_x 1
  .amdhsa_float_denorm_mode_32 3
.end_amdhsa_kernel
"""

def f32(x):
    import struct
    return "0x%08x" % struct.unpack("<I", struct.pack("<f", x))[0]

def interleave(main, side, start=0, end=None, per_gap=1):
    n = len(main)
    if end is None: end = n
    slots = [[] for _ in range(n)]
    m = len(side)
    for i, s in enumerate(side):
        pos = start + (i * (end - start)) // max(m, 1)
        slots[min(pos, n - 1)].append(s)
    out = []
    for i, x in enumerate(main):
        out.append(x); out.extend(slots[i])
    return out

def resolve_vm(lines):
    out = []; hist = []
    for l in lines:
        if l.startswith("VMRESET"): hist = []; continue
        if l.startswith("VMFAKE"):
            _, tg, n = l.split(); hist += [{tg}] * int(n); continue
        if l.startswith("WAITVM"):
            body = l[6:].split("|"); tags = body[0].split(); extra = body[1].strip() if len(body) > 1 else ""
            n = 0; found = set(); best = None
            for tg in reversed(hist):
                hit = [t for t in tags if t in tg]
                if hit and best is None: best = n
                found.update(hit)
                if "cond" not in tg: n += 1
            missing = set(tags) - found
            assert not missing, ("WAITVM tag never issued", missing)
            best = min(best, 63)
            out.append(f"s_waitcnt vmcnt({best}) {extra}".strip()); continue
        if l.startswith(("buffer_", "global_")):
            tg = set(re.findall(r"@(\S+)", l.split(";", 1)[1])) if ";" in l else set()
            hist.append(tg)
            l = l.split(";")[0].strip()
        out.append(l)
    return out

def place(M, streams):
    n = len(M); slots = [[] for _ in range(n)]
    for items, start, end in streams:
        for i, it in enumerate(items):
            pos = start + (i * (end - start)) // max(len(items), 1)
            if isinstance(it, str): it = (it,)
            for k, x in enumerate(it):
                if x:
                    assert pos + k < n, (pos, k, n)
                    slots[pos + k].append(x)
    out = []
    for i in range(n):
        out.append(M[i]); out.extend(slots[i])
    return out
```

```python
import sys, math
from asmlib import *
NAME = "parallel_sum__sliding_local_dilated__dense_activation_gelu__prompt"
MB = 1 << 20
WS_MISC = 0; WS_A2 = 8 * MB; WS_XCH = 32 * MB; WS_ST = 48 * MB
O_ST, O_CS, O_FL, O_XF = 0, 16384, 262144, 524288
A2S = 144 * 1024
class C:
    STAMP = False; NA = 37; A_AUX = "sc1"; ST_AUX = "sc1"; PF = True; SPIN = 1 << 18; NS = 5
XS = lambda s: s * 34816
WB = 69632
TB = 155648
T_RS, T_MR, T_CS, T_B1 = TB, TB + 1280, TB + 2560, TB + 3584
R = lambda d: f"v[{d}:{d+3}]"
Pn = lambda r: f"v[{r}:{r+1}]"
MF = "v_mfma_f32_16x16x32_bf16"

def srd(A, r, nbytes): A(f"s_mov_b32 s{r+2}, {nbytes}\ns_mov_b32 s{r+3}, 0x20000")
def add64(A, r, x): A(f"s_add_u32 s{r}, s{r}, {x}\ns_addc_u32 s{r+1}, s{r+1}, 0")
def stamp(A, i):
    if C.STAMP: A(f"s_memtime s[{68+4*i}:{69+4*i}]\ns_memrealtime s[{70+4*i}:{71+4*i}]")
def stamp_out(A, n):
    if not C.STAMP: return
    A("s_waitcnt vmcnt(0) lgkmcnt(0)"); stamp(A, n)
    A(f"s_load_dwordx2 s[4:5], s[0:1], 80\ns_waitcnt lgkmcnt(0)"); add64(A, 4, WS_ST)
    A(f"s_lshl_b32 s6, s2, 2\ns_add_u32 s6, s6, s20\ns_lshl_b32 s6, s6, 7\nv_mov_b32 v0, s6\ns_mov_b64 exec, 1")
    for i in range(n + 1):
        for q in range(4): A(f"v_mov_b32 v{4+q}, s{68+4*i+q}")
        A(f"global_store_dwordx4 v0, v[4:7], s[4:5] offset:{16*i}\ns_nop 1")
def xreduce(A, v, t, op):
    A(f"v_mov_b32 v{t}, v{v}\nv_permlane16_swap_b32 v{v}, v{t}\n{op} v{v}, v{v}, v{t}")
    A(f"v_mov_b32 v{t}, v{v}\nv_permlane32_swap_b32 v{v}, v{t}\n{op} v{v}, v{v}, v{t}")
def emit(A, L):
    for d in L:
        if isinstance(d, str): A(d)
        else:
            for x in d:
                if x: A(x)

def spin(slow, name, loads, test):
    slow.append(f"{name}_slow:\ns_mov_b32 s39, {C.SPIN}\n{name}_spin:\n{loads}\ns_waitcnt vmcnt(0)\n{test}\ns_cbranch_vccz {name}_back\n"
                f"s_sub_u32 s39, s39, 1\ns_cmp_lg_u32 s39, 0\ns_cbranch_scc1 {name}_spin\ns_branch {name}_back")
    return f"{test}\ns_cbranch_vccnz {name}_slow\n{name}_back:"

def g2_steps(att):
    L = lambda l: [7 * (p >> 1) + l + 4 * (p & 1) for p in range(16)]
    late = L(2) + [7 * u + 3 for u in range(8)]
    k = C.NA - 16
    if att: return [("o", p) for p in range(16)] + [("h", q) for q in (L(1) + late)[:k]]
    return [("h", q) for q in L(0) + (L(1) + late)[k:]]

def role(A, att):
    P = "La" if att else "Lg"
    slow = []
    stride = 6144 if att else 7168
    nblk = 6 if att else 7
    A("VMRESET")
    A(f"s_load_dwordx2 s[96:97], s[0:1], {56 if att else 40}")
    A("s_lshl_b32 s29, s2, 2\ns_add_u32 s37, s29, s20")
    A("v_lshrrev_b32 v5, 5, v2\nv_and_b32 v6, 31, v2\ns_lshl_b32 s29, s37, 1\nv_add_u32 v30, s29, v5")
    A("v_lshlrev_b32 v7, 11, v30\nv_lshl_add_u32 v7, v6, 4, v7")
    A("v_lshrrev_b32 v24, 3, v2\nv_and_b32 v25, 7, v2\nv_and_b32 v26, 6, v24\nv_xor_b32 v26, v25, v26")
    A("v_lshlrev_b32 v17, 12, v24\nv_lshl_add_u32 v17, v26, 4, v17\ns_lshl_b32 s29, s20, 17\ns_add_u32 s29, s29, 32768\nv_add_u32 v16, s29, v17")
    A("v_and_b32 v26, 2, v24\nv_xor_b32 v25, v25, v26")
    A(f"s_lshl_b32 s29, s20, 4\nv_add_u32 v24, s29, v24\nv_mul_u32_u24 v24, {stride}, v24")
    A(f"v_lshl_add_u32 v18, v25, 4, v24\nv_xor_b32 v25, 4, v25\nv_lshl_add_u32 v19, v25, 4, v24\nv_add_u32 v19, {8*stride}, v19")
    A("v_and_b32 v6, 3, v2")
    if att:
        A("s_lshl_b32 s28, s22, 10\ns_lshl_b32 s29, s22, 11\ns_cmp_eq_u32 s23, 0\ns_cselect_b32 s30, 32768, 0\ns_add_u32 s29, s29, s30\nv_add_u32 v17, s29, v17\ns_add_u32 s28, s28, 32768")
        A("s_lshl_b32 s38, s24, 7\ns_movk_i32 s34, 0x1000")
    else:
        A("s_and_b32 s35, s24, 1\ns_lshl_b32 s29, s35, 6\nv_add_u32 v18, s29, v18\nv_add_u32 v19, s29, v19")
        A("v_lshrrev_b32 v24, 2, v2\nv_xor_b32 v25, v5, v6")
        A(f"s_lshl_b32 s29, s20, 4\nv_add_u32 v24, s29, v24\nv_mul_u32_u24 v24, {stride}, v24\nv_lshl_add_u32 v20, v25, 4, v24")
        A("s_cmp_eq_u32 s35, 0\ns_cselect_b32 s36, 384, 0\nv_add_u32 v20, s36, v20\ns_mul_i32 s38, s24, 448")
    A("s_mov_b32 s30, 32768\ns_mov_b32 s31, 65536\ns_mov_b32 s32, 98304")
    A("s_waitcnt lgkmcnt(0)")
    srd(A, 60, 4 * MB)
    for i in range(4): A(f"buffer_load_dwordx4 {R(64+4*i)}, v7, s[60:63], 0 offen offset:{512*i} ; @st{i}")
    A("s_lshr_b32 s3, s23, 2")
    A("s_lshl_b32 s29, s23, 19\ns_lshl_b32 s39, s3, 10\ns_add_u32 s29, s29, s39\ns_add_u32 s4, s60, s29\ns_addc_u32 s5, s61, 0\ns_sub_u32 s4, s4, 32768\ns_subb_u32 s5, s5, 0")
    srd(A, 4, 18 * 32768)
    A(f"s_mul_i32 s29, s3, {512*stride}\ns_add_u32 s29, s29, s38")
    if not att: A("s_mov_b32 s8, s64\ns_mov_b32 s9, s65")
    add64(A, 8, "s29"); srd(A, 8, 64 * stride)
    A(f"s_lshl_b32 s64, s3, 11\ns_mul_i32 s65, s3, {1024*stride}")
    def dma_x(j):
        L = []
        for i in range(4):
            for b0 in range(2):
                so = "0" if i == 0 else f"s{29+i}"
                L.append((f"s_add_u32 m0, s26, {XS(j%2) + (i>>1)*4096 + (i&1)*1024}" if b0 == 0 else None,
                          f"buffer_load_dwordx4 v16, s[4:7], {so} offen offset:{b0*2048} lds ; @x{j}"))
        if att: L.append((f"s_add_u32 m0, s28, {XS(j%2)}", f"buffer_load_dwordx4 v17, s[4:7], 0 offen lds ; @x{j}"))
        L[-1] += ("s_add_u32 s4, s4, 128\ns_addc_u32 s5, s5, 0" + ("\ns_sub_u32 s4, s4, s64\ns_subb_u32 s5, s5, 0" if j == 7 else ""),)
        return L
    def dma_w(j):
        L = []
        for hi in range(2):
            for ln in range(3):
                off, so = [(0, "0"), (2048, "0"), (0, "s34")][ln] if att else (128 * ln, "0")
                L.append((f"s_add_u32 m0, s27, {(j%3)*28672 + hi*3072 + ln*1024 - off}", f"buffer_load_dwordx4 v{18+hi}, s[8:11], {so} offen offset:{off} lds ; @w{j}"))
        if not att: L.append((f"s_add_u32 m0, s27, {(j%3)*28672 + 6144}", f"buffer_load_dwordx4 v20, s[8:11], 0 offen lds ; @w{j}"))
        L[-1] += (f"s_add_u32 s8, s8, {64*stride}\ns_addc_u32 s9, s9, 0" + ("\ns_sub_u32 s8, s8, s65\ns_subb_u32 s9, s9, 0" if j == 7 else ""),)
        return L
    emit(A, dma_x(0)); emit(A, dma_w(0))
    A("s_mov_b32 s12, s16\ns_mov_b32 s13, s17\ns_mov_b32 s56, s16\ns_mov_b32 s57, s17")
    srd(A, 16, 1 * MB); srd(A, 40, 2 * MB); srd(A, 44, 7 * MB); srd(A, 48, 256); srd(A, 52, 4 * MB); srd(A, 96, 2048 if att else 7168)
    A(f"s_lshr_b32 s29, s2, 1\ns_lshl_b32 s29, s29, 16\ns_add_u32 s29, s29, {WS_XCH}"); add64(A, 56, "s29"); srd(A, 56, 65536)
    A("v_and_b32 v27, 6, v4\nv_xor_b32 v27, v27, v3\nv_lshlrev_b32 v27, 4, v27\nv_lshl_add_u32 v28, v4, 7, v27")
    A("s_lshl_b32 s29, s21, 14\nv_add_u32 v8, s29, v28\nv_xor_b32 v9, 64, v8")
    if att:
        A("v_add_u32 v21, 32768, v28\nv_or_b32 v28, 0x400, v28\nv_lshrrev_b32 v27, 3, v4\nv_lshl_add_u32 v28, v27, 11, v28\nv_add_u32 v28, 12288, v28")
        A("s_cmp_eq_u32 s21, 0\ns_cselect_b64 vcc, -1, 0\nv_cndmask_b32 v21, v28, v21, vcc\nv_xor_b32 v22, 64, v21")
    A("v_bfe_u32 v27, v2, 2, 2\nv_and_b32 v28, 1, v3")
    A(f"v_mul_u32_u24 v29, 7168, v5\nv_add_u32 v29, {WB}, v29")
    A("v_mul_u32_u24 v23, 3072, v28\nv_add_u32 v23, v29, v23\nv_lshl_add_u32 v23, v27, 7, v23\nv_lshl_add_u32 v23, v6, 3, v23")
    A("v_lshrrev_b32 v24, 1, v27\nv_lshl_or_b32 v24, v28, 1, v24\ns_lshl_b32 s29, s22, 1\nv_xor_b32 v24, s29, v24")
    A("v_lshl_add_u32 v10, v24, 5, v23\nv_xor_b32 v11, 32, v10\nv_add_u32 v13, 57344, v10\nv_add_u32 v14, 57344, v11")
    A("s_and_b32 s38, s23, 3\ns_lshl_b32 s38, s38, 1\ns_add_u32 s38, s38, s21")
    A("s_min_u32 s39, s38, 5\ns_and_b32 s29, s39, 1\ns_lshl_b32 s29, s29, 5\nv_xor_b32 v23, s29, v10\ns_lshr_b32 s29, s39, 1\ns_lshl_b32 s29, s29, 10\nv_add_u32 v23, s29, v23\nv_add_u32 v24, 512, v23")
    A("s_lshr_b32 s29, s39, 1\ns_lshl_b32 s29, s29, 1\ns_add_u32 s29, s29, s22" + ("" if att else "\ns_add_u32 s29, s29, s35") + "\ns_lshl_b32 s29, s29, 1\ns_and_b32 s39, s39, 1\ns_add_u32 s29, s29, s39\ns_lshl_b32 s29, s29, 4\nv_add_u32 v31, s29, v4")
    if not att:
        A("v_lshl_add_u32 v25, v28, 3, v27\nv_lshl_add_u32 v25, v25, 6, v29\nv_add_u32 v25, 6144, v25")
        A("v_and_b32 v26, 2, v6\nv_add_u32 v26, s22, v26\nv_xor_b32 v26, v26, v28\nv_lshl_add_u32 v25, v26, 4, v25")
        A("v_and_b32 v26, 1, v6\nv_lshl_add_u32 v12, v26, 3, v25\nv_add_u32 v15, 57344, v12\nv_add_u32 v25, 256, v12")
        A("v_and_b32 v26, 8, v4\nv_add_u32 v26, v26, v4\ns_lshr_b32 s29, s36, 1\ns_lshl_b32 s39, s22, 3\ns_add_u32 s29, s29, s39\nv_add_u32 v26, s29, v26")
        A("s_cmp_ge_u32 s38, 6\ns_cselect_b64 vcc, -1, 0\nv_cndmask_b32 v23, v23, v12, vcc\nv_cndmask_b32 v24, v24, v25, vcc\nv_cndmask_b32 v31, v31, v26, vcc")
    A("v_add_u32 v25, 57344, v23\nv_add_u32 v26, 57344, v24")
    A(f"s_lshl_b32 s66, s24, 12\ns_add_u32 s66, s66, {O_CS + (0 if att else 65536)}\ns_lshl_b32 s29, s3, 11\ns_add_u32 s29, s29, s66\nv_lshl_add_u32 v31, v31, 3, s29")
    A(f"s_cmp_lt_u32 s38, {nblk}\ns_cselect_b32 s38, 0xffff, 0")
    A(f"s_lshl_b32 s29, s23, 1\ns_add_u32 s29, s29, s21\ns_lshl_b32 s29, s29, 8\ns_lshl_b32 s39, s24, 1\ns_add_u32 s39, s39, s22\ns_lshl_b32 s39, s39, 2\ns_add_u32 s29, s29, s39")
    A(f"s_lshr_b32 s67, s2, 1\ns_lshl_b32 s67, s67, 2\ns_add_u32 s67, s67, s20\ns_lshl_b32 s67, s67, 7\ns_add_u32 s67, s67, {O_XF}")
    if att: A(f"s_add_u32 s29, s29, {O_FL}\nv_mov_b32 v29, s67\nv_mov_b32 v28, s29\nv_cmp_eq_u32 vcc, 0, v2\nv_cndmask_b32 v29, v29, v28, vcc")
    else: A(f"s_add_u32 s29, s29, {O_FL + 4096}\nv_and_b32 v29, 3, v2\nv_lshl_add_u32 v29, v29, 12, s29")
    A("v_mov_b32 v32, 0\nv_mov_b32 v33, 0")
    A(f"s_mov_b64 exec, {3 if att else 7}\nbuffer_store_dword v32, v29, s[16:19], 0 offen sc1 ; @clr\ns_mov_b64 exec, 0xffff\nbuffer_store_dwordx2 v[32:33], v31, s[16:19], 0 offen sc1 ; @clr\ns_mov_b64 exec, -1")
    emit(A, dma_x(1))
    for i in range(4): A(f"v_accvgpr_write_b32 a{168+i}, s33")
    for i in range(4):
        A(f"WAITVM st{i}")
        for q in range(4):
            r = 64 + 4 * i + q; d = 80 + 8 * i + 2 * q
            A(f"v_lshlrev_b32 v{d}, 16, v{r}\nv_and_b32 v{d+1}, 0xffff0000, v{r}")
    def red32():
        A("v_pk_add_f32 v[64:65], v[64:65], v[66:67]\nv_add_f32 v64, v64, v65")
        for k in (8, 4, 2, 1): A(f"v_add_f32_dpp v64, v64, v64 row_ror:{k} row_mask:0xf bank_mask:0xf")
        A(f"v_mov_b32 v65, v64\nv_permlane16_swap_b32 v64, v65\nv_add_f32 v64, v64, v65\nv_mul_f32 v64, {f32(1/1024)}, v64")
    for h in range(2): A(f"v_pk_add_f32 {Pn(64+2*h)}, {Pn(80+4*h)}, {Pn(82+4*h)}")
    for i in range(4, 16): A(f"v_pk_add_f32 {Pn(64+2*(i&1))}, {Pn(64+2*(i&1))}, {Pn(80+2*i)}")
    red32()
    A("v_mov_b32 v68, v64")
    for i in range(16): A(f"v_pk_add_f32 {Pn(80+2*i)}, {Pn(80+2*i)}, v[68:69] op_sel_hi:[1,0] neg_lo:[0,1] neg_hi:[0,1]")
    for i in range(16):
        d = Pn(64 + 2 * (i & 1)); s = Pn(80 + 2 * i)
        A(f"v_pk_mul_f32 {d}, {s}, {s}" if i < 2 else f"v_pk_fma_f32 {d}, {s}, {s}, {d}")
    red32()
    rnd = lambda v: A(f"v_cvt_pk_bf16_f32 v{v}, v{v}, v{v}\nv_and_b32 v{v}, 0xffff0000, v{v}")
    rnd(64); A(f"v_add_f32 v64, {f32(1e-5)}, v64"); rnd(64); A("v_sqrt_f32 v64, v64"); rnd(64); A("v_rcp_f32 v32, v64"); rnd(68)
    A("v_mul_f32 v33, v32, v68\nv_lshlrev_b32 v30, 3, v30")
    A("s_mov_b32 exec_lo, 1\ns_mov_b32 exec_hi, 1\nbuffer_store_dwordx2 v[32:33], v30, s[16:19], 0 offen sc1 ; @clr\ns_mov_b64 exec, -1")

    acc = lambda m, n: 64 + 4 * (6 * m + n)
    aR = lambda d: f"a[{d}:{d+3}]"
    xf = lambda p, i: aR(60 * p + 4 * i)
    wf = lambda p, n: aR(60 * p + 32 + 4 * n)
    cf = lambda p: 160 + 4 * p
    ext = (lambda i: R(48 + 4 * i)) if att else (lambda m: aR(128 + 4 * m))
    def reads(j, kk):
        p = kk; L = []; u = j % 3; hiw = u == 2
        wreg = 13 if hiw else 10; wo = (0 if hiw else u * 28672) + kk * 14336
        def wr(n):
            b = 60 * p + 32 + 4 * n
            if n < 6: return [f"ds_read_b64_tr_b16 a[{b+2*h}:{b+2*h+1}], v{wreg+(n&1)} offset:{wo + h*512 + (n>>1)*1024}" for h in range(2)]
            return [f"ds_read_b64_tr_b16 a[{b+2*h}:{b+2*h+1}], v{wreg+2} offset:{wo + h*256}" for h in range(2)]
        xr = lambda i: f"ds_read_b128 {xf(p,i)}, v{8+kk} offset:{XS(j%2) + i*2048}"
        L.append(xr(0))
        for n in range(nblk): L += wr(n)
        for i in range(1, 8): L.append(xr(i))
        if att: L.append(f"ds_read_b128 {wf(p,6)}, v{21+kk} offset:{XS(j%2)}")
        if j < 8: L += [f"ds_read_b64_tr_b16 a[{cf(p)+2*h}:{cf(p)+2*h+1}], v{(25 if hiw else 23)+h} offset:{wo}" for h in range(2)]
        return L
    def mfmas(j, p):
        first = j == 0 and p == 0; L = []
        for m in range(8):
            for n in (range(nblk) if m % 2 == 0 else reversed(range(nblk))):
                d = R(acc(m, n)) if n < 6 else ext(m)
                a, b = wf(p, n), xf(p, m)
                if att and n >= 4: a, b = b, a
                L.append(f"{MF} {d}, {a}, {b}, {'0' if first else d}")
        if att:
            for i in range(4):
                a, b = wf(p, 2 + i), wf(p, 6)
                if i >= 2: a, b = b, a
                L.append(f"{MF} {ext(i)}, {a}, {b}, {'0' if first else ext(i)}")
        if j < 8: L.append(f"{MF} v[36:39], a[168:171], {aR(cf(p))}, {'0' if first else 'v[36:39]'}")
        return L
    def pf(i):
        if not C.PF: return []
        if i < 2: return [(f"s_lshl_b32 s29, s37, 11", f"buffer_load_dwordx4 a[172:175], v7, s[40:43], s29 offen offset:{1024*i} ; @pf")]
        return [(f"s_mul_i32 s29, s37, 7168\ns_add_u32 s29, s29, {1024*(i-2)}", f"buffer_load_dwordx4 a[172:175], v7, s[44:47], s29 offen ; @pf")]
    steps = g2_steps(att); NK = len(steps); NS = C.NS
    def dma_a(j):
        kind, q = steps[j]; ks = 2 * q + (0 if kind == "o" else 32); st = (j % NS) * 32768; L = []
        for b in range(2):
            for kk in range(2):
                L.append((f"s_add_u32 m0, s26, {st + b*2048}\ns_mov_b32 s30, {ks*1024 + b*A2S}" if kk == 0 else None,
                          f"buffer_load_dwordx4 v16, s[4:7], s30 offen offset:{kk*1024} {C.A_AUX} lds ; @a{j}"))
        return L
    def dma_b(j):
        kind, q = steps[j]; st = (j % NS) * 32768; L = []; sr = "s[40:43]" if kind == "o" else "s[44:47]"
        for hi in range(2):
            for ln in range(2):
                L.append((f"s_add_u32 m0, s27, {st + hi*2048 + ln*896}" + (f"\ns_mov_b32 s31, {q*131072 + hi*16384}" if ln == 0 else ""),
                          f"buffer_load_dwordx4 v17, {sr}, s31 offen offset:{128*ln} lds ; @b{j}"))
        return L
    g2_setup = ["s_lshl_b32 s26, s20, 12\ns_add_u32 s27, s26, 16384",
                f"s_mul_i32 s29, s20, {2*A2S}\nv_lshl_add_u32 v16, v2, 4, s29",
                "v_lshrrev_b32 v18, 3, v2", "v_and_b32 v19, 7, v2", "v_and_b32 v17, 6, v18", "v_xor_b32 v19, v19, v17",
                "s_lshl_b32 s29, s20, 4\nv_add_u32 v18, s29, v18", "s_lshr_b32 s29, s2, 5\ns_lshl_b32 s29, s29, 8\nv_lshl_add_u32 v18, v18, 11, s29", "v_lshl_add_u32 v17, v19, 4, v18",
                f"s_mul_i32 s29, s25, {8*A2S}\ns_add_u32 s29, s29, {WS_A2}\ns_add_u32 s4, s12, s29\ns_addc_u32 s5, s13, 0\ns_mov_b32 s6, {8*A2S}",
                f"s_lshl_b32 s29, s23, 1\ns_add_u32 s29, s29, s21\ns_mul_i32 s29, s29, {8*A2S}\ns_add_u32 s29, s29, {WS_A2}",
                f"s_add_u32 s12, s12, s29\ns_addc_u32 s13, s13, 0\ns_mov_b32 s14, {8*A2S}\ns_mov_b32 s15, 0x20000",
                f"s_lshl_b32 s29, s25, 8\ns_add_u32 s29, s29, {O_FL}\nv_and_b32 v20, 31, v2", "v_lshl_add_u32 v20, v20, 2, s29"]

    A("WAITVM x0 w0\ns_barrier")
    emit(A, reads(0, 0))
    A("v_lshlrev_b32 v7, 4, v2\nv_mov_b32 v35, 1\ns_waitcnt lgkmcnt(0)")
    stamp(A, 1)
    M = mfmas(0, 0); n = len(M)
    emit(A, place(M, [(reads(0, 1), 0, n - 10), (dma_w(1), 0, n - 16)]))
    for j in range(16):
        if j < 15: A(f"WAITVM x{j+1} w{j+1}" + (" clr" if j == 0 else "") + (" c0" if j == 6 else "") + (" tb" if j == 13 else "") + " | lgkmcnt(0)\ns_barrier")
        else: A("s_waitcnt lgkmcnt(0)\ns_barrier")
        M = mfmas(j, 1); n = len(M); S = []; D = []
        if j < 15: S.append((reads(j + 1, 0), 0, n - 10))
        if j == 0: S.append((["v_mov_b32 v34, 0\ns_cmp_eq_u32 s20, 0\ns_cselect_b64 exec, 1, 0\ns_cbranch_scc0 " + P + "_na\nbuffer_atomic_add v35, v34, s[48:51], 0 offen sc1 ; @cond\n" + P + "_na:\ns_mov_b64 exec, -1"], 2, 3))
        c0load = "buffer_load_dword v33, v34, s[48:51], 0 offen sc1"
        if j == 5: D.append((None, c0load + " ; @c0"))
        if j == 6: S.append(([spin(slow, P + "_c0", c0load, "v_cmp_ne_u32 vcc, 0x100, v33")], 1, 2))
        tbl = ["buffer_load_dwordx2 v[40:41], v30, s[16:19], s66 offen sc1", "buffer_load_dwordx2 v[42:43], v30, s[16:19], s66 offen offset:2048 sc1"]
        if j == 11:
            sd = [f"v_min_u32 v30, {nblk*32-1}, v0", "v_and_b32 v27, 0xe0, v0", "v_lshl_add_u32 v27, v4, 1, v27", "v_and_b32 v28, 1, v3", "v_add_u32 v27, v27, v28",
                  "s_lshl_b32 s29, s23, 8\nv_add_lshl_u32 v27, v27, s29, 3"]
            if att: sd += ["v_and_b32 v28, 7, v4", "v_lshrrev_b32 v32, 3, v4", "v_lshl_add_u32 v28, v28, 1, v32",
                           "s_max_u32 s39, s29, 16\ns_sub_u32 s39, s39, 16\nv_add_lshl_u32 v28, v28, s39, 3"]
            else: sd += ["s_mul_i32 s29, s24, 224\nv_add_lshl_u32 v28, v30, s29, 1"]
            sd += ["v_lshlrev_b32 v30, 3, v30", "v_lshlrev_b32 v32, 2, v0"]
            S.append((sd, 4, 40))
        if j == 12:
            D += [(None, t + " ; @tb") for t in tbl]
            D.append((None, "buffer_load_dwordx2 v[44:45], v27, s[16:19], 0 offen sc1 ; @tb"))
            D.append((None, "buffer_load_dwordx2 v[46:47], v28, s[16:19], 0 offen sc1 ; @tb" if att else "buffer_load_ushort v46, v28, s[96:99], 0 offen ; @tb"))
        if j == 13:
            sd = [spin(slow, P + "_cs", "\n".join(tbl), "v_and_b32 v33, v41, v43\nv_cmp_ne_u32 vcc, 1, v33"), "v_add_f32 v40, v40, v42", f"v_add_u32 v32, {TB}, v32",
                  f"ds_write2st64_b32 v32, v44, v45 offset0:0 offset1:5", f"ds_write_b32 v32, v40 offset:{T_CS-TB}"]
            if att: sd += [f"v_lshlrev_b32 v32, 2, v4", f"v_add_u32 v32, {TB+1024}, v32", "ds_write2st64_b32 v32, v46, v47 offset0:0 offset1:5"]
            else: sd += ["v_lshlrev_b32 v46, 16, v46", f"ds_write_b32 v32, v46 offset:{T_B1-TB}"]
            S.append((sd, 1, 30))
        if att and j in (9, 10):
            sd = [f"v_mov_b32 v27, {f32(-1e30)}", "v_lshlrev_b32 v28, 2, v3", "v_sub_u32 v28, v28, v4",
                  "s_or_b32 s29, s23, s21\ns_cmp_lg_u32 s29, 0\ns_cselect_b64 s[64:65], -1, 0"]
            for q in range(2 * (j - 9), 2 * (j - 9) + 2):
                sel = lambda k: ["v_cndmask_b32 v33, v27, 0, vcc", f"v_accvgpr_write_b32 a{176+4*k+q}, v33"]
                sd += [f"v_add_u32 v32, {7+q}, v28", "v_cmp_gt_u32 vcc, 8, v32"] + sel(0) + ["v_cmp_lt_i32 vcc, 15, v32"] + sel(1)
                sd += ["s_and_b64 vcc, vcc, s[64:65]"] + sel(3) + ["v_cmp_lt_i32 vcc, 7, v32", "s_and_b64 vcc, vcc, s[64:65]\ns_mov_b32 vcc_hi, 0"] + sel(2)
            S.append((sd, 2, n - 4))
        if j + 2 <= 15: D += dma_x(j + 2)
        if j == 0: D += dma_w(2)
        if j == 14: S.append((g2_setup, 2, n - 4))
        if j == 15:
            for s in range(3): D += dma_b(s)
        S.append((D, 0, n - 8))
        emit(A, place(M, S))
        if j < 15:
            A("s_waitcnt lgkmcnt(0)")
            M = mfmas(j + 1, 0); n = len(M); S = [(reads(j + 1, 1), 0, n - 10)]; D = []
            if j + 3 <= 15: D += dma_w(j + 3)
            if 2 <= j <= 10: D += pf(j - 2)
            if j == 7: D.append(("v_mov_b32 v37, 1\ns_mov_b32 exec_lo, s38\ns_mov_b32 exec_hi, 0\ns_cbranch_execz " + P + "_ncs\nbuffer_store_dwordx2 v[36:37], v31, s[16:19], 0 offen sc1 ; @cond\n" + P + "_ncs:\ns_mov_b64 exec, -1", None))
            S.append((D, 0, n - 8))
            emit(A, place(M, S))
    stamp(A, 2)
    flag = lambda lane: f"s_mov_b64 exec, {1<<lane}\nbuffer_store_dword v35, v29, s[16:19], 0 offen sc1\ns_mov_b64 exec, -1"
    poll = lambda kind: f"buffer_load_dword v33, v20, s[16:19], {['0','s34','s32','s28'][kind]} offen sc1"
    ptest = "v_cmp_eq_u32 vcc, 0, v33"
    A("s_movk_i32 s34, 0x1000\ns_movk_i32 s32, 0x2000\ns_movk_i32 s28, 0x3000")
    cvt = lambda d, s: f"v_cvt_pk_bf16_f32 v{d}, v{s}, v{s+1}"
    acc2 = lambda m, n: 64 + 4 * (4 * m + n)
    af = lambda p, i: aR(32 * p + 4 * i)
    bf = lambda p, n: aR(32 * p + 16 + 4 * n)
    G2A = 224
    g2_addr = [f"s_lshl_b32 s29, s21, 13\nv_lshl_add_u32 v{G2A}, v2, 4, s29", "v_bfe_u32 v240, v2, 2, 3\nv_and_b32 v241, 3, v2\nv_lshrrev_b32 v242, 5, v2",
               "s_lshl_b32 s29, s22, 10\ns_add_u32 s29, s29, 16384\nv_lshl_add_u32 v242, v242, 11, s29\nv_lshl_add_u32 v242, v240, 7, v242\nv_lshl_add_u32 v242, v241, 3, v242",
               f"v_lshrrev_b32 v240, 1, v240\nv_lshl_add_u32 v{G2A+1}, v240, 5, v242"] + [f"v_xor_b32 v{G2A+1+c}, {32*c}, v{G2A+1}" for c in (1, 2, 3)]
    g2_addr2 = [f"v_add_u32 v{G2A+5*w+i}, {65536*w}, v{G2A+i}" for w in (1, 2) for i in range(5)]
    def reads2(j, kk):
        p = kk; st = (j % NS) * 32768; w = G2A + 5 * (st >> 16); st &= 0xffff
        ar = lambda i: f"ds_read_b128 {af(p,i)}, v{w} offset:{st + i*2048 + kk*1024}"
        L = [ar(0)]
        for n in range(4):
            b = 32 * p + 16 + 4 * n
            L += [f"ds_read_b64_tr_b16 a[{b+2*h}:{b+2*h+1}], v{w+1+n} offset:{st + (2*kk+h)*4096}" for h in range(2)]
        return L + [ar(i) for i in range(1, 4)]
    xo_base = "s_lshl_b32 s29, s25, 1\ns_add_u32 s29, s29, s21\ns_lshl_b32 s29, s29, 17\ns_lshr_b32 s39, s2, 5\ns_lshl_b32 s39, s39, 1\ns_add_u32 s39, s39, s22\ns_lshl_b32 s39, s39, 7\ns_add_u32 s29, s29, s39"

    if not att:
        A(f"s_lshl_b32 s29, s21, 9\ns_add_u32 s29, s29, {TB}\nv_lshl_add_u32 v30, v4, 2, s29")
        for m in range(8): A(f"ds_read_b32 v{40+2*m}, v30 offset:{64*m}\nds_read_b32 v{41+2*m}, v30 offset:{1280+64*m}")
        A(f"s_add_u32 s29, s35, s22\ns_lshl_b32 s39, s29, 7\ns_add_u32 s39, s39, {T_CS}\nv_lshl_add_u32 v30, v3, 4, s39")
        A(f"v_and_b32 v31, 1, v3\nv_lshlrev_b32 v31, 4, v31\nv_lshl_add_u32 v31, v5, 6, v31\ns_lshl_b32 s39, s36, 1\ns_add_u32 s39, s39, {T_CS}\nv_add_u32 v31, s39, v31\ns_lshl_b32 s39, s22, 5\nv_add_u32 v31, s39, v31")
        def colreads(ln):
            if ln < 3: return [f"ds_read_b128 {R(56+4*c)}, v30 offset:{256*ln+64*c}\nds_read_b128 {R(8+4*c)}, v30 offset:{1024+256*ln+64*c}" for c in range(2)]
            return ["ds_read_b128 v[56:59], v31\nds_read_b128 v[8:11], v31 offset:1024"]
        emit(A, colreads(0))
        A("s_lshl_b32 s29, s29, 10\nv_lshl_add_u32 v18, v2, 4, s29")
        A(f"v_mul_u32_u24 v19, {A2S}, v5\nv_and_b32 v32, 31, v2\nv_lshl_add_u32 v19, v32, 4, v19\ns_lshl_b32 s29, s36, 4\ns_lshl_b32 s39, s22, 9\ns_add_u32 s29, s29, s39\nv_add_u32 v19, s29, v19")
        A("s_mul_i32 s29, s24, 7168\ns_add_u32 s29, s29, 32768"); add64(A, 12, "s29")
        c0 = -2 * math.sqrt(2 / math.pi) * math.log2(math.e); c1 = c0 * 0.044715
        A(f"s_mov_b32 s64, {f32(c1)}\ns_mov_b32 s65, {f32(c1)}\nv_mov_b32 v0, {f32(c0)}\nv_mov_b32 v1, {f32(c0)}")
        cnt = [0]
        def gelu8(t, rs, cs, b1):
            u = [22, 24, 26, 6]
            L = []
            for i in range(4): L.append(f"v_pk_fma_f32 {Pn(u[i])}, {Pn(cs[i])}, {Pn(rs[i])}, {Pn(b1[i])} op_sel:[0,1,0] op_sel_hi:[1,1,1] neg_lo:[0,1,0] neg_hi:[0,1,0]")
            for i in range(4): L.append(f"v_pk_fma_f32 {Pn(t[i])}, {Pn(t[i])}, {Pn(rs[i])}, {Pn(u[i])} op_sel_hi:[1,0,1]")
            for i in range(4): L.append(f"v_pk_mul_f32 {Pn(u[i])}, {Pn(t[i])}, {Pn(t[i])}")
            for i in range(4): L.append(f"v_pk_fma_f32 {Pn(u[i])}, {Pn(u[i])}, s[64:65], v[0:1]")
            for i in range(4): L.append(f"v_pk_mul_f32 {Pn(u[i])}, {Pn(u[i])}, {Pn(t[i])}")
            for i in range(8): L.append(f"v_exp_f32 v{u[i>>1]+(i&1)}, v{u[i>>1]+(i&1)}")
            for i in range(4): L.append(f"v_pk_add_f32 {Pn(u[i])}, {Pn(u[i])}, 1.0 op_sel_hi:[1,0]")
            for i in range(8): L.append(f"v_rcp_f32 v{u[i>>1]+(i&1)}, v{u[i>>1]+(i&1)}")
            for i in range(4): L.append(f"v_pk_mul_f32 {Pn(u[i])}, {Pn(u[i])}, {Pn(t[i])}")
            for i in range(4): L.append(cvt(t[0] + i, u[i]))
            return L
        for ln in range(3):
            A("s_waitcnt lgkmcnt(0)")
            for m in range(8):
                d = acc(m, 2 * ln)
                G = gelu8([d, d + 2, d + 4, d + 6], [40 + 2 * m] * 4, [56, 58, 60, 62], [8, 10, 12, 14]); S = []
                if m == 7: S.append((colreads(ln + 1), 6, 8))
                if ln == 0 and m == 0: S.append((dma_b(3), 2, 40))
                if ln == 1 and m == 3: S.append((["WAITVM h0\n" + flag(0)], 2, 3))
                if ln == 2 and m == 0: S.append(([poll(1) + " ; @p1"], 2, 3))
                if ln == 2 and m == 3: S.append((["WAITVM p1 h1\n" + flag(1) + "\n" + spin(slow, P + "_f1", poll(1), ptest)], 2, 3))
                if ln == 2 and m >= 4: S.append((dma_a(m - 4), 2, 40))
                emit(A, place(G, S))
                A(f"s_mov_b32 s29, {m*A2S + ln*2048}\nbuffer_store_dwordx4 {R(d)}, v18, s[12:15], s29 offen {C.ST_AUX} ; @h{ln}")
        emit(A, g2_addr)
        A("s_waitcnt lgkmcnt(0)")
        for mp in range(4):
            d = 192 + 8 * mp
            for i in range(8): A(f"v_accvgpr_read_b32 v{d+i}, a{128+8*mp+i}")
            G = gelu8([d, d + 2, d + 4, d + 6], [40 + 4 * mp] * 2 + [42 + 4 * mp] * 2, [56, 58, 56, 58], [8, 10, 8, 10]); S = []
            if mp == 3: S.append((["WAITVM a0 b0\ns_barrier"] + reads2(0, 0), 2, 30))
            emit(A, place(G, S))
            A(f"v_permlane32_swap_b32 v{d}, v{d+2}\nv_permlane32_swap_b32 v{d+1}, v{d+3}")
            A(f"s_mov_b32 s29, {2*mp*A2S}\nbuffer_store_dwordx4 {R(d)}, v19, s[12:15], s29 offen {C.ST_AUX} ; @h3")
        stamp(A, 3); stamp(A, 4)
    else:
        A(f"s_lshl_b32 s29, s21, 9\ns_add_u32 s29, s29, {TB}\nv_lshl_add_u32 v30, v4, 2, s29\nv_lshl_add_u32 v31, v3, 4, s29")
        A(f"s_lshl_b32 s29, s22, 7\ns_add_u32 s29, s29, {T_CS}\nv_lshl_add_u32 v26, v3, 4, s29\nv_lshl_add_u32 v27, v4, 2, s29")
        for n in range(4): A(f"ds_read_b128 {R([8,12,40,44][n])}, v26 offset:{256*(n>>1)+64*(n&1)}")
        A("ds_read_b32 v18, v27 offset:512\nds_read_b32 v19, v27 offset:576")
        rp = lambda m: f"ds_read_b32 v{22+2*(m&1)}, v{28 if m==8 else 30} offset:{64*(m&7)}\nds_read_b32 v{23+2*(m&1)}, v{28 if m==8 else 30} offset:{64*(m&7)+1280}"
        r4 = lambda m: f"ds_read_b128 {R([8,40][m&1])}, v{32 if m==8 else 31} offset:{64*(m&7)}\nds_read_b128 {R([12,44][m&1])}, v{32 if m==8 else 31} offset:{64*(m&7)+1280}"
        A(rp(0))
        A("v_or_b32 v28, 8, v4\nv_and_b32 v32, 8, v4\nv_lshl_add_u32 v28, v32, 1, v28\nv_add_u32 v28, 96, v28\nv_add_u32 v32, 0x100, v4")
        A(f"s_cmp_eq_u32 s21, 0\ns_cselect_b64 vcc, -1, 0\ns_mov_b32 s29, {TB}\nv_cndmask_b32 v28, v28, v32, vcc\nv_lshl_add_u32 v28, v28, 2, s29")
        A("v_and_b32 v32, 1, v3\nv_lshl_add_u32 v32, v5, 2, v32\nv_add_u32 v32, 26, v32\nv_add_u32 v34, 64, v3\nv_cndmask_b32 v32, v32, v34, vcc\nv_lshl_add_u32 v32, v32, 4, s29")
        A(xo_base + "\nv_lshl_add_u32 v34, v3, 3, s39\nv_lshl_add_u32 v21, v4, 12, s29\nv_lshl_add_u32 v21, v3, 3, v21\ns_mov_b32 s29, 65536")
        for c in range(4): A(f"buffer_load_dwordx2 a[{224+2*c}:{225+2*c}], v34, s[96:99], 0 offen offset:{32*c} ; @xi")
        XI = [f"buffer_load_dwordx2 a[{192+8*i+2*c}:{193+8*i+2*c}], v21, s[60:63], {'s29' if i>=2 else '0'} offen offset:{2048*(i&1)+32*c} ; @xi" for i in range(4) for c in range(4)]
        tmp = [26, 0, 6, 36]
        for m in range(9):
            A("s_waitcnt lgkmcnt(0)")
            if m < 8: A(rp(m + 1))
            else: A(r4(8))
            rs = Pn(22 + 2 * (m & 1)); G = []
            for part in ((0, 1) if m < 8 else (1,)):
                src = (acc(m, 0) + 8 * part) if m < 8 else 48; dst = (acc(m, 0) + 4 * part) if m < 8 else 48; cs = [8, 40][part]
                for i in range(4): G.append(f"v_pk_mul_f32 {Pn(tmp[i])}, {Pn(cs+2*i)}, {rs} op_sel:[0,1] op_sel_hi:[1,1]")
                for i in range(4): G.append(f"v_pk_fma_f32 {Pn(tmp[i])}, {Pn(src+2*i)}, {rs}, {Pn(tmp[i])} op_sel_hi:[1,0,1] neg_lo:[0,0,1] neg_hi:[0,0,1]")
                for i in range(4): G.append(cvt(dst + i, tmp[i]))
            S = [(XI[2*m:2*m+2], 2, 20)] if m < 8 else []
            if m == 7: S = [(XI[14:16], 2, 4), (dma_b(3), 6, 22)]
            emit(A, place(G, S))
        order = [8] + list(range(8))
        for k, m in enumerate(order):
            A("s_waitcnt lgkmcnt(0)")
            b = k & 1
            if k < 8:
                nb = 1 - b; mm = order[k + 1]
                A(f"ds_read_b128 {R([8,40][nb])}, v31 offset:{64*mm}\nds_read_b128 {R([12,44][nb])}, v31 offset:{64*mm+1280}")
            rs, mr = [8, 40][b], [12, 44][b]
            src = 56 if m == 8 else acc(m, 4)
            for i in range(4): A(f"v_pk_mul_f32 {Pn(tmp[i])}, {Pn(mr+2*(i&1))}, v[18:19] op_sel:[0,{i>>1}] op_sel_hi:[1,{i>>1}]")
            for i in range(4): A(f"v_pk_fma_f32 {Pn(tmp[i])}, {Pn(src+2*i)}, {Pn(rs+2*(i&1))}, {Pn(tmp[i])} neg_lo:[0,0,1] neg_hi:[0,0,1]")
            for i in range(4):
                db, h = i >> 1, i & 1
                if m == 8: dsts = [acc(0, 2 + db) + h, acc(1, 2 + db) + h]
                else: dsts = [acc(m, 2 + db) + 2 + h] + ([acc(m + 2, 2 + db) + h] if m < 6 else [])
                for d in dsts: A(cvt(d, tmp[i]))
        mk = [8, 12, 40, 44]
        for k in range(4):
            for q in range(4): A(f"v_accvgpr_read_b32 v{mk[k]+q}, a{176+4*k+q}")
        sc = 32 ** -0.5 * math.log2(math.e)
        A(f"s_mov_b32 s64, {f32(sc)}\ns_mov_b32 s65, {f32(sc)}")
        A("s_lshl_b32 s29, s24, 1\ns_add_u32 s29, s29, s22\ns_lshl_b32 s29, s29, 10\nv_lshl_add_u32 v18, v2, 4, s29")
        for m in range(8):
            A(f"{MF} {R(acc(m,4))}, {R(48 if m < 2 else acc(m-2,1))}, {R(acc(m,0))}, {R(mk[2+m] if m < 2 else mk[1])}")
            A(f"{MF} {R(acc(m,5))}, {R(acc(m,1))}, {R(acc(m,0))}, {R(mk[0])}")
        def smax(m):
            s = acc(m, 4); mx = 22 + 2 * (m & 1); q = acc(m, 0)
            L = [f"v_max3_f32 v{mx}, v{s}, v{s+1}, v{s+2}", f"v_max3_f32 v{mx+1}, v{s+3}, v{s+4}, v{s+5}", f"v_max3_f32 v{mx}, v{mx}, v{s+6}, v{s+7}", f"v_max_f32 v{mx}, v{mx}, v{mx+1}"]
            for sw in (16, 32): L += [f"v_mov_b32 v{mx+1}, v{mx}", f"v_permlane{sw}_swap_b32 v{mx}, v{mx+1}", f"v_max_f32 v{mx}, v{mx}, v{mx+1}"]
            L.append(f"v_mul_f32 v{mx}, s64, v{mx}")
            for i in range(4): L.append(f"v_pk_fma_f32 {Pn(s+2*i)}, {Pn(s+2*i)}, s[64:65], {Pn(mx)} op_sel_hi:[1,1,0] neg_lo:[0,0,1] neg_hi:[0,0,1]")
            for i in range(8): L.append(f"v_exp_f32 v{s+i}, v{s+i}")
            for i in range(4): L.append(cvt(q + i, s + 2 * i))
            return L, [f"{MF} {R(acc(m,4))}, {R(acc(m,2))}, {R(q)}, 0", f"{MF} {R(acc(m,5))}, {R(acc(m,3))}, {R(q)}, 0", f"{MF} {R(acc(m,2))}, a[168:171], {R(q)}, 0"]
        def fin(m):
            s = acc(m, 4); l = acc(m, 2); q = acc(m, 0)
            L = [f"v_rcp_f32 v{l}, v{l}"]
            for i in range(4): L.append(f"v_pk_mul_f32 {Pn(s+2*i)}, {Pn(s+2*i)}, {Pn(l)} op_sel_hi:[1,0]")
            for i in range(4): L.append(cvt(q + i, s + 2 * i))
            L.append(f"s_mov_b32 s29, {m*A2S}\nbuffer_store_dwordx4 {R(q)}, v18, s[12:15], s29 offen {C.ST_AUX} ; @o")
            return L
        for mp in range(5):
            if mp < 4:
                (a, ma), (b, mb) = smax(2 * mp), smax(2 * mp + 1)
                for x, y in zip(a, b): A(x); A(y)
                emit(A, ma + mb)
            if mp > 0:
                for x, y in zip(fin(2 * mp - 2), fin(2 * mp - 1)): A(x); A(y)
        stamp(A, 3)
        emit(A, g2_addr)
        A("WAITVM xi")
        for c in range(4):
            b = [8, 12, 40, 44][c]
            A(f"v_accvgpr_read_b32 v{b+1}, a{224+2*c}\nv_accvgpr_read_b32 v{b+3}, a{225+2*c}")
            A(f"v_lshlrev_b32 v{b}, 16, v{b+1}\nv_lshlrev_b32 v{b+2}, 16, v{b+3}\nv_and_b32 v{b+1}, 0xffff0000, v{b+1}\nv_and_b32 v{b+3}, 0xffff0000, v{b+3}")
        for i in range(4):
            if i == 2: A("WAITVM o\n" + flag(0) + "\n" + poll(0) + " ; @p0")
            for c in range(4):
                d = acc2(i, c); b = [8, 12, 40, 44][c]
                A(f"v_accvgpr_read_b32 v{d+1}, a{192+8*i+2*c}\nv_accvgpr_read_b32 v{d+3}, a{193+8*i+2*c}")
                A(f"v_lshlrev_b32 v{d}, 16, v{d+1}\nv_lshlrev_b32 v{d+2}, 16, v{d+3}\nv_and_b32 v{d+1}, 0xffff0000, v{d+1}\nv_and_b32 v{d+3}, 0xffff0000, v{d+3}")
                A(f"v_pk_add_f32 {Pn(d)}, {Pn(d)}, {Pn(b)}\nv_pk_add_f32 {Pn(d+2)}, {Pn(d+2)}, {Pn(b+2)}")
        A("WAITVM p0\n" + spin(slow, P + "_fo", poll(0), ptest))
        stamp(A, 4)
        for s in range(4): emit(A, dma_a(s))
        A("WAITVM a0 b0\ns_barrier")
        emit(A, reads2(0, 0))

    def mfmas2(p, first):
        L = []
        for m in range(4):
            for n in (range(4) if m % 2 == 0 else reversed(range(4))):
                d = R(acc2(m, n)); L.append(f"{MF} {d}, {bf(p,n)}, {af(p,m)}, {'0' if first and not att else d}")
        return L
    A("s_waitcnt lgkmcnt(0)")
    D4 = dma_a(4) + dma_b(4) if NS == 5 else []
    emit(A, place(mfmas2(0, True), [(reads2(0, 1), 0, 8), (g2_addr2, 3, 14), (D4, 0, 15)]))
    checks = {9: 2, 22: 3} if att else {9: 3}
    xpoll = "buffer_load_dword v33, v34, s[16:19], 0 offen sc1"
    xloads = "\n".join(f"buffer_load_dwordx4 {R(128+4*i)}, v18, s[56:59], {['0','s34','s32','s28'][i>>2]} offen offset:{1024*(i&3)} sc1 ; @cond" for i in range(16))
    for j in range(NK):
        last = j == NK - 1; S = []; D = []
        if not last:
            w = f"WAITVM a{j+1} b{j+1}"
            if j - 2 in checks: w += f" p{checks[j-2]}"
            if not att and j == 2: w += " h3"
            if not att and j == NK - 2: w += " px"
            A(w + " | lgkmcnt(0)\ns_barrier")
            S.append((reads2(j + 1, 0), 0, 8))
        else: A("s_waitcnt lgkmcnt(0)")
        if j - 2 in checks: S.append(([spin(slow, f"{P}_f{checks[j-2]}", poll(checks[j-2]), ptest)], 0, 1))
        if not att and j == 2: S.append(([flag(2)], 0, 1))
        if j in checks: S.append(([poll(checks[j]) + f" ; @p{checks[j]}"], 1, 2))
        if j == 4:
            sd = ["s_lshl_b32 s29, s20, 14\nv_lshl_add_u32 v18, v2, 4, s29"]
            if not att: sd += ["v_mov_b32 v34, s67", xo_base + "\nv_lshl_add_u32 v21, v4, 12, s29", "v_and_b32 v32, 1, v3", "v_lshl_add_u32 v21, v32, 5, v21", "v_lshl_add_u32 v21, v5, 4, v21"]
            S.append((sd, 8, 15))
        if not att and j == NK - 4: S.append(([xpoll + " ; @px"], 1, 2))
        if not att and j == NK - 2: S.append(([f"{ptest}\ns_mov_b64 s[64:65], vcc\ns_cbranch_vccnz {P}_nox\n{xloads}\n{P}_nox:"], 9, 10))
        if j + NS < NK: S.append((dma_a(j + NS), 2, 14))
        emit(A, place(mfmas2(1, False), S))
        if not last:
            A("s_waitcnt lgkmcnt(0)")
            S = [(reads2(j + 1, 1), 0, 8)]
            if j + NS < NK: S.append((dma_b(j + NS), 2, 14))
            emit(A, place(mfmas2(0, False), S))
    stamp(A, 5)
    if att:
        for i in range(16):
            A(f"buffer_store_dwordx4 {R(64+4*i)}, v18, s[56:59], {['0','s34','s32','s28'][i>>2]} offen offset:{1024*(i&3)} sc1")
        A("s_waitcnt vmcnt(0)\n" + flag(1))
    else:
        A(f"s_cmp_eq_u64 s[64:65], 0\ns_cbranch_scc0 {P}_x_slow\n{P}_xdone:")
        slow.append(f"{P}_x_slow:\ns_mov_b32 s39, {C.SPIN}\n{P}_x_spin:\n{xpoll}\ns_waitcnt vmcnt(0)\n{ptest}\ns_cbranch_vccz {P}_x_ok\ns_sub_u32 s39, s39, 1\ns_cmp_lg_u32 s39, 0\ns_cbranch_scc1 {P}_x_spin\n{P}_x_ok:\n{xloads}\ns_branch {P}_xdone")
        A("s_mov_b32 s29, 65536")
        for k in range(8):
            i, cp = k >> 1, k & 1
            A(f"s_waitcnt vmcnt({14 - k})")
            d = acc2(i, 2 * cp); e = d + 64
            for q in range(4): A(f"v_pk_add_f32 {Pn(d+2*q)}, {Pn(d+2*q)}, {Pn(e+2*q)}")
            for q in range(4): A(cvt(e + q, d + 2 * q))
            A(f"v_permlane16_swap_b32 v{e}, v{e+2}\nv_permlane16_swap_b32 v{e+1}, v{e+3}")
            A(f"buffer_store_dwordx4 {R(e)}, v21, s[52:55], {'s29' if i>=2 else '0'} offen offset:{2048*(i&1)+64*cp}")
    stamp_out(A, 6)
    A("s_endpgm")
    for s in slow: A("s_nop 7\n" + s)

def build(path, **kw):
    for k, v in kw.items(): setattr(C, k, v)
    A = Asm(); name = NAME + "_kernel"
    A(f".text\n.globl {name}\n.p2align 8\n.type {name},@function\n{name}:")
    A("s_cmp_ge_u32 s2, 256\ns_cbranch_scc0 L_go\ns_endpgm\nL_go:")
    for r, o in ((60, 0), (8, 8), (64, 32), (16, 80), (40, 16), (44, 48), (52, 64), (48, 72)): A(f"s_load_dwordx2 s[{r}:{r+1}], s[0:1], {o}")
    A("v_lshrrev_b32 v1, 6, v0\nv_and_b32 v2, 63, v0\nv_readfirstlane_b32 s20, v1\nv_lshrrev_b32 v3, 4, v2\nv_and_b32 v4, 15, v2")
    stamp(A, 0)
    A("s_lshr_b32 s21, s20, 1\ns_and_b32 s22, s20, 1\ns_mov_b32 s33, 0x3f803f80")
    A("s_lshr_b32 s29, s2, 3\ns_and_b32 s23, s29, 3\ns_lshr_b32 s24, s29, 2")
    A("s_and_b32 s29, s2, 6\ns_lshl_b32 s29, s29, 1\ns_add_u32 s25, s23, s29")
    A("s_and_b32 s29, s2, 2\ns_lshl_b32 s29, s29, 1\ns_add_u32 s23, s23, s29")
    A("s_and_b32 s29, s2, 4\ns_lshl_b32 s29, s29, 1\ns_add_u32 s24, s24, s29")
    A(f"s_lshl_b32 s26, s20, 13\ns_mul_i32 s27, s20, 7168\ns_add_u32 s27, s27, {WB}")
    A("s_and_b32 s29, s2, 1\ns_cmp_eq_u32 s29, 0\ns_cbranch_scc1 L_att")
    role(A, False)
    A(".p2align 6\nL_att:")
    role(A, True)
    A.lines = resolve_vm(A.lines)
    body = A.finish()
    hdr = "; @launch grid=(256,1,1) block=(256,1,1) lds=163840\n; NSTAMPS 7\n" + '.amdgcn_target "amdgcn-amd-amdhsa--gfx950"\n'
    open(path, "w").write(hdr + body + '.section .rodata,"a"\n.p2align 6\n' + kdesc(name))
    return A.npad

if __name__ == "__main__":
    print("pads", build(f"v2.s"))
    build("v2_stamp.s", STAMP=True)
```

```python
import sys, math
from asmlib import *
NAME = "parallel_sum__sliding_local_dilated__dense_activation_gelu__prompt"
MB = 1 << 20
WS_A2 = 8 * MB; WS_XCH = 32 * MB; WS_ST = 48 * MB
O_ST, O_CS, O_FL, O_XF = 0, 16384, 262144, 524288
A2S = 144 * 1024
class C:
    FINE = False; PROBE = None; names = []; allnames = {}
    NFL = 4; A_AUX = "sc1"; ST_AUX = "sc1"; OUT_AUX = ""; PF = True; CPF = True; CPH = True; ROT = True; PRE = True
    SPIN = 1 << 16; DA = 6; XCHK = 2; BAR2 = False
XS = lambda s: s * 34816
WB = 69632
TB = 155648
T_CS, T_B1, T_B2 = TB + 2560, TB + 3584, TB + 4608
NB = 9
BS = lambda j: ((j + 6) % NB) * 16384
R = lambda d: f"v[{d}:{d+3}]"
aR = lambda d: f"a[{d}:{d+3}]"
Pn = lambda r: f"v[{r}:{r+1}]"
MF = "v_mfma_f32_16x16x32_bf16"
cvt = lambda d, s: f"v_cvt_pk_bf16_f32 v{d}, v{s}, v{s+1}"
srd = lambda r, n: f"s_mov_b32 s{r+2}, {n}\ns_mov_b32 s{r+3}, 0x20000"
add64 = lambda r, x: f"s_add_u32 s{r}, s{r}, {x}\ns_addc_u32 s{r+1}, s{r+1}, 0"
sub64 = lambda r, x: f"s_sub_u32 s{r}, s{r}, {x}\ns_subb_u32 s{r+1}, s{r+1}, 0"

def ts(name):
    if not C.FINE: return ""
    i = len(C.names); C.names.append(name)
    t = f"s_waitcnt lgkmcnt(0)\nv_writelane_b32 v1, s100, {i-1}\n" if i else ""
    return t + ("s_memrealtime s[100:101]" if name.startswith("RT") else "s_memtime s[100:101]")
def stamp_out(A):
    if not C.FINE: return
    A("s_waitcnt vmcnt(0)"); A(ts("end")); A(ts("RTend")); A(ts("x")); C.names.pop()
    if C.PROBE:
        a, b, wg = C.PROBE; C.uid = getattr(C, "uid", 0) + 1; u = C.uid
        if a in C.names and b in C.names:
            A(f"s_waitcnt lgkmcnt(0)\ns_cmp_lg_u32 s37, {wg*4}\ns_cbranch_scc1 Lpr{u}e\nv_readlane_b32 s4, v1, {C.names.index(b)}\nv_readlane_b32 s5, v1, {C.names.index(a)}\ns_memrealtime s[8:9]\ns_sub_u32 s4, s4, s5\ns_lshr_b32 s4, s4, 2\ns_add_u32 s4, s4, 1000\ns_min_u32 s4, s4, 100000")
            A(f"Lpr{u}:\ns_memrealtime s[6:7]\ns_waitcnt lgkmcnt(0)\ns_sub_u32 s6, s6, s8\ns_cmp_lt_u32 s6, s4\ns_cbranch_scc1 Lpr{u}\nLpr{u}e:")
        return
    A("s_load_dwordx2 s[4:5], s[0:1], 80\ns_waitcnt lgkmcnt(0)\n" + add64(4, WS_ST + 0x40000))
    A("s_lshl_b32 s6, s2, 2\ns_add_u32 s6, s6, s20\ns_lshl_b32 s6, s6, 8\nv_lshl_add_u32 v0, v2, 2, s6\nglobal_store_dword v0, v1, s[4:5]")
def emit(A, L):
    for d in L:
        if isinstance(d, str): A(d)
        else:
            for x in d:
                if x: A(x)
def lines(s): return [l for l in s.split("\n") if l.strip()]

def spin(slow, name, loads, test):
    slow.append(f"{name}_slow:\ns_mov_b32 s39, {C.SPIN}\n{name}_spin:\ns_sleep 8\n{loads}\ns_waitcnt vmcnt(0)\n{test}\ns_cbranch_vccz {name}_back\n"
                f"s_sub_u32 s39, s39, 1\ns_cmp_lg_u32 s39, 0\ns_cbranch_scc1 {name}_spin\ns_branch {name}_back")
    return f"{test}\ns_cbranch_vccnz {name}_slow\n{name}_back:"

def g2_steps(att):
    f = C.NFL // 2
    common = [("h", 3 * p, 1, 1) for p in range(f, 8)] + [("h", 3 * p + 1, 1, 2) for p in range(8)] + [("h", 3 * p + 2, 1, 3) for p in range(8)] \
           + [("o", p, 2, 0) for p in range(8)] + [("h", 48 + u, 3, 0) for u in range(4)]
    if att: return common
    return [("h", 3 * (p + 8 * s), 0, 1) for p in range(f) for s in range(2)] + common

def role(A, att):
    P = "La" if att else "Lg"
    slow = []
    stride = 6144 if att else 7168
    nblk = 7 if att else 6
    A("VMRESET")
    C.names = list(C.common); C.allnames[att] = C.names
    A("VMFAKE x0 4\nVMFAKE w0 3")
    def dma_x(j):
        L = []
        for i in range(4):
            for b0 in range(2):
                L.append((f"s_add_u32 m0, s{84+i}, {XS(j%2)}" if b0 == 0 else None, f"buffer_load_dwordx4 v16, s[4:7], s{80+i} offen offset:{b0*2048} lds ; @x{j}"))
        if att: L.append((f"s_add_u32 m0, s28, {XS(j%2)}", f"buffer_load_dwordx4 v17, s[4:7], 0 offen lds ; @x{j}"))
        L[-1] += (add64(4, 128) + ("\n" + sub64(4, "s64") if j == 7 else ""),)
        return L
    def dma_w(j):
        L = [(f"s_add_u32 m0, s{88+k}, {(j%3)*28672}", f"buffer_load_dwordx4 v{18+k//3}, s[8:11], s{94+k%3} offen lds ; @w{j}") for k in range(6)]
        L[-1] += (add64(8, 64 * stride) + ("\n" + sub64(8, "s65") if j == 7 else ""),)
        if att: L.append((f"s_add_u32 m0, s27, {(j%3)*28672 + 6144}", f"buffer_load_dwordx4 v20, s[68:71], 0 offen lds ; @w{j}", add64(68, 64 * 7168) + ("\n" + sub64(68, "s97") if j == 7 else "")))
        return L
    A(f"{P}_base:\ns_getpc_b64 s[76:77]\ns_load_dwordx2 s[52:53], s[0:1], {64 if att else 56}")
    A("v_lshrrev_b32 v5, 5, v2\nv_and_b32 v6, 3, v2")
    if att:
        A("s_lshl_b32 s28, s22, 10\ns_lshl_b32 s29, s22, 11\ns_cmp_eq_u32 s23, 0\ns_cselect_b32 s30, 32768, 0\ns_add_u32 s29, s29, s30\nv_add_u32 v17, s29, v17\ns_add_u32 s28, s28, 32768")
        A("v_lshrrev_b32 v24, 2, v2\nv_xor_b32 v25, v5, v6\ns_lshl_b32 s29, s20, 4\nv_add_u32 v24, s29, v24\nv_mul_u32_u24 v24, 7168, v24\nv_lshl_add_u32 v20, v25, 4, v24")
        A(f"s_mul_i32 s39, s3, {512*7168}\ns_lshl_b32 s38, s24, 6\ns_add_u32 s39, s39, s38\ns_add_u32 s39, s39, 6144\n" + add64(68, "s39") + "\n" + srd(68, 64 * 7168))
    A(f"s_mov_b32 s78, {P}_end-{P}_base-4\ns_mov_b32 s79, 0x20000")
    A("s_lshr_b32 s29, s2, 4\ns_lshl_b32 s29, s29, 2\ns_add_u32 s29, s29, s20\ns_lshl_b32 s29, s29, 10\nv_and_b32 v24, 7, v2\nv_lshl_add_u32 v23, v24, 7, s29")
    if C.CPF: A("buffer_load_dword a141, v23, s[76:79], 0 offen")
    A(f"s_lshl_b32 s64, s3, 11\ns_mul_i32 s65, s3, {1024*stride}\ns_mul_i32 s97, s3, {1024*7168}")
    A("v_and_b32 v27, 6, v4\nv_xor_b32 v27, v27, v3\nv_lshlrev_b32 v27, 4, v27\nv_lshl_add_u32 v28, v4, 7, v27")
    A("s_lshl_b32 s29, s21, 14\nv_add_u32 v8, s29, v28\nv_xor_b32 v9, 64, v8")
    if att:
        A("v_add_u32 v21, 32768, v28\nv_or_b32 v28, 0x400, v28\nv_lshrrev_b32 v27, 3, v4\nv_lshl_add_u32 v28, v27, 11, v28\nv_add_u32 v28, 12288, v28")
        A("s_cmp_eq_u32 s21, 0\ns_cselect_b64 vcc, -1, 0\nv_cndmask_b32 v21, v28, v21, vcc\nv_xor_b32 v22, 64, v21")
    xo_base = "s_lshl_b32 s29, s25, 2\ns_add_u32 s29, s29, s20\ns_lshl_b32 s29, s29, 16\ns_lshl_b32 s39, s26, 8\ns_add_u32 s29, s29, s39"
    if not att: A(xo_base + "\nv_lshl_add_u32 v21, v4, 12, s29\nv_lshl_add_u32 v21, v3, 4, v21")
    A("v_bfe_u32 v27, v2, 2, 2\nv_and_b32 v28, 1, v3")
    A(f"v_mul_u32_u24 v29, 7168, v5\nv_add_u32 v29, {WB}, v29")
    A("v_mul_u32_u24 v23, 3072, v28\nv_add_u32 v23, v29, v23\nv_lshl_add_u32 v23, v27, 7, v23\nv_lshl_add_u32 v23, v6, 3, v23")
    A("v_lshrrev_b32 v24, 1, v27\nv_lshl_or_b32 v24, v28, 1, v24\ns_lshl_b32 s29, s22, 1\nv_xor_b32 v24, s29, v24")
    A("v_lshl_add_u32 v10, v24, 5, v23\nv_xor_b32 v11, 32, v10\nv_add_u32 v13, 57344, v10\nv_add_u32 v14, 57344, v11")
    A("s_and_b32 s38, s23, 3\ns_lshl_b32 s38, s38, 1\ns_add_u32 s38, s38, s21")
    A("s_min_u32 s39, s38, 5\ns_and_b32 s29, s39, 1\ns_lshl_b32 s29, s29, 5\nv_xor_b32 v23, s29, v10\ns_lshr_b32 s29, s39, 1\ns_lshl_b32 s29, s29, 10\nv_add_u32 v23, s29, v23\nv_add_u32 v24, 512, v23")
    A("s_and_b32 s29, s39, 6\ns_add_u32 s29, s29, s22\ns_lshl_b32 s29, s29, 1\ns_and_b32 s39, s39, 1\ns_add_u32 s29, s29, s39\ns_lshl_b32 s29, s29, 4\nv_add_u32 v31, s29, v4")
    if att:
        A("v_lshl_add_u32 v25, v28, 3, v27\nv_lshl_add_u32 v25, v25, 6, v29\nv_add_u32 v25, 6144, v25")
        A("v_and_b32 v26, 2, v6\nv_add_u32 v26, s22, v26\nv_xor_b32 v26, v26, v28\nv_lshl_add_u32 v25, v26, 4, v25")
        A("v_and_b32 v26, 1, v6\nv_lshl_add_u32 v12, v26, 3, v25\nv_add_u32 v15, 57344, v12\nv_add_u32 v25, 256, v12")
        A("v_and_b32 v26, 8, v4\nv_add_u32 v26, v26, v4\ns_lshl_b32 s29, s22, 3\ns_add_u32 s29, s29, 192\nv_add_u32 v26, s29, v26")
        A("s_cmp_ge_u32 s38, 6\ns_cselect_b64 vcc, -1, 0\nv_cndmask_b32 v23, v23, v12, vcc\nv_cndmask_b32 v24, v24, v25, vcc\nv_cndmask_b32 v31, v31, v26, vcc")
    A("v_add_u32 v25, 57344, v23\nv_add_u32 v26, 57344, v24")
    A(f"s_lshl_b32 s66, s24, 12\ns_add_u32 s66, s66, {O_CS + (0 if att else 65536)}\ns_lshl_b32 s29, s3, 11\ns_add_u32 s29, s29, s66\nv_lshl_add_u32 v31, v31, 3, s29")
    A(f"s_cmp_lt_u32 s38, {nblk}\ns_cselect_b32 s38, 0xffff, 0")
    A("s_lshl_b32 s29, s23, 1\ns_add_u32 s29, s29, s21\ns_lshl_b32 s29, s29, 8\ns_lshl_b32 s39, s24, 1\ns_add_u32 s39, s39, s22\ns_lshl_b32 s39, s39, 2\ns_add_u32 s29, s29, s39")
    A(f"s_lshr_b32 s67, s2, 1\ns_lshl_b32 s67, s67, 2\ns_add_u32 s67, s67, s20\ns_lshl_b32 s67, s67, 7\ns_add_u32 s67, s67, {O_XF}")
    if att: A(f"s_add_u32 s29, s29, {O_FL}\nv_mov_b32 v29, s29")
    else: A(f"s_add_u32 s29, s29, {O_FL + 4096}\nv_lshl_add_u32 v29, v6, 12, s29\nv_mov_b32 v28, s67\nv_cmp_eq_u32 vcc, 3, v6\nv_cndmask_b32 v29, v29, v28, vcc")
    A("s_mov_b32 s12, s16\ns_mov_b32 s13, s17\ns_mov_b32 s56, s16\ns_mov_b32 s57, s17")
    for r, n in ((16, MB), (40, 2 * MB), (44, 7 * MB), (48, 256), (52, 4 * MB if att else 2048), (60, 4 * MB), (72, 7168), (56, 32768)): A(srd(r, n))
    A(f"s_lshr_b32 s29, s2, 1\ns_lshl_b32 s29, s29, 15\ns_add_u32 s29, s29, {WS_XCH}\n" + add64(56, "s29"))
    A("s_lshl_b32 s29, s2, 2\ns_add_u32 s37, s29, s20\ns_lshl_b32 s29, s37, 1\nv_lshrrev_b32 v30, 3, v4\nv_add_u32 v30, s29, v30\nv_and_b32 v27, 7, v2\nv_lshl_add_u32 v27, v3, 3, v27\nv_lshlrev_b32 v27, 4, v27\nv_lshl_add_u32 v27, v30, 11, v27")
    A("v_lshlrev_b32 v7, 4, v2\nv_mov_b32 v35, 1\nv_mov_b32 v34, 0\nv_mov_b32 v32, 0\nv_mov_b32 v33, 0\nv_lshlrev_b32 v30, 3, v30\ns_lshl_b32 s29, s20, 4\nv_add_lshl_u32 v6, s29, v4, 7")
    for i in range(4): A(f"v_accvgpr_write_b32 a{136+i}, s33")
    A("s_and_b32 s29, s76, 0xfff\ns_sub_u32 s99, 0x1000, s29\ns_lshl_b32 s29, s20, 7\ns_add_u32 s99, s99, s29\ns_waitcnt lgkmcnt(0)")
    emit(A, dma_w(0)[3:] + dma_x(0)[4:] + dma_x(1))
    A(ts("issued"))

    acc = lambda m, n: 64 + 4 * (6 * m + n)
    xf = lambda p, i: aR(64 * p + 4 * i)
    wf = lambda p, n: aR(64 * p + 32 + 4 * n)
    def reads(j, kk):
        p = kk; L = []; u = j % 3; hiw = u == 2
        wreg = 13 if hiw else 10; wo = (0 if hiw else u * 28672) + kk * 14336
        def wr(n):
            b = 64 * p + 32 + 4 * n
            if n < 6: return [f"ds_read_b64_tr_b16 a[{b+2*h}:{b+2*h+1}], v{wreg+(n&1)} offset:{wo + h*512 + (n>>1)*1024}" for h in range(2)]
            return [f"ds_read_b64_tr_b16 a[{b+2*h}:{b+2*h+1}], v{wreg+2} offset:{wo + h*256}" for h in range(2)]
        xr = lambda i: f"ds_read_b128 {xf(p,i)}, v{8+kk} offset:{XS(j%2) + i*2048}"
        L.append(xr(0))
        for n in range(nblk): L += wr(n)
        for i in range(1, 8): L.append(xr(i))
        if att: L.append(f"ds_read_b128 {wf(p,7)}, v{21+kk} offset:{XS(j%2)}")
        if j < 8: L += [f"ds_read_b64_tr_b16 a[{128+4*p+2*h}:{129+4*p+2*h}], v{(25 if hiw else 23)+h} offset:{wo}" for h in range(2)]
        return L
    def mfmas(j, p):
        first = j == 0 and p == 0; L = []
        for m in range(8):
            for n in (range(nblk) if m % 2 == 0 else reversed(range(nblk))):
                d = R(acc(m, n)) if n < 6 else aR(176 + 4 * m)
                a, b = wf(p, n), xf(p, m)
                if att and n in (4, 5): a, b = b, a
                L.append(f"{MF} {d}, {a}, {b}, {'0' if first else d}")
        if att:
            for i in range(4):
                a, b = wf(p, 2 + i), wf(p, 7); d = R(48 + 4 * i)
                if i >= 2: a, b = b, a
                L.append(f"{MF} {d}, {a}, {b}, {'0' if first else d}")
        if j < 8: L.append(f"{MF} v[36:39], a[136:139], {aR(128+4*p)}, {'0' if first else 'v[36:39]'}")
        return L
    def pf(i):
        if not C.PF or i > 8: return []
        if i < 7: return [(f"s_mul_i32 s29, s37, 7168\ns_add_u32 s29, s29, {1024*i}", "buffer_load_dwordx4 a[140:143], v7, s[44:47], s29 offen")]
        return [("s_lshl_b32 s29, s37, 11", f"buffer_load_dwordx4 a[140:143], v7, s[40:43], s29 offen offset:{1024*(i-7)}")]
    cpf = lambda lab, k=0, dst="a141": [(f"s_mov_b32 s29, {lab}-{P}_base+{8192*k}", f"buffer_load_dword {dst}, v6, s[76:79], s29 offen")] if C.CPF else []
    stm = []
    for i in range(4):
        stm += [f"{MF} v[40:43], a[136:139], {aR(144+4*i)}, {'v[40:43]' if i else '0'}", f"{MF} v[44:47], {aR(144+4*i)}, {aR(144+4*i)}, {'v[44:47]' if i else '0'}"]
    dpp = lambda v, m: f"v_add_f32_dpp v{v}, v{v}, v{v} {m} row_mask:0xf bank_mask:0xf"
    rnd = lambda v: [f"v_cvt_pk_bf16_f32 v{v}, v{v}, v{v}", f"v_and_b32 v{v}, 0xffff0000, v{v}"]
    st1 = ["v_lshlrev_b32 v41, 2, v3", "v_sub_u32 v41, v4, v41"]
    for q in range(4): st1 += [f"v_cmp_eq_u32 vcc, {q}, v41", dpp(40, ["quad_perm:[1,0,3,2]", "quad_perm:[2,3,0,1]", "row_half_mirror"][q]) if q < 3 else f"v_mul_f32 v40, {f32(1/1024)}, v40",
                               f"v_cndmask_b32 v42, {'v42' if q else '0'}, v{44+q}, vcc"]
    st1 += [dpp(42, "quad_perm:[1,0,3,2]"), "v_mul_f32 v41, v40, v40", dpp(42, "quad_perm:[2,3,0,1]"), rnd(40)[0], dpp(42, "row_half_mirror"), rnd(40)[1]]
    for sw in (16, 32): st1 += ["v_mov_b32 v43, v42", f"v_permlane{sw}_swap_b32 v42, v43", "v_add_f32 v42, v42, v43"]
    st2 = [f"v_mov_b32 v43, {f32(1/1024)}", "v_fma_f32 v44, v42, v43, -v41", "v_max_f32 v44, 0, v44"] + rnd(44) + [f"v_add_f32 v44, {f32(1e-5)}, v44"] + rnd(44) + ["v_sqrt_f32 v44, v44"] + rnd(44) + ["v_rcp_f32 v44, v44", "v_mul_f32 v45, v44, v40"]
    cph = lambda dst="a141": [("v_lshl_add_u32 v33, v4, 12, s99", f"buffer_load_dword {dst}, v33, s[76:79], 0 offen")] if C.CPH else []

    steps = g2_steps(att); NK = len(steps); DA = C.DA
    def lda(j):
        kind, q, dc, _ = steps[j]; ks = 2 * q + (0 if kind == "o" else 32); L = []
        for b in range(2):
            so = f"s_add_u32 s30, s{79+dc}, {ks*1024 + b*A2S}" if dc else f"s_mov_b32 s30, {ks*1024 + b*A2S}"
            for kk in range(2):
                d = 64 + 16 * (j % DA) + 8 * kk + 4 * b
                L.append((so if kk == 0 else None, f"buffer_load_dwordx4 {aR(d)}, v16, s[4:7], s30 offen offset:{kk*1024} {C.A_AUX} ; @a{j}"))
        return L
    def dma_b(j):
        kind, q, dc, _ = steps[j]; L = []; sr = "s[40:43]" if kind == "o" else "s[44:47]"
        for hi in range(2):
            so = f"s_add_u32 s31, s{82+dc}, {q*131072 + hi*16384}" if dc else f"s_mov_b32 s31, {q*131072 + hi*16384}"
            for ln in range(2):
                L.append((f"s_add_u32 m0, s98, {BS(j) + hi*2048 + ln*896}" + ("\n" + so if ln == 0 else ""),
                          f"buffer_load_dwordx4 v19, {sr}, s31 offen offset:{128*ln} lds ; @b{j}"))
        return L
    setup_b = ["s_lshl_b32 s98, s20, 12", "v_lshrrev_b32 v18, 3, v2", "v_and_b32 v19, 7, v2", "v_and_b32 v20, 6, v18", "v_xor_b32 v19, v19, v20",
               "s_lshl_b32 s29, s20, 4\nv_add_u32 v18, s29, v18", "s_lshl_b32 s29, s26, 8\nv_lshl_add_u32 v18, v18, 11, s29", "v_lshl_add_u32 v19, v19, 4, v18",
               f"s_lshl_b32 s29, s25, 8\ns_add_u32 s29, s29, {O_FL}\nv_and_b32 v20, 31, v2", "v_lshl_add_u32 v20, v20, 2, s29"]
    setup_d = ["s_and_b32 s29, s2, 1\ns_mul_i32 s80, s29, 49152\ns_lshl_b32 s81, s29, 14\ns_lshl_b32 s82, s29, 13",
               f"s_mul_i32 s83, s29, {24*131072}\ns_lshl_b32 s84, s29, 20\ns_lshl_b32 s85, s29, 19"]
    setup_a = [f"s_mul_i32 s29, s20, {2*A2S}\nv_lshl_add_u32 v16, v2, 4, s29",
               f"s_mul_i32 s29, s25, {8*A2S}\ns_add_u32 s29, s29, {WS_A2}", f"s_add_u32 s4, s12, s29\ns_addc_u32 s5, s13, 0\ns_mov_b32 s6, {8*A2S}",
               f"s_lshl_b32 s29, s23, 1\ns_add_u32 s29, s29, s21\ns_mul_i32 s29, s29, {8*A2S}", f"s_add_u32 s29, s29, {WS_A2}\n" + add64(12, "s29"), srd(12, 8 * A2S),
               "s_movk_i32 s34, 0x1000\ns_movk_i32 s32, 0x2000\ns_movk_i32 s28, 0x3000"]
    c0 = -2 * math.sqrt(2 / math.pi) * math.log2(math.e); c1 = c0 * 0.044715
    sc = 32 ** -0.5 * math.log2(math.e)
    rowp = lambda dst, a, off: f"ds_read_b32 v{dst}, v{a} offset:{off}\nds_read_b32 v{dst+1}, v{a} offset:{off+1280}"
    colreads = lambda ln: [f"ds_read_b128 {R(56+4*c)}, v31 offset:{256*ln+64*c}\nds_read_b128 {R(8+4*c)}, v31 offset:{1024+256*ln+64*c}" for c in range(2)]
    epi = [f"s_lshl_b32 s29, s21, 9\ns_add_u32 s29, s29, {TB}\nv_lshl_add_u32 v30, v4, 2, s29", f"s_mov_b32 s64, {f32(c1)}\ns_mov_b32 s65, {f32(c1)}\nv_mov_b32 v0, {f32(c0)}"]
    if not att:
        epi += [rowp(40 + 2 * m, 30, 64 * m) for m in range(8)]
        epi += [f"s_lshl_b32 s29, s22, 7\ns_add_u32 s29, s29, {T_CS}\nv_lshl_add_u32 v31, v3, 4, s29"] + colreads(0)
        epi += ["s_mul_i32 s29, s24, 6\ns_add_u32 s29, s29, s22\ns_add_u32 s29, s29, 32", "s_lshl_b32 s29, s29, 10\nv_lshl_add_u32 v18, v2, 4, s29"]
    else:
        epi += ["v_lshl_add_u32 v31, v3, 4, s29", f"s_lshl_b32 s29, s22, 7\ns_add_u32 s29, s29, {T_CS}\nv_lshl_add_u32 v26, v3, 4, s29", "v_lshl_add_u32 v27, v4, 2, s29"]
        epi += [f"ds_read_b128 {R([8,12,40,44][n])}, v26 offset:{256*(n>>1)+64*(n&1)}" for n in range(4)]
        epi += ["ds_read_b32 v36, v27 offset:512\nds_read_b32 v37, v27 offset:576", rowp(22, 30, 0)]
        epi += lines("v_or_b32 v28, 8, v4\nv_and_b32 v32, 8, v4\nv_lshl_add_u32 v28, v32, 1, v28\nv_add_u32 v28, 96, v28\nv_add_u32 v32, 0x100, v4")
        epi += [f"s_cmp_eq_u32 s21, 0\ns_cselect_b64 vcc, -1, 0\ns_mov_b32 s29, {TB}", "v_cndmask_b32 v28, v28, v32, vcc", "v_lshl_add_u32 v28, v28, 2, s29"]
        epi += lines("v_and_b32 v32, 1, v3\nv_lshlrev_b32 v21, 4, v32\nv_lshl_add_u32 v32, v5, 2, v32\nv_add_u32 v32, 26, v32\nv_add_u32 v34, 64, v3\nv_cndmask_b32 v32, v32, v34, vcc\nv_lshl_add_u32 v32, v32, 4, s29")
        epi += ["v_lshl_add_u32 v21, v5, 6, v21", f"s_lshl_b32 s29, s22, 5\ns_add_u32 s29, s29, {T_CS+768}\nv_add_u32 v21, s29, v21"]
        epi += ["s_lshl_b32 s29, s24, 1\ns_add_u32 s29, s29, s22\ns_lshl_b32 s29, s29, 10", "v_lshl_add_u32 v18, v2, 4, s29"]
        epi += [f"v_mul_u32_u24 v17, {A2S}, v5", "v_and_b32 v34, 31, v2", "v_lshl_add_u32 v17, v34, 4, v17",
                "s_lshl_b32 s29, s24, 1\ns_add_u32 s29, s29, s22\ns_add_u32 s29, s29, 256", "s_lshl_b32 s29, s29, 9\nv_add_u32 v17, s29, v17"]
        epi += [f"s_mov_b32 s86, {f32(sc)}\ns_mov_b32 s87, {f32(sc)}"]

    A("WAITVM x0 w0\ns_barrier"); A(ts("land0"))
    emit(A, reads(0, 0))
    A("s_waitcnt lgkmcnt(0)")
    M = mfmas(0, 0); n = len(M)
    emit(A, place(M, [(reads(0, 1), 0, n - 10), (dma_w(1), 0, n - 20)]))
    pf0 = 4 if att else 6
    c0load = "buffer_load_dword v33, v34, s[48:51], 0 offen sc1"
    tbl = ["buffer_load_dwordx2 v[40:41], v30, s[16:19], s66 offen sc1", "buffer_load_dwordx2 v[42:43], v30, s[16:19], s66 offen offset:2048 sc1"]
    for j in range(16):
        if j < 15: A(f"WAITVM x{j+1} w{j+1}" + {2: " st", 4: " clr", 5: " sst", 12: " c0", 13: " tb"}.get(j, "") + " | lgkmcnt(0)\ns_barrier")
        else: A("s_waitcnt lgkmcnt(0)\ns_barrier")
        A(ts(f"p{j}"))
        M = mfmas(j, 1); n = len(M); S = []; D = []
        if j < 15: S.append((reads(j + 1, 0), 0, n - 10))
        if j == 2: M = M + stm
        if j == 3: S.append((st2, 2, 40)); S.append((["s_mov_b64 exec, 0x101\nbuffer_store_dwordx2 v[44:45], v30, s[16:19], 0 offen sc1 ; @sst\ns_mov_b64 exec, -1"], n - 5, n - 4))
        if j == 11:
            D.append((None, c0load + " ; @c0"))
            sd = [f"v_min_u32 v30, {nblk*32-1}, v0", "v_and_b32 v27, 0xe0, v0", "v_lshl_add_u32 v27, v4, 1, v27", "v_and_b32 v28, 1, v3", "v_add_u32 v27, v27, v28",
                  "s_lshl_b32 s29, s23, 8\nv_add_lshl_u32 v27, v27, s29, 3"]
            if att: sd += ["v_and_b32 v28, 7, v4", "v_lshrrev_b32 v32, 3, v4", "v_lshl_add_u32 v28, v28, 1, v32", "s_max_u32 s39, s29, 16\ns_sub_u32 s39, s39, 16\nv_add_lshl_u32 v28, v28, s39, 3",
                           "v_and_b32 v31, 31, v0", "s_lshl_b32 s29, s24, 5\ns_add_u32 s29, s29, 3072\nv_add_lshl_u32 v31, v31, s29, 1"]
            else: sd += ["s_mul_i32 s29, s24, 192\nv_add_lshl_u32 v31, v30, s29, 1", "v_and_b32 v28, 127, v0", "s_lshl_b32 s29, s26, 7\nv_add_lshl_u32 v28, v28, s29, 1"]
            sd += ["v_lshlrev_b32 v30, 3, v30", "v_lshlrev_b32 v32, 2, v0"]
            S.append((sd, 4, 40))
        if j == 12:
            S.append(([spin(slow, P + "_c0", c0load, "v_cmp_gt_u32 vcc, 0x100, v33")], 0, 1))
            D += [(None, t + " ; @tb") for t in tbl]
            D.append((None, "buffer_load_dwordx2 v[44:45], v27, s[16:19], 0 offen sc1 ; @tb"))
            D.append((None, "buffer_load_dwordx2 v[46:47], v28, s[16:19], 0 offen sc1 ; @tb" if att else "buffer_load_ushort v46, v28, s[52:55], 0 offen ; @tb"))
            D.append((None, "buffer_load_ushort v36, v31, s[72:75], 0 offen ; @tb"))
        if j == 13:
            sd = [spin(slow, P + "_cs", "\n".join(tbl), "v_and_b32 v33, v41, v43\nv_cmp_ne_u32 vcc, 1, v33"), "v_add_f32 v40, v40, v42", f"v_add_u32 v32, {TB}, v32",
                  "ds_write2st64_b32 v32, v44, v45 offset0:0 offset1:5", "v_lshlrev_b32 v36, 16, v36", "ds_write2st64_b32 v32, v40, v36 offset0:10 offset1:14"]
            if att: sd += ["v_lshlrev_b32 v32, 2, v4", f"v_add_u32 v32, {TB+1024}, v32", "ds_write2st64_b32 v32, v46, v47 offset0:0 offset1:5"]
            else: sd += ["v_lshlrev_b32 v46, 16, v46", f"ds_write_b32 v32, v46 offset:{T_B2-TB}"]
            S.append((sd + setup_b, 1, n - 2))
        if att and j in (9, 10):
            sd = [f"v_mov_b32 v27, {f32(-1e30)}", "v_lshlrev_b32 v28, 2, v3", "v_sub_u32 v28, v28, v4",
                  "s_or_b32 s29, s23, s21\ns_cmp_lg_u32 s29, 0\ns_cselect_b64 s[64:65], -1, 0"]
            for q in range(2 * (j - 9), 2 * (j - 9) + 2):
                sel = lambda k: ["v_cndmask_b32 v33, v27, 0, vcc", f"v_accvgpr_write_b32 a{160+4*k+q}, v33"]
                sd += [f"v_add_u32 v32, {7+q}, v28", "v_cmp_gt_u32 vcc, 8, v32"] + sel(0) + ["v_cmp_lt_i32 vcc, 15, v32"] + sel(1)
                sd += ["s_and_b64 vcc, vcc, s[64:65]"] + sel(3) + ["v_cmp_lt_i32 vcc, 7, v32", "s_and_b64 vcc, vcc, s[64:65]\ns_mov_b32 vcc_hi, 0"] + sel(2)
            S.append((sd, 2, n - 4))
        if j + 2 <= 15: D += dma_x(j + 2)
        if j == 0: D += dma_w(2)
        if j == 14: S.append((setup_a, 2, n - 4)); D += dma_b(1) + dma_b(2)
        if j == 15: S.append((epi, 0, n - 6)); D += dma_b(5) + dma_b(6)
        S.append((D, 1, n - 6))
        emit(A, place(M, S))
        if j < 15:
            A("s_waitcnt lgkmcnt(0)")
            M = mfmas(j + 1, 0); n = len(M); S = [(reads(j + 1, 1), 0, n - 10)]; D = []
            if j + 3 <= 15: D += dma_w(j + 3)
            if j == 0:
                D += [(None, f"buffer_load_dwordx4 {aR(144+4*i)}, v27, s[60:63], 0 offen offset:{512*i} ; @st") for i in range(4)]
            if j == 1:
                D.append((f"s_mov_b64 exec, {1 if att else 15}\nbuffer_store_dword v32, v29, s[16:19], 0 offen sc1 ; @clr\ns_mov_b64 exec, -1", None))
                D.append((f"s_mov_b32 exec_lo, s38\ns_mov_b32 exec_hi, 0\ns_cbranch_execz {P}_ncl\nbuffer_store_dwordx2 v[32:33], v31, s[16:19], 0 offen sc1 ; @cond\n{P}_ncl:\ns_mov_b64 exec, -1", None))
            if j == 2: S.append((st1, 4, n - 1))
            if j in (2, 4, 6, 8, 10): D += cph()
            if not att and 3 <= j <= 10: D.append((None, f"buffer_load_dwordx4 {aR(208+4*(j-3))}, v21, s[60:63], 0 offen offset:{2048*((j-3)>>2)+64*((j-3)&3)}"))
            if j in (5, 6):
                D.append((f"s_bfe_u32 s29, s2, 0x10004\ns_lshl_b32 s39, s20, 1\ns_add_u32 s29, s29, s39\ns_cmp_eq_u32 s29, {j-5}\ns_cbranch_scc0 {P}_na{j}\ns_mov_b64 exec, 1\n"
                          f"buffer_atomic_add v35, v34, s[48:51], 0 offen sc1 ; @cond\ns_mov_b64 exec, -1\n{P}_na{j}:", None))
            if j >= pf0: D += pf(2 * (j - pf0)) + pf(2 * (j - pf0) + 1)
            if j == 7: D.append((f"v_mov_b32 v37, 1\ns_mov_b32 exec_lo, s38\ns_mov_b32 exec_hi, 0\ns_cbranch_execz {P}_ncs\nbuffer_store_dwordx2 v[36:37], v31, s[16:19], 0 offen sc1 ; @cond\n{P}_ncs:\ns_mov_b64 exec, -1", None))
            if j == 12: D += cpf(P + "_epi", 0) + cpf(P + "_epi", 1)
            if j == 13: D += [tuple(setup_d)] + dma_b(0) + cpf(P + "_epi", 2)
            if j == 14: D += dma_b(3) + dma_b(4)
            S.append((D, 0, n - 6))
            emit(A, place(M, S))
    A(ts("g1end")); A(ts("RTg1")); A(ts("e0"))
    A(f"{P}_epi:")
    flag = lambda lane: f"s_mov_b64 exec, {1<<lane}\nbuffer_store_dword v35, v29, s[16:19], 0 offen sc1\ns_mov_b64 exec, -1"
    poll = lambda kind: f"buffer_load_dword v33, v20, s[16:19], {['0','s34','s32','s28'][kind]} offen sc1"
    ptest = "v_cmp_eq_u32 vcc, 0, v33"
    acc2 = lambda m, n: 64 + 32 * m + 4 * n
    G2A = 232
    g2_addr = lines("v_bfe_u32 v244, v2, 2, 3\nv_and_b32 v245, 3, v2\nv_lshlrev_b32 v246, 11, v5\nv_lshl_add_u32 v246, v244, 7, v246\nv_lshl_add_u32 v246, v245, 3, v246\n"
                    f"v_lshrrev_b32 v244, 1, v244\nv_lshl_add_u32 v{G2A}, v244, 5, v246\nv_add_u32 v{G2A+4}, 0x10000, v{G2A}") + [f"v_xor_b32 v{G2A+4+c}, {32*c}, v{G2A+4}" for c in (1, 2, 3)]
    g2_addr2 = [f"v_add_u32 v{G2A+8+c}, 0x10000, v{G2A+4+c}" for c in range(4)] + [f"v_xor_b32 v{G2A+c}, {32*c}, v{G2A}" for c in (1, 2, 3)]
    def reads2(j, kk):
        st = BS(j); w = G2A + 4 * (st >> 16); st &= 0xffff
        return [f"ds_read_b64_tr_b16 a[{32*kk+4*n+2*h}:{32*kk+4*n+2*h+1}], v{w+(n&3)} offset:{st + (2*kk+h)*4096 + (n>>2)*1024}" for n in range(8) for h in range(2)]
    def gelu8(t, rs, cs, b1):
        u = [22, 24, 26, 38]; L = []
        for i in range(4): L.append(f"v_pk_fma_f32 {Pn(u[i])}, {Pn(cs[i])}, {Pn(rs[i])}, {Pn(b1[i])} op_sel:[0,1,0] op_sel_hi:[1,1,1] neg_lo:[0,1,0] neg_hi:[0,1,0]")
        for i in range(4): L.append(f"v_pk_fma_f32 {Pn(t[i])}, {Pn(t[i])}, {Pn(rs[i])}, {Pn(u[i])} op_sel_hi:[1,0,1]")
        for i in range(4): L.append(f"v_pk_mul_f32 {Pn(u[i])}, {Pn(t[i])}, {Pn(t[i])}")
        for i in range(4): L.append(f"v_pk_fma_f32 {Pn(u[i])}, {Pn(u[i])}, s[64:65], v[0:1] op_sel_hi:[1,1,0]")
        for i in range(4): L.append(f"v_pk_mul_f32 {Pn(u[i])}, {Pn(u[i])}, {Pn(t[i])}")
        for i in range(8): L.append(f"v_exp_f32 v{u[i>>1]+(i&1)}, v{u[i>>1]+(i&1)}")
        for i in range(4): L.append(f"v_pk_add_f32 {Pn(u[i])}, {Pn(u[i])}, 1.0 op_sel_hi:[1,0]")
        for i in range(8): L.append(f"v_rcp_f32 v{u[i>>1]+(i&1)}, v{u[i>>1]+(i&1)}")
        for i in range(4): L.append(f"v_pk_mul_f32 {Pn(u[i])}, {Pn(u[i])}, {Pn(t[i])}")
        for i in range(4): L.append(cvt(t[0] + i, u[i]))
        return L
    start2 = ["WAITVM b0 b1\ns_barrier"] + reads2(0, 0)
    NA0 = 2
    if not att:
        for ln in range(3):
            A("s_waitcnt lgkmcnt(0)")
            for m in range(8):
                if m in (0, 4): A(ts(f"L{ln}m{m}"))
                d = acc(m, 2 * ln)
                G = gelu8([d, d + 2, d + 4, d + 6], [40 + 2 * m] * 4, [56, 58, 60, 62], [8, 10, 12, 14]); S = []
                if m == 7 and ln < 2: S.append((colreads(ln + 1), 6, 8))
                if ln == 1 and m == 3: S.append((["WAITVM h0\n" + flag(0)], 2, 3))
                if ln == 2:
                    if m == 0: emit(A, g2_addr)
                    if m == 2: S.append(([poll(1) + " ; @p1"], 2, 3))
                    if m == 4: S.append((["WAITVM p1 h1\n" + flag(1) + "\n" + spin(slow, P + "_f1", poll(1), ptest)] + lda(0), 30, 44))
                    if m == 5: S.append((lda(1), 2, 40))
                    if m == 6: S.append(([f"s_mov_b32 s29, {T_B2}\nv_lshl_add_u32 v32, v3, 4, s29"] + [f"ds_read_b128 {R(acc2(1,n))}, v32 offset:{64*n}" for n in range(8)], 2, 30))
                    if m == 7: S.append((start2, 2, 40))
                emit(A, place(G, S))
                A(f"s_mov_b32 s29, {m*A2S + ln*2048}\nbuffer_store_dwordx4 {R(d)}, v18, s[12:15], s29 offen {C.ST_AUX} ; @h{ln}")
    else:
        tmp = [26, 38, 46 - 40, 34]
        tmp = [26, 38, 26, 38]
        for m in range(9):
            A("s_waitcnt lgkmcnt(0)")
            if m < 8: A(rowp(22 + 2 * ((m + 1) & 1), 28 if m == 7 else 30, 64 * ((m + 1) & 7)))
            else: A("ds_read_b128 v[8:11], v32\nds_read_b128 v[12:15], v32 offset:1280")
            rs = Pn(22 + 2 * (m & 1))
            for part in ((0, 1) if m < 8 else (1,)):
                src = (acc(m, 0) + 8 * part) if m < 8 else 48; dst = (acc(m, 0) + 4 * part) if m < 8 else 48; cs = [8, 40][part]
                for i in range(4): A(f"v_pk_mul_f32 {Pn(src+2*i)}, {Pn(src+2*i)}, {rs} op_sel_hi:[1,0]")
                for i in range(4): A(f"v_pk_fma_f32 {Pn(src+2*i)}, {Pn(cs+2*i)}, {rs}, {Pn(src+2*i)} op_sel:[0,1,0] op_sel_hi:[1,1,1] neg_lo:[0,1,0] neg_hi:[0,1,0]")
                for i in range(4): A(cvt(dst + i, src + 2 * i))
        A(ts("v"))
        order = [8] + list(range(8))
        for k, m in enumerate(order):
            A("s_waitcnt lgkmcnt(0)")
            b = k & 1
            if k < 8: A(f"ds_read_b128 {R([8,40][1-b])}, v31 offset:{64*k}\nds_read_b128 {R([12,44][1-b])}, v31 offset:{64*k+1280}")
            rs, mr = [8, 40][b], [12, 44][b]
            src = 56 if m == 8 else acc(m, 4)
            for i in range(4): A(f"v_pk_mul_f32 {Pn(src+2*i)}, {Pn(src+2*i)}, {Pn(rs+2*(i&1))}")
            for i in range(4): A(f"v_pk_fma_f32 {Pn(src+2*i)}, {Pn(mr+2*(i&1))}, v[36:37], {Pn(src+2*i)} op_sel:[0,{i>>1},0] op_sel_hi:[1,{i>>1},1] neg_lo:[0,1,0] neg_hi:[0,1,0]")
            for i in range(4):
                db, h = i >> 1, i & 1
                if m == 8: dsts = [acc(0, 2 + db) + h, acc(1, 2 + db) + h]
                else: dsts = [acc(m, 2 + db) + 2 + h] + ([acc(m + 2, 2 + db) + h] if m < 6 else [])
                for d in dsts: A(cvt(d, src + 2 * i))
        A(ts("s"))
        mk = [8, 12, 40, 44]
        for k in range(4):
            for q in range(4): A(f"v_accvgpr_read_b32 v{mk[k]+q}, a{160+4*k+q}")
        def smf(m): return [f"{MF} {R(acc(m,4))}, {R(48 if m < 2 else acc(m-2,1))}, {R(acc(m,0))}, {R(mk[2+m] if m < 2 else mk[1])}",
                            f"{MF} {R(acc(m,5))}, {R(acc(m,1))}, {R(acc(m,0))}, {R(mk[0])}"]
        def smax(m):
            s = acc(m, 4); mx = 22 + 2 * (m & 1); q = acc(m, 0)
            L = [f"v_max3_f32 v{mx}, v{s}, v{s+1}, v{s+2}", f"v_max3_f32 v{mx+1}, v{s+3}, v{s+4}, v{s+5}", f"v_max3_f32 v{mx}, v{mx}, v{s+6}, v{s+7}", f"v_max_f32 v{mx}, v{mx}, v{mx+1}"]
            for sw in (16, 32): L += [f"v_mov_b32 v{mx+1}, v{mx}", f"v_permlane{sw}_swap_b32 v{mx}, v{mx+1}", f"v_max_f32 v{mx}, v{mx}, v{mx+1}"]
            L.append(f"v_mul_f32 v{mx}, s86, v{mx}")
            for i in range(4): L.append(f"v_pk_fma_f32 {Pn(s+2*i)}, {Pn(s+2*i)}, s[86:87], {Pn(mx)} op_sel_hi:[1,1,0] neg_lo:[0,0,1] neg_hi:[0,0,1]")
            for i in range(8): L.append(f"v_exp_f32 v{s+i}, v{s+i}")
            for i in range(4): L.append(cvt(q + i, s + 2 * i))
            return L
        def pvf(m):
            q = acc(m, 0)
            return [f"{MF} {R(acc(m,4))}, {R(acc(m,2))}, {R(q)}, 0", f"{MF} {R(acc(m,5))}, {R(acc(m,3))}, {R(q)}, 0", f"{MF} {R(acc(m,2))}, a[136:139], {R(q)}, 0"]
        def fin(m):
            s = acc(m, 4); l = acc(m, 2); q = acc(m, 0)
            L = [f"v_rcp_f32 v{l}, v{l}"]
            for i in range(4): L.append(f"v_pk_mul_f32 {Pn(s+2*i)}, {Pn(s+2*i)}, {Pn(l)} op_sel_hi:[1,0]")
            for i in range(4): L.append(cvt(q + i, s + 2 * i))
            L.append(f"s_mov_b32 s29, {m*A2S}\nbuffer_store_dwordx4 {R(q)}, v18, s[12:15], s29 offen {C.ST_AUX} ; @o")
            return L
        zp = lambda a, b: [x for p in zip(a, b) for x in p]
        emit(A, smf(0) + smf(1))
        for i in range(8): A(f"v_accvgpr_read_b32 v{52+i}, a{176+i}")
        for mp in range(4):
            G = zp(smax(2 * mp), smax(2 * mp + 1)); S = []
            if mp < 3: S.append((smf(2 * mp + 2) + smf(2 * mp + 3), 22, 38))
            if mp > 0: S.append((pvf(2 * mp - 2) + pvf(2 * mp - 1), 1, 19))
            if mp == 1: S.append(([rowp(40 + 2 * m, 30, 64 * m) for m in range(4)], 40, 50))
            if mp == 2: S.append(([poll(1) + " ; @p1"], 40, 41))
            if mp == 3: S.append((["ds_read_b128 v[8:11], v21\nds_read_b128 v[12:15], v21 offset:1024"] + [rowp([48, 50, 60, 62][m], 30, 256 + 64 * m) for m in range(4)], 40, 50))
            emit(A, place(G, S))
            if mp > 0: emit(A, zp(fin(2 * mp - 2), fin(2 * mp - 1)))
        A(ts("h"))
        A("s_waitcnt lgkmcnt(0)")
        rp = [40, 42, 44, 46, 48, 50, 60, 62]
        for mp in range(4):
            d = 52 if mp == 0 else 128 + 8 * mp
            if mp:
                for i in range(8): A(f"v_accvgpr_read_b32 v{d+i}, a{176+8*mp+i}")
            G = gelu8([d, d + 2, d + 4, d + 6], [rp[2 * mp]] * 2 + [rp[2 * mp + 1]] * 2, [8, 10, 8, 10], [12, 14, 12, 14]); S = []
            if mp == 0: S.append((pvf(6) + pvf(7), 1, 19)); S.append((["WAITVM p1\n" + spin(slow, P + "_f1", poll(1), ptest)] + lda(0), 24, 44))
            if mp == 1: S.append((lda(1), 2, 40))
            if mp == 3: S.append((start2, 2, 40))
            emit(A, place(G, S))
            A(f"v_permlane32_swap_b32 v{d}, v{d+2}\nv_permlane32_swap_b32 v{d+1}, v{d+3}")
            A(f"s_mov_b32 s29, {2*mp*A2S}\nbuffer_store_dwordx4 {R(d)}, v17, s[12:15], s29 offen {C.ST_AUX} ; @h2")
            if mp == 0: emit(A, zp(fin(6), fin(7))); emit(A, g2_addr)

    def mfmas2(j, kk):
        first = j == 0 and kk == 0; L = []
        for n in range(8):
            for m in ((0, 1) if n % 2 == 0 or first else (1, 0)):
                d = R(acc2(m, n)); c = d if not first else ("0" if att else R(acc2(1, n)))
                L.append(f"{MF} {d}, {aR(32*kk+4*n)}, {aR(64+16*(j%DA)+8*kk+4*m)}, {c}")
        return L
    def sub2(M, Rd, S, D):
        S = [(Rd, 0, 16)] + S
        if D: S.append((D, 1, 15))
        S.append(([f"s_waitcnt lgkmcnt({8 if Rd else 0})"], 7, 8))
        emit(A, place(M, S))
    A("WAITVM a0 | lgkmcnt(0)"); A(ts("g2go")); A(ts("RTg2")); A(ts("g2go2"))
    A(f"{P}_g2:")
    first_need = {}
    for s, st in enumerate(steps): first_need.setdefault(st[3], s)
    have = {1}
    aq = list(range(NA0, NK)); bq = list(range(7, NK))
    def take_a(j, half, maxn):
        out = []
        while aq and len(out) < maxn and aq[0] - DA <= (j if half else j - 1) and steps[aq[0]][3] in have: out.append(aq.pop(0))
        return sum((lda(s) for s in out), [])
    checks = {max(first_need[k] - DA - 1, 0): k for k in first_need if k not in have}
    sub2(mfmas2(0, 0), reads2(0, 1), [(g2_addr2, 3, 14)], take_a(-1, 1, 1))
    xpoll = "buffer_load_dword v33, v34, s[16:19], 0 offen sc1"
    xloads = "\n".join(f"buffer_load_dwordx4 {R(128+4*i)}, v18, s[56:59], {'s34' if i>=4 else '0'} offen offset:{1024*(i&3)} sc1 ; @cond" for i in range(8))
    bdone = -2.0
    for j in range(NK):
        last = j == NK - 1; S = []
        if not last:
            w = f"WAITVM b{j+1}"
            if j - 2 in checks: w += f" p{checks[j-2]}"
            if j == 2: w += " h2"
            if att and j == NK - C.XCHK: w += " px"
            A(w + " | lgkmcnt(8)\ns_barrier")
            if j % 4 == 0: A(ts(f"q{j}"))
        else: A("s_waitcnt lgkmcnt(8)")
        if j - 2 in checks: S.append(([spin(slow, f"{P}_g{checks[j-2]}", poll(checks[j-2]), ptest)], 0, 1)); have.add(checks[j - 2])
        if j == 2: S.append(([flag(0 if att else 2)], 0, 1))
        if j in checks: S.append(([poll(checks[j]) + f" ; @p{checks[j]}"], 0, 1))
        if j == 4:
            sd = ["s_lshl_b32 s29, s20, 13\nv_lshl_add_u32 v18, v2, 4, s29"]
            if att: sd += ["v_mov_b32 v34, s67"] + lines(xo_base) + ["v_lshl_add_u32 v21, v3, 12, s29", "v_lshl_add_u32 v21, v4, 4, v21"]
            S.append((sd, 3, 15))
        if j == 5:
            sd = ["v_and_b32 v22, 1, v4", "v_lshlrev_b32 v22, 4, v22", "v_mov_b32 v23, 0x3f80", "v_lshlrev_b32 v22, v22, v23", "v_lshrrev_b32 v23, 1, v4", f"v_lshlrev_b32 v24, {1 if att else 2}, v3", "v_sub_u32 v23, v23, v24"]
            S.append((sd, 2, 16))
        if j == 6 and att:
            S.append((["v_mov_b32 v160, 0", "v_mov_b32 v161, 0", "v_mov_b32 v164, 0", "v_mov_b32 v165, 0", "v_mul_u32_u24 v8, 272, v4", "v_lshl_add_u32 v8, v3, 3, v8", "s_mul_i32 s29, s20, 8704\nv_add_u32 v8, s29, v8"], 2, 16))
        if j == 8 and att:
            S.append((["v_cmp_eq_u32 vcc, 0, v23", "v_mul_u32_u24 v9, 272, v3", "v_cndmask_b32 v162, 0, v22, vcc", "v_cmp_eq_u32 vcc, 1, v23", "v_lshl_add_u32 v9, v4, 4, v9", "v_cndmask_b32 v163, 0, v22, vcc", "s_mul_i32 s29, s20, 8704\nv_add_u32 v9, s29, v9"], 2, 16))
        if j in (6, 7, 8, 9) and not att:
            S.append(([x for d in range(2 * (j - 6), 2 * (j - 6) + 2) for x in (f"v_cmp_eq_i32 vcc, {(d&3) - 8*(d>>2)}, v23", f"v_cndmask_b32 v{160+d}, 0, v22, vcc")], 2, 16))
        if att and j == NK - C.XCHK - 2: S.append(([xpoll + " ; @px"], 0, 1))
        if att and j == NK - C.XCHK: S.append(([f"{ptest}\ns_mov_b64 s[64:65], vcc\ns_cbranch_vccnz {P}_nox\n{xloads}\n{P}_nox:"], 0, 1))
        if last and att: S.append((["s_barrier"], 8, 9))
        bdone += (NK - 7) / (NK - 6.0)
        if bq and bq[0] - NB + 1 <= j and (bq[0] - 7 < bdone or bq[0] <= j + 3): D = dma_b(bq.pop(0))
        else: D = take_a(j, 0, 1)
        sub2(mfmas2(j, 1), [] if last else reads2(j + 1, 0), S, D)
        if not last:
            A(f"WAITVM a{j+1} | lgkmcnt(8)")
            D = take_a(j, 1, 1)
            if j % 6 == 3 and C.CPH: D.append(("v_lshl_add_u32 v246, v4, 12, s99", "buffer_load_dword v247, v246, s[76:79], 0 offen"))
            sub2(mfmas2(j + 1, 0), reads2(j + 1, 1), [], D)
            if not att and j == 10:
                for n in range(8):
                    for m in range(2): A(f"{MF} {R(acc2(m,n))}, {R(160+4*(n&1))}, {aR(208+16*m+4*(n>>1))}, {R(acc2(m,n))}")
    assert not aq and not bq
    A(ts("g2end"))
    if not att:
        for k in [0, 4, 1, 5, 2, 6, 3, 7]:
            d = 64 + 8 * k
            for q in range(4): A(cvt(128 + 4 * k + q, d + 2 * q))
            A(f"buffer_store_dwordx4 {R(128+4*k)}, v18, s[56:59], {'s34' if k>=4 else '0'} offen offset:{1024*(k&3)} sc1")
        A("s_waitcnt vmcnt(0)\n" + flag(3))
    else:
        A(f"s_cmp_eq_u64 s[64:65], 0\ns_cbranch_scc0 {P}_x_slow\n{P}_xdone:")
        slow.append(f"{P}_x_slow:\ns_mov_b32 s39, {C.SPIN}\n{P}_x_spin:\n{xpoll}\ns_waitcnt vmcnt(0)\n{ptest}\ns_cbranch_vccz {P}_x_ok\ns_sleep 4\ns_sub_u32 s39, s39, 1\ns_cmp_lg_u32 s39, 0\ns_cbranch_scc1 {P}_x_spin\n{P}_x_ok:\n{xloads}\ns_branch {P}_xdone")
        A(ts("xgot"))
        def fm(k): return [f"s_waitcnt vmcnt({7-k})"] + [f"{MF} {R(64+8*k+4*h)}, {R(162-2*h)}, {R(128+4*k)}, {R(64+8*k+4*h)}" for h in range(2)]
        def fw(k):
            L = []
            for h in range(2):
                d = 64 + 8 * k + 4 * h
                L += [cvt(d, d), cvt(d + 1, d + 2), f"ds_write_b64 v8, {Pn(d)} offset:{4352*(k>>2) + 64*(k&3) + 32*h}"]
            return L
        emit(A, fm(0) + fm(1))
        for k in range(8):
            if k + 2 < 8: emit(A, fm(k + 2))
            emit(A, fw(k))
            if k in (3, 7):
                m = k >> 2
                for i in range(4): A(f"ds_read_b128 {R(168+16*m+4*i)}, v9 offset:{4352*m + 1088*i}")
        A("s_movk_i32 s29, 0x4000\ns_mov_b32 s30, 0x8000\ns_mov_b32 s31, 0xc000")
        for m in range(2):
            for i in range(4):
                A(f"s_waitcnt lgkmcnt({12 if m == 0 else 3-i})\nbuffer_store_dwordx4 {R(168+16*m+4*i)}, v21, s[52:55], {['0','s29','s30','s31'][i]} offen offset:{2048*m} {C.OUT_AUX}")
    stamp_out(A)
    A("s_endpgm")
    for s in slow: A("s_nop 7\n" + s)
    A(f"{P}_end:")

def build(path, **kw):
    for k, v in kw.items(): setattr(C, k, v)
    A = Asm(); name = NAME + "_kernel"
    A(f".text\n.globl {name}\n.p2align 8\n.type {name},@function\n{name}:")
    A("s_cmp_ge_u32 s2, 256\ns_cbranch_scc0 L_go\ns_endpgm\nL_go:")
    for r, o in ((60, 0), (8, 8), (68, 32), (16, 80), (40, 16), (44, 48), (72, 40), (48, 72)): A(f"s_load_dwordx2 s[{r}:{r+1}], s[0:1], {o}")
    C.names = []
    A("v_lshrrev_b32 v1, 6, v0\nv_and_b32 v2, 63, v0\nv_readfirstlane_b32 s20, v1\nv_lshrrev_b32 v24, 3, v2\nv_and_b32 v25, 7, v2")
    A(ts("RTstart")); A(ts("start"))
    A("s_bfe_u32 s23, s2, 0x20004\ns_bfe_u32 s3, s2, 0x10001\ns_lshl_b32 s29, s3, 2\ns_add_u32 s23, s23, s29")
    A("v_and_b32 v26, 6, v24\nv_xor_b32 v26, v25, v26\nv_lshlrev_b32 v17, 12, v24\nv_lshl_add_u32 v17, v26, 4, v17\ns_lshl_b32 s29, s20, 17\ns_add_u32 s29, s29, 32768\nv_add_u32 v16, s29, v17")
    A("s_lshr_b32 s38, s2, 6" if C.ROT else "s_mov_b32 s38, 0")
    A("s_lshl_b32 s80, s38, 15\ns_and_b32 s39, s38, 2\ns_add_u32 s38, s38, s39\ns_lshl_b32 s39, s20, 3\ns_add_u32 s38, s38, s39\ns_lshl_b32 s84, s38, 10")
    A("s_lshl_b32 s29, s23, 19\ns_lshl_b32 s39, s3, 10\ns_add_u32 s29, s29, s39\n" + srd(4, 18 * 32768))
    for i in range(1, 4): A(f"s_xor_b32 s{80+i}, s80, {i<<15}\ns_xor_b32 s{84+i}, s84, {((i&1) + 4*(i>>1)) << 10}")
    A("s_waitcnt lgkmcnt(0)"); A(ts("karg"))
    A("s_add_u32 s4, s60, s29\ns_addc_u32 s5, s61, 0\n" + sub64(4, 32768))
    xd = lambda i: f"s_mov_b32 m0, s{84+i}\nbuffer_load_dwordx4 v16, s[4:7], s{80+i} offen lds\nbuffer_load_dwordx4 v16, s[4:7], s{80+i} offen offset:2048 lds"
    for i in range(2): A(xd(i))
    A("v_lshrrev_b32 v3, 4, v2\nv_and_b32 v4, 15, v2\ns_lshr_b32 s21, s20, 1\ns_and_b32 s22, s20, 1\ns_mov_b32 s33, 0x3f803f80")
    A("s_lshr_b32 s24, s2, 6\ns_and_b32 s29, s2, 1\ns_lshl_b32 s29, s29, 2\ns_add_u32 s24, s24, s29\ns_and_b32 s29, s2, 4\ns_lshl_b32 s29, s29, 1\ns_add_u32 s24, s24, s29")
    A("s_bfe_u32 s25, s2, 0x20003\ns_and_b32 s29, s2, 6\ns_lshl_b32 s29, s29, 1\ns_add_u32 s25, s25, s29\ns_lshr_b32 s26, s2, 5")
    A("s_lshr_b32 s29, s2, 3\ns_xor_b32 s29, s29, s2\ns_and_b32 s35, s29, 1")
    A("s_cselect_b32 s30, 7, 11\ns_lshl_b32 s29, s35, 10\ns_add_u32 s36, s29, 6144\ns_lshl_b32 s29, s35, 8\ns_add_u32 s31, s29, 128")
    A("v_and_b32 v26, 2, v24\nv_xor_b32 v25, v25, v26")
    A("s_and_b32 s38, s23, 3" if C.ROT else "s_mov_b32 s38, 0")
    A("s_and_b32 s39, s38, 1\ns_lshl_b32 s29, s39, 2\nv_xor_b32 v25, s29, v25")
    A("s_lshl_b32 s29, s20, 1\ns_add_u32 s29, s29, s39\ns_lshl_b32 s29, s29, 3\nv_add_u32 v26, s29, v24\nv_mul_u32_u24 v26, s36, v26\nv_lshl_add_u32 v18, v25, 4, v26")
    A("s_xor_b32 s29, s29, 8\nv_add_u32 v26, s29, v24\nv_mul_u32_u24 v26, s36, v26\nv_xor_b32 v25, 4, v25\nv_lshl_add_u32 v19, v25, 4, v26")
    A("s_cmp_eq_u32 s35, 0\ns_cselect_b32 s8, s8, s68\ns_cselect_b32 s9, s9, s69\ns_mul_i32 s29, s3, s36\ns_lshl_b32 s29, s29, 9\ns_mul_i32 s31, s31, s24\ns_add_u32 s29, s29, s31\n" + add64(8, "s29"))
    A(f"s_lshl_b32 s10, s36, 6\ns_mov_b32 s11, 0x20000\ns_mul_i32 s27, s20, 7168\ns_add_u32 s27, s27, {WB}\ns_mul_i32 s39, s39, 3072\ns_and_b32 s38, s38, 2")
    for k in range(3):
        A(f"s_cmp_eq_u32 s38, 0\ns_cselect_b32 s29, {k}, {(k+2)%3}\ns_lshl_b32 s{94+k}, s29, s30\ns_lshl_b32 s29, s29, 10\ns_add_u32 s29, s29, s27")
        A(f"s_add_u32 s{88+k}, s29, s39\ns_mov_b32 m0, s{88+k}\ns_sub_u32 s29, s29, s39\nbuffer_load_dwordx4 v18, s[8:11], s{94+k} offen lds\ns_add_u32 s{91+k}, s29, 3072")
    C.common = C.names
    A("s_cmp_eq_u32 s35, 0\ns_cbranch_scc0 L_gel")
    role(A, True)
    A(".p2align 6\nL_gel:")
    role(A, False)
    A.lines = resolve_vm(A.lines)
    body = A.finish()
    hdr = "; @launch grid=(256,1,1) block=(256,1,1) lds=163840\n" + (f"; FINE0 {' '.join(C.allnames[True])}\n; FINE1 {' '.join(C.allnames[False])}\n" if C.FINE else "") + '.amdgcn_target "amdgcn-amd-amdhsa--gfx950"\n'
    open(path, "w").write(hdr + body + '.section .rodata,"a"\n.p2align 6\n' + kdesc(name))
    return A.npad

if __name__ == "__main__":
    print("pads", build("v3.s"))
    build("v3_fine.s", FINE=True)
    print({k: len(v) for k, v in C.allnames.items()})
```

```python
import re

TRANS = ("v_exp_", "v_log_", "v_rcp_", "v_rsq_", "v_sqrt_", "v_sin_", "v_cos_")

def regs_of(tok):
    tok = tok.strip()
    tok = tok.lstrip("-")
    if tok.startswith("abs("): tok = tok[4:-1]
    if tok.startswith("|"): tok = tok.strip("|")
    m = re.fullmatch(r"([vas])(\d+)", tok)
    if m: return {(m.group(1), int(m.group(2)))}
    m = re.fullmatch(r"([vas])\[(\d+):(\d+)\]", tok)
    if m: return {(m.group(1), i) for i in range(int(m.group(2)), int(m.group(3)) + 1)}
    if tok == "vcc": return {("s", 106), ("s", 107)}
    if tok == "m0": return {("s", 124)}
    if tok == "exec": return {("s", 126), ("s", 127)}
    return set()

class Ins:
    def __init__(self, text):
        self.text = text
        t = text.split(";")[0].strip()
        self.op = t.split()[0] if t else ""
        rest = t[len(self.op):].strip()
        ops = [o.strip() for o in rest.split(",")] if rest else []
        if ops:
            last = ops[-1].split()
            self.mods = " ".join(last[1:]); ops[-1] = last[0] if last else ""
        else: self.mods = ""
        ops2 = []
        for o in ops:
            o0 = o.split()[0] if o.split() else o
            ops2.append(o0)
        self.ops = ops2
        op = self.op
        self.is_label = t.endswith(":") or op.startswith(".")
        self.mfma = op.startswith("v_mfma")
        self.valu = op.startswith("v_") and not self.mfma
        self.trans = op.startswith(TRANS)
        self.vmem = op.startswith(("buffer_", "global_"))
        self.ds = op.startswith("ds_")
        self.salu = op.startswith("s_")
        self.dma = self.vmem and " lds" in (" " + t)
        R = [regs_of(o) for o in ops2]
        self.w = set(); self.r = set(); self.c = set(); self.ab = set(); self.stdata = set()
        if self.is_label: return
        if self.mfma:
            self.w = R[0]; self.ab = R[1] | R[2]; self.c = R[3]; self.r = self.ab | self.c
        elif self.valu:
            if op.startswith("v_permlane") and "swap" in op:
                self.w = R[0] | R[1]; self.r = R[0] | R[1]
            elif op.startswith("v_cmp"):
                self.w = R[0]; self.r = set().union(*R[1:])
            elif op.startswith(("v_add_co", "v_sub_co", "v_addc_co", "v_subb_co")):
                self.w = R[0] | R[1]; self.r = set().union(*R[2:])
            elif op.startswith("v_nop"): pass
            else:
                self.w = R[0]; self.r = set().union(*R[1:]) if len(R) > 1 else set()
                if op.startswith(("v_fmac", "v_dot2c", "v_pk_fmac")) or "_dpp" in op: self.r |= R[0]
        elif self.vmem:
            if self.dma: self.r = set().union(*R) | {("s", 124)}
            elif "load" in op: self.w = R[0]; self.r = set().union(*R[1:])
            elif "store" in op or "atomic" in op:
                self.r = set().union(*R)
                d = R[0] if op.startswith("buffer_") else R[1]
                if "x3" in op or "x4" in op: self.stdata = d
                if "atomic" in op and "sc0" in t: self.w = R[0]
        elif self.ds:
            if "read" in op or "permute" in op or "swizzle" in op: self.w = R[0]; self.r = set().union(*R[1:])
            else: self.r = set().union(*R)
        elif self.salu:
            if op.startswith(("s_cmp", "s_waitcnt", "s_barrier", "s_nop", "s_cbranch", "s_branch", "s_endpgm", "s_sleep", "s_setprio")):
                self.r = set().union(*R) if R else set()
            else:
                self.w = R[0] if R else set(); self.r = set().union(*R[1:]) if len(R) > 1 else set()
    def states(self):
        if self.is_label: return 0
        if self.op == "s_nop": return int(self.ops[0]) + 1
        return 1

def vg(s): return {x for x in s if x[0] in "va"}
def sg(s): return {x for x in s if x[0] == "s"}

def need(p, c):
    n = 0
    if p.valu:
        if c.mfma and vg(p.w) & c.r: n = max(n, 2)
        if c.valu:
            if p.trans and vg(p.w) & c.r: n = max(n, 1)
            if (c.op.startswith("v_permlane") or "_dpp" in c.op) and vg(p.w) & c.r: n = max(n, 2)
            if c.op.startswith(("v_readlane", "v_readfirstlane")) and vg(p.w) & c.r: n = max(n, 1)
            if sg(p.w) & c.r: n = max(n, 4 if c.op.startswith(("v_readlane", "v_writelane")) else 2)
            if "sdwa" in p.op and vg(p.w) & (c.r | c.w): n = max(n, 1)
        if p.op.startswith("v_dot") and vg(p.w) & (c.r | c.w) and not (c.op == p.op and p.w == c.w): n = max(n, 3)
        if c.vmem and sg(p.w) & c.r: n = max(n, 5)
        if c.salu and sg(p.w) & c.r: n = max(n, 2)
    if p.mfma:
        big = "32x32" in p.op
        if c.mfma:
            if p.w & c.ab: n = max(n, 12 if big else 8)
            if p.w & c.c and p.w != c.c: n = max(n, 10 if big else 6)
            if p.w & c.w and p.w != c.c: n = max(n, 10 if big else 6)
        elif c.valu or c.vmem or c.ds:
            if p.w & (c.r | c.w): n = max(n, 12 if big else 8)
            if c.valu and p.c & c.w: n = max(n, 7 if big else 3)
    if p.stdata and p.stdata & c.w: n = max(n, 2)
    if p.salu and ("s", 124) in p.w and c.dma: n = max(n, 1)
    return n

class Asm:
    def __init__(self): self.lines = []
    def __call__(self, text):
        for l in text.split("\n"):
            l = l.strip()
            if l: self.lines.append(l)
    def finish(self, verbose=False):
        out = []; hist = []; npad = 0
        for l in self.lines:
            if l.startswith(";"): out.append(l); continue
            ins = Ins(l)
            if not ins.is_label:
                dist = 0; pad = 0
                for p in reversed(hist):
                    if dist >= 12: break
                    k = need(p, ins) - dist
                    if k > pad: pad = k
                    dist += p.states()
                if pad > 0:
                    nop = Ins(f"s_nop {pad-1}"); out.append("  " + nop.text); hist.append(nop); npad += pad
                    if verbose: print("pad", pad, "before", l)
                hist.append(ins)
                if len(hist) > 40: hist = hist[-20:]
                out.append("  " + l)
            else: out.append(l)
        self.npad = npad
        return "\n".join(out) + "\n"

def kdesc(name, vgpr=512, acc=256, sgpr=102):
    return f""".amdhsa_kernel {name}
  .amdhsa_next_free_vgpr {vgpr}
  .amdhsa_next_free_sgpr {sgpr}
  .amdhsa_accum_offset {acc}
  .amdhsa_group_segment_fixed_size 0
  .amdhsa_kernarg_size 88
  .amdhsa_user_sgpr_count 2
  .amdhsa_user_sgpr_kernarg_segment_ptr 1
  .amdhsa_system_sgpr_workgroup_id_x 1
  .amdhsa_float_denorm_mode_32 3
.end_amdhsa_kernel
"""

def f32(x):
    import struct
    return "0x%08x" % struct.unpack("<I", struct.pack("<f", x))[0]

def interleave(main, side, start=0, end=None, per_gap=1):
    n = len(main)
    if end is None: end = n
    slots = [[] for _ in range(n)]
    m = len(side)
    for i, s in enumerate(side):
        pos = start + (i * (end - start)) // max(m, 1)
        slots[min(pos, n - 1)].append(s)
    out = []
    for i, x in enumerate(main):
        out.append(x); out.extend(slots[i])
    return out

def resolve_vm(lines):
    out = []; hist = []
    for l in lines:
        if l.startswith("VMRESET"): hist = []; continue
        if l.startswith("VMFAKE"):
            _, tg, n = l.split(); hist += [{tg}] * int(n); continue
        if l.startswith("WAITVM"):
            body = l[6:].split("|"); tags = body[0].split(); extra = body[1].strip() if len(body) > 1 else ""
            n = 0; found = set(); best = None
            for tg in reversed(hist):
                hit = [t for t in tags if t in tg]
                if hit and best is None: best = n
                found.update(hit)
                if "cond" not in tg: n += 1
            missing = set(tags) - found
            assert not missing, ("WAITVM tag never issued", missing)
            best = min(best, 63)
            out.append(f"s_waitcnt vmcnt({best}) {extra}".strip()); continue
        if l.startswith(("buffer_", "global_")):
            tg = set(re.findall(r"@(\S+)", l.split(";", 1)[1])) if ";" in l else set()
            hist.append(tg)
            l = l.split(";")[0].strip()
        out.append(l)
    return out

def place(M, streams):
    n = len(M); slots = [[] for _ in range(n)]
    for items, start, end in streams:
        for i, it in enumerate(items):
            pos = start + (i * (end - start)) // max(len(items), 1)
            if isinstance(it, str): it = (it,)
            for k, x in enumerate(it):
                if x:
                    assert pos + k < n, (pos, k, n)
                    slots[pos + k].append(x)
    out = []
    for i in range(n):
        out.append(M[i]); out.extend(slots[i])
    return out

import subprocess, os, tempfile
def inst_sizes(text):
    d = tempfile.mkdtemp(); s = os.path.join(d, "a.s"); o = os.path.join(d, "a.o")
    open(s, "w").write(text)
    subprocess.run(["clang", "-x", "assembler", "-target", "amdgcn-amd-amdhsa", "-mcpu=gfx950", "-c", s, "-o", o], check=True)
    out = subprocess.run(["llvm-objdump", "-d", "--mcpu=gfx950", o], capture_output=True, text=True, check=True).stdout
    L = []
    for l in out.split("\n"):
        m = re.search(r"//\s*([0-9A-F]{12}):\s*((?:[0-9A-F]{8}\s*)+)", l)
        if m: L.append((int(m.group(1), 16), 4 * len(m.group(2).split())))
    return L

def add_pads(hdr, body, regions, nchain=4):
    lines = body.split("\n")
    stub = "\n".join(f"{p}_pad{k}:" for _, _, p, _ in regions for k in range(1, 17))
    noalign = "\n".join(l for l in lines if not l.startswith(".p2align"))
    sz = [s for _, s in inst_sizes(hdr + noalign + "\n" + stub + "\n")]
    out = []; i = 0; cur = None; off = 0; npad = {}; unsafe = False; pend = []
    for l in lines:
        t = l.strip()
        isins = l.startswith("  ") and t
        for r in regions:
            if t == r[0] + ":": cur = r; off = 0; npad[r[2]] = 0
            if t == r[1] + ":": cur = None
        if isins:
            if cur and not unsafe and off >= 4096 * (npad[cur[2]] + 1):
                assert off - 4096 * (npad[cur[2]] + 1) < 56, off
                npad[cur[2]] += 1; out.append(f"{cur[2]}_pad{npad[cur[2]]}:"); out.append(("PAD", cur, npad[cur[2]])); off += 4
            if t.startswith(("s_mov_b32 exec_lo, s", "s_mov_b64 exec, 0")) and t != "s_mov_b64 exec, 0x101": unsafe = True
            if t.startswith("s_mov_b64 exec, -1"): unsafe = False
            off += sz[i]; i += 1
        out.append(l)
    assert i == len(sz), (i, len(sz))
    res = []
    for l in out:
        if isinstance(l, tuple):
            _, r, k = l
            res.append(f"  s_cbranch_execz {r[2]+'_pad'+str(k+4) if 5 <= k <= 8 and k + 4 <= npad[r[2]] else r[3] + str(0 if k < 5 else (1 if k < 13 else 2))}")
        else:
            m = re.fullmatch(r"(\s*s_c?branch\S*) (\w+)_pad(\d+)", l)
            if m and int(m.group(3)) > npad[m.group(2)]: l = f"{m.group(1)} {m.group(2)}_ret{2 if int(m.group(3)) > 12 else 1}"
            res.append(l)
    assert all(n <= 16 for n in npad.values()), npad
    return "\n".join(res), npad
```

```python
import sys, math
from asmlib import *
NAME = "parallel_sum__sliding_local_dilated__dense_activation_gelu__prompt"
MB = 1 << 20
WS_A2 = 8 * MB; WS_XCH = 32 * MB; WS_ST = 48 * MB
O_ST, O_CS, O_FL, O_XF = 0, 16384, 262144, 524288
A2S = 144 * 1024
class C:
    FINE = False; PROBE = None; names = []; allnames = {}
    NFL = 0; A_AUX = "sc1"; ST_AUX = "sc1"; OUT_AUX = "sc1"; PF = True; CPF = True; CPH = False; PAD = True; ROT = True; PRE = 0; STJ = (1, 1); PF0 = (6, 4); NOROT = False
    SPIN = 1 << 16; DA = 6; XCHK = 2; BAR2 = False; EXP = 0; XR = 1; SM = 6.0
XS = lambda s: s * 34816
WB = 69632
TB = 155648
T_CS, T_B1, T_B2 = TB + 2560, TB + 3584, TB + 4608
NB = 9
BS = lambda j: ((j + 6) % NB) * 16384
R = lambda d: f"v[{d}:{d+3}]"
aR = lambda d: f"a[{d}:{d+3}]"
Pn = lambda r: f"v[{r}:{r+1}]"
MF = "v_mfma_f32_16x16x32_bf16"
cvt = lambda d, s: f"v_cvt_pk_bf16_f32 v{d}, v{s}, v{s+1}"
srd = lambda r, n: f"s_mov_b32 s{r+2}, {n}\ns_mov_b32 s{r+3}, 0x20000"
add64 = lambda r, x: f"s_add_u32 s{r}, s{r}, {x}\ns_addc_u32 s{r+1}, s{r+1}, 0"
sub64 = lambda r, x: f"s_sub_u32 s{r}, s{r}, {x}\ns_subb_u32 s{r+1}, s{r+1}, 0"

def ts(name):
    if not C.FINE or (C.FINE == 2 and name not in ("RTstart", "RTend", "x")): return ""
    i = len(C.names); C.names.append(name)
    t = f"s_waitcnt lgkmcnt(0)\nv_writelane_b32 v1, s100, {i-1}\n" if i else ""
    return t + ("s_memrealtime s[100:101]" if name.startswith("RT") else "s_memtime s[100:101]")
def stamp_out(A):
    if not C.FINE: return
    A("s_waitcnt vmcnt(0)"); A(ts("end")); A(ts("RTend")); A(ts("x")); C.names.pop()
    if C.PROBE:
        a, b, wg = C.PROBE; C.uid = getattr(C, "uid", 0) + 1; u = C.uid
        if a in C.names and b in C.names:
            A(f"s_waitcnt lgkmcnt(0)\ns_cmp_lg_u32 s37, {wg*4}\ns_cbranch_scc1 Lpr{u}e\nv_readlane_b32 s4, v1, {C.names.index(b)}\nv_readlane_b32 s5, v1, {C.names.index(a)}\ns_memrealtime s[8:9]\ns_sub_u32 s4, s4, s5\n{'s_lshl_b32 s4, s4, 1' if a.startswith('RT') else 's_lshr_b32 s4, s4, 2'}\ns_add_u32 s4, s4, 1000\ns_min_u32 s4, s4, 100000")
            A(f"Lpr{u}:\ns_memrealtime s[6:7]\ns_waitcnt lgkmcnt(0)\ns_sub_u32 s6, s6, s8\ns_cmp_lt_u32 s6, s4\ns_cbranch_scc1 Lpr{u}\nLpr{u}e:")
        return
    A("s_load_dwordx2 s[4:5], s[0:1], 80\ns_waitcnt lgkmcnt(0)\n" + add64(4, WS_ST + 0x40000))
    A("s_lshl_b32 s6, s2, 2\ns_add_u32 s6, s6, s20\ns_lshl_b32 s6, s6, 8\nv_lshl_add_u32 v0, v2, 2, s6\nglobal_store_dword v0, v1, s[4:5]")
def emit(A, L):
    for d in L:
        if isinstance(d, str): A(d)
        else:
            for x in d:
                if x: A(x)
def lines(s): return [l for l in s.split("\n") if l.strip()]

def spin(slow, name, loads, test):
    slow.append(f"{name}_slow:\ns_mov_b32 s39, {C.SPIN}\n{name}_spin:\ns_sleep 8\n{loads}\ns_waitcnt vmcnt(0)\n{test}\ns_cbranch_vccz {name}_back\n"
                f"s_sub_u32 s39, s39, 1\ns_cmp_lg_u32 s39, 0\ns_cbranch_scc1 {name}_spin\ns_branch {name}_back")
    return f"{test}\ns_cbranch_vccnz {name}_slow\n{name}_back:"

def g2_steps(att):
    f = C.NFL // 2
    H3, H3n, O1, H1 = (3, 24), (0, 24), (1, 8), (1, 4)
    common = [("h", 3 * p, H3 if p >= 4 or f == 0 else H3n, 1, p & 3) for p in range(f, 8)] + [("h", 3 * p + l, H3, 1 + l, p & 3) for l in (1, 2) for p in range(8)] \
           + [("o", p, O1, 0, p & 3) for p in range(8)] + [("h", 48 + u, H1, 0, u) for u in range(4)]
    if att: return common
    return [("h", 3 * (p + 8 * s), None, 1, 0) for p in range(f) for s in range(2)] + common

def role(A, att):
    P = "La" if att else "Lg"
    slow = []
    stride = 6144 if att else 7168
    nblk = 7 if att else 6
    A("VMRESET")
    C.names = list(C.common); C.allnames[att] = C.names
    A("VMFAKE x0 4\nVMFAKE w0 3")
    def dma_x(j):
        L = []
        for i in range(4):
            for b0 in range(2):
                L.append((f"s_add_u32 m0, s{84+i}, {XS(j%2)}" if b0 == 0 else None, f"buffer_load_dwordx4 v16, s[4:7], s{80+i} offen offset:{b0*2048} lds ; @x{j}"))
        if att: L.append((f"s_add_u32 m0, s28, {XS(j%2)}", f"buffer_load_dwordx4 v17, s[4:7], 0 offen lds ; @x{j}"))
        L[-1] += (add64(4, 128) + ("\n" + sub64(4, "s64") if j == 7 else ""),)
        return L
    def dma_w(j):
        L = [(f"s_add_u32 m0, s{88+k}, {(j%3)*28672}", f"buffer_load_dwordx4 v{18+k//3}, s[8:11], s{94+k%3} offen lds ; @w{j}") for k in range(6)]
        L[-1] += (add64(8, 64 * stride) + ("\n" + sub64(8, "s65") if j == 7 else ""),)
        if att: L.append((f"s_add_u32 m0, s27, {(j%3)*28672 + 6144}", f"buffer_load_dwordx4 v20, s[68:71], 0 offen lds ; @w{j}", add64(68, 64 * 7168) + ("\n" + sub64(68, "s97") if j == 7 else "")))
        return L
    A(f".p2align 12\n{P}_base:\ns_load_dwordx2 s[52:53], s[0:1], {64 if att else 56}")
    A("v_lshrrev_b32 v5, 5, v2\nv_and_b32 v6, 3, v2")
    if att:
        A("s_lshl_b32 s28, s22, 10\ns_lshl_b32 s29, s22, 11\ns_cmp_eq_u32 s23, 0\ns_cselect_b32 s30, 32768, 0\ns_add_u32 s29, s29, s30\nv_add_u32 v17, s29, v17\ns_add_u32 s28, s28, 32768")
        A("v_lshrrev_b32 v24, 2, v2\nv_xor_b32 v25, v5, v6\ns_lshl_b32 s29, s20, 4\nv_add_u32 v24, s29, v24\nv_mul_u32_u24 v24, 7168, v24\nv_lshl_add_u32 v20, v25, 4, v24")
        A(f"s_mul_i32 s39, s3, {512*7168}\ns_lshl_b32 s38, s24, 6\ns_add_u32 s39, s39, s38\ns_add_u32 s39, s39, 6144\n" + add64(68, "s39") + "\n" + srd(68, 64 * 7168))
    A(f"s_mov_b32 s78, {P}_end-{P}_base")
    A("s_lshr_b32 s29, s2, 4\ns_lshl_b32 s29, s29, 2\ns_add_u32 s29, s29, s20\ns_lshl_b32 s29, s29, 10\nv_and_b32 v24, 7, v2\nv_lshl_add_u32 v23, v24, 7, s29")
    if C.CPF: A("buffer_load_dword a141, v23, s[76:79], 0 offen")
    A(f"s_lshl_b32 s64, s3, 11\ns_mul_i32 s65, s3, {1024*stride}\ns_mul_i32 s97, s3, {1024*7168}")
    A("v_and_b32 v27, 6, v4\nv_xor_b32 v27, v27, v3\nv_lshlrev_b32 v27, 4, v27\nv_lshl_add_u32 v28, v4, 7, v27")
    A("s_lshl_b32 s29, s21, 14\nv_add_u32 v8, s29, v28\nv_xor_b32 v9, 64, v8")
    if att:
        A("v_add_u32 v21, 32768, v28\nv_or_b32 v28, 0x400, v28\nv_lshrrev_b32 v27, 3, v4\nv_lshl_add_u32 v28, v27, 11, v28\nv_add_u32 v28, 12288, v28")
        A("s_cmp_eq_u32 s21, 0\ns_cselect_b64 vcc, -1, 0\nv_cndmask_b32 v21, v28, v21, vcc\nv_xor_b32 v22, 64, v21")
    xo_base = "s_lshl_b32 s29, s25, 2\ns_add_u32 s29, s29, s20\ns_lshl_b32 s29, s29, 16\ns_lshl_b32 s39, s26, 8\ns_add_u32 s29, s29, s39"
    if not att: A(xo_base + "\nv_lshl_add_u32 v21, v4, 12, s29\nv_lshl_add_u32 v21, v3, 4, v21")
    A("v_bfe_u32 v27, v2, 2, 2\nv_and_b32 v28, 1, v3")
    A(f"v_mul_u32_u24 v29, 7168, v5\nv_add_u32 v29, {WB}, v29")
    A("v_mul_u32_u24 v23, 3072, v28\nv_add_u32 v23, v29, v23\nv_lshl_add_u32 v23, v27, 7, v23\nv_lshl_add_u32 v23, v6, 3, v23")
    A("v_lshrrev_b32 v24, 1, v27\nv_lshl_or_b32 v24, v28, 1, v24\ns_lshl_b32 s29, s22, 1\nv_xor_b32 v24, s29, v24")
    A("v_lshl_add_u32 v10, v24, 5, v23\nv_xor_b32 v11, 32, v10\nv_add_u32 v13, 57344, v10\nv_add_u32 v14, 57344, v11")
    A("s_and_b32 s38, s23, 3\ns_lshl_b32 s38, s38, 1\ns_add_u32 s38, s38, s21")
    A("s_min_u32 s39, s38, 5\ns_and_b32 s29, s39, 1\ns_lshl_b32 s29, s29, 5\nv_xor_b32 v23, s29, v10\ns_lshr_b32 s29, s39, 1\ns_lshl_b32 s29, s29, 10\nv_add_u32 v23, s29, v23\nv_add_u32 v24, 512, v23")
    A("s_and_b32 s29, s39, 6\ns_add_u32 s29, s29, s22\ns_lshl_b32 s29, s29, 1\ns_and_b32 s39, s39, 1\ns_add_u32 s29, s29, s39\ns_lshl_b32 s29, s29, 4\nv_add_u32 v31, s29, v4")
    if att:
        A("v_lshl_add_u32 v25, v28, 3, v27\nv_lshl_add_u32 v25, v25, 6, v29\nv_add_u32 v25, 6144, v25")
        A("v_and_b32 v26, 2, v6\nv_add_u32 v26, s22, v26\nv_xor_b32 v26, v26, v28\nv_lshl_add_u32 v25, v26, 4, v25")
        A("v_and_b32 v26, 1, v6\nv_lshl_add_u32 v12, v26, 3, v25\nv_add_u32 v15, 57344, v12\nv_add_u32 v25, 256, v12")
        A("v_and_b32 v26, 8, v4\nv_add_u32 v26, v26, v4\ns_lshl_b32 s29, s22, 3\ns_add_u32 s29, s29, 192\nv_add_u32 v26, s29, v26")
        A("s_cmp_ge_u32 s38, 6\ns_cselect_b64 vcc, -1, 0\nv_cndmask_b32 v23, v23, v12, vcc\nv_cndmask_b32 v24, v24, v25, vcc\nv_cndmask_b32 v31, v31, v26, vcc")
    A("v_add_u32 v25, 57344, v23\nv_add_u32 v26, 57344, v24")
    A(f"s_lshl_b32 s66, s24, 12\ns_add_u32 s66, s66, {O_CS + (0 if att else 65536)}\ns_lshr_b32 s29, s23, 2\ns_lshl_b32 s29, s29, 11\ns_add_u32 s29, s29, s66\nv_lshl_add_u32 v31, v31, 3, s29")
    A(f"s_cmp_lt_u32 s38, {nblk}\ns_cselect_b32 s38, 0xffff, 0")
    A("s_lshl_b32 s29, s23, 1\ns_add_u32 s29, s29, s21\ns_lshl_b32 s29, s29, 8\ns_lshl_b32 s39, s24, 1\ns_add_u32 s39, s39, s22\ns_lshl_b32 s39, s39, 2\ns_add_u32 s29, s29, s39")
    A(f"s_lshr_b32 s67, s2, 1\ns_lshl_b32 s67, s67, 2\ns_add_u32 s67, s67, s20\ns_lshl_b32 s67, s67, 7\ns_add_u32 s67, s67, {O_XF}")
    if att: A(f"s_add_u32 s29, s29, {O_FL}\nv_mov_b32 v29, s29")
    else: A(f"s_add_u32 s29, s29, {O_FL + 4096}\nv_lshl_add_u32 v29, v6, 12, s29\nv_mov_b32 v28, s67\nv_cmp_eq_u32 vcc, 3, v6\nv_cndmask_b32 v29, v29, v28, vcc")
    A("s_mov_b32 s12, s16\ns_mov_b32 s13, s17\ns_mov_b32 s56, s16\ns_mov_b32 s57, s17")
    for r, n in ((16, MB), (40, 2 * MB), (44, 7 * MB), (48, 256), (52, 4 * MB if att else 2048), (60, 4 * MB), (72, 7168), (56, 32768)): A(srd(r, n))
    A(f"s_lshr_b32 s29, s2, 1\ns_lshl_b32 s29, s29, 15\ns_add_u32 s29, s29, {WS_XCH}\n" + add64(56, "s29"))
    A("s_lshl_b32 s29, s2, 2\ns_add_u32 s37, s29, s20\ns_lshl_b32 s29, s37, 1\nv_lshrrev_b32 v30, 3, v4\nv_add_u32 v30, s29, v30\nv_and_b32 v27, 7, v2\nv_lshl_add_u32 v27, v3, 3, v27\nv_lshlrev_b32 v27, 4, v27\nv_lshl_add_u32 v27, v30, 11, v27")
    A("v_lshlrev_b32 v7, 4, v2\nv_mov_b32 v35, 1\nv_mov_b32 v34, 0\nv_mov_b32 v32, 0\nv_mov_b32 v33, 0\nv_lshlrev_b32 v30, 3, v30\ns_lshl_b32 s29, s20, 4\nv_add_lshl_u32 v6, s29, v4, 7")
    for i in range(4): A(f"v_accvgpr_write_b32 a{136+i}, s33")
    A("s_lshl_b32 s99, s20, 7\ns_waitcnt lgkmcnt(0)")
    A(ts("setup"))
    def pads(c):
        if not C.PAD: return
        k0 = [1, 5, 13][c]
        A("s_mov_b64 exec, 0")
        for w in range(3): A(f"s_cmp_eq_u32 s20, {w}\ns_cbranch_scc1 {P}_pad{k0+w}")
        A(f"s_branch {P}_pad{k0+3}\n{P}_ret{c}:\ns_mov_b64 exec, -1")
    emit(A, dma_w(0)[3:] + dma_x(0)[4:])
    stl = [(None, f"buffer_load_dwordx4 {aR(144+4*i)}, v27, s[60:63], 0 offen offset:{512*i} ; @st") for i in range(4)]
    emit(A, dma_x(1))
    A(ts("issued")); pads(0)

    acc = lambda m, n: 64 + 4 * (6 * m + n)
    xf = lambda p, i: aR(64 * p + 4 * i)
    wf = lambda p, n: aR(64 * p + 32 + 4 * n)
    def reads(j, kk):
        p = kk; L = []; u = j % 3; hiw = u == 2
        wreg = 13 if hiw else 10; wo = (0 if hiw else u * 28672) + kk * 14336
        def wr(n):
            b = 64 * p + 32 + 4 * n
            if n < 6: return [f"ds_read_b64_tr_b16 a[{b+2*h}:{b+2*h+1}], v{wreg+(n&1)} offset:{wo + h*512 + (n>>1)*1024}" for h in range(2)]
            return [f"ds_read_b64_tr_b16 a[{b+2*h}:{b+2*h+1}], v{wreg+2} offset:{wo + h*256}" for h in range(2)]
        xr = lambda i: f"ds_read_b128 {xf(p,i)}, v{8+kk} offset:{XS(j%2) + i*2048}"
        L.append(xr(0))
        for n in range(nblk): L += wr(n)
        for i in range(1, 8): L.append(xr(i))
        if att: L.append(f"ds_read_b128 {wf(p,7)}, v{21+kk} offset:{XS(j%2)}")
        if j < 8: L += [f"ds_read_b64_tr_b16 a[{128+4*p+2*h}:{129+4*p+2*h}], v{(25 if hiw else 23)+h} offset:{wo}" for h in range(2)]
        return L
    def mfmas(j, p):
        first = j == 0 and p == 0; L = []
        for m in range(8):
            for n in (range(nblk) if m % 2 == 0 else reversed(range(nblk))):
                d = R(acc(m, n)) if n < 6 else aR(176 + 4 * m)
                a, b = wf(p, n), xf(p, m)
                if att and n in (4, 5): a, b = b, a
                L.append(f"{MF} {d}, {a}, {b}, {'0' if first else d}")
        if att:
            for i in range(4):
                a, b = wf(p, 2 + i), wf(p, 7); d = R(48 + 4 * i)
                if i >= 2: a, b = b, a
                L.append(f"{MF} {d}, {a}, {b}, {'0' if first else d}")
        if j < 8: L.append(f"{MF} v[36:39], a[136:139], {aR(128+4*p)}, {'0' if first else 'v[36:39]'}")
        return L
    def pf(i):
        if not C.PF or i > 8: return []
        if i < 7: return [(f"s_mul_i32 s29, s37, 7168\ns_add_u32 s29, s29, {1024*i}", "buffer_load_dwordx4 a[140:143], v7, s[44:47], s29 offen")]
        return [("s_lshl_b32 s29, s37, 11", f"buffer_load_dwordx4 a[140:143], v7, s[40:43], s29 offen offset:{1024*(i-7)}")]
    cpf = lambda lab, k=0, dst="a141": [(f"s_mov_b32 s29, {lab}-{P}_base+{8192*k}", f"buffer_load_dword {dst}, v6, s[76:79], s29 offen")] if C.CPF else []
    stm = []
    for i in range(4):
        stm += [f"{MF} v[40:43], a[136:139], {aR(144+4*i)}, {'v[40:43]' if i else '0'}", f"{MF} v[44:47], {aR(144+4*i)}, {aR(144+4*i)}, {'v[44:47]' if i else '0'}"]
    dpp = lambda v, m: f"v_add_f32_dpp v{v}, v{v}, v{v} {m} row_mask:0xf bank_mask:0xf"
    rnd = lambda v: [f"v_cvt_pk_bf16_f32 v{v}, v{v}, v{v}", f"v_and_b32 v{v}, 0xffff0000, v{v}"]
    st1 = ["v_lshlrev_b32 v41, 2, v3", "v_sub_u32 v41, v4, v41"]
    for q in range(4): st1 += [f"v_cmp_eq_u32 vcc, {q}, v41", dpp(40, ["quad_perm:[1,0,3,2]", "quad_perm:[2,3,0,1]", "row_half_mirror"][q]) if q < 3 else f"v_mul_f32 v40, {f32(1/1024)}, v40",
                               f"v_cndmask_b32 v42, {'v42' if q else '0'}, v{44+q}, vcc"]
    st1 += [dpp(42, "quad_perm:[1,0,3,2]"), "v_mul_f32 v41, v40, v40", dpp(42, "quad_perm:[2,3,0,1]"), rnd(40)[0], dpp(42, "row_half_mirror"), rnd(40)[1]]
    for sw in (16, 32): st1 += ["v_mov_b32 v43, v42", f"v_permlane{sw}_swap_b32 v42, v43", "v_add_f32 v42, v42, v43"]
    st2 = [f"v_mov_b32 v43, {f32(1/1024)}", "v_fma_f32 v44, v42, v43, -v41", "v_max_f32 v44, 0, v44"] + rnd(44) + [f"v_add_f32 v44, {f32(1e-5)}, v44"] + rnd(44) + ["v_sqrt_f32 v44, v44"] + rnd(44) + ["v_rcp_f32 v44, v44", "v_mul_f32 v45, v44, v40"]
    cph = lambda dst="a141": [("v_lshl_add_u32 v33, v4, 12, s99", f"buffer_load_dword {dst}, v33, s[76:79], 0 offen")] if C.CPH else []

    steps = g2_steps(att); NK = len(steps); DA = C.DA
    cls = {}
    def off(reg, tab, unit, j, imm):
        kind, q, dc, _, sl = steps[j]
        if dc is None: return f"s_mov_b32 s{reg}, {imm}"
        t = ""
        if cls.get((tab, sl)) != dc:
            cls[(tab, sl)] = dc
            t = f"s_mul_i32 s{tab+sl}, s{88+sl}, {dc[0]*unit}\ns_mul_i32 s{reg}, s92, {dc[1]*unit}\ns_add_u32 s{tab+sl}, s{tab+sl}, s{reg}\n"
        return t + f"s_add_u32 s{reg}, s{tab+sl}, {imm}"
    def lda(j):
        kind, q = steps[j][:2]; ks = 2 * q + (0 if kind == "o" else 32); L = []
        for b in range(2):
            so = off(30, 80, 2048, j, ks * 1024 + b * A2S)
            for kk in range(2):
                d = 64 + 16 * (j % DA) + 8 * kk + 4 * b
                L.append((so if kk == 0 else None, f"buffer_load_dwordx4 {aR(d)}, v16, s[4:7], s30 offen offset:{kk*1024} {C.A_AUX} ; @a{j}"))
        return L
    def dma_b(j):
        kind, q = steps[j][:2]; L = []; sr = "s[40:43]" if kind == "o" else "s[44:47]"
        for hi in range(2):
            so = off(31, 68, 131072, j, q * 131072 + hi * 16384)
            for ln in range(2):
                L.append((f"s_add_u32 m0, s98, {BS(j) + hi*2048 + ln*896}" + ("\n" + so if ln == 0 else ""),
                          f"buffer_load_dwordx4 v19, {sr}, s31 offen offset:{128*ln} lds ; @b{j}"))
        return L
    setup_b = ["s_lshl_b32 s98, s20, 12", "v_lshrrev_b32 v18, 3, v2", "v_and_b32 v19, 7, v2", "v_and_b32 v20, 6, v18", "v_xor_b32 v19, v19, v20",
               "s_lshl_b32 s29, s20, 4\nv_add_u32 v18, s29, v18", "s_lshl_b32 s29, s26, 8\nv_lshl_add_u32 v18, v18, 11, s29", "v_lshl_add_u32 v19, v19, 4, v18",
               f"s_lshl_b32 s29, s25, 8\ns_add_u32 s29, s29, {O_FL}\nv_and_b32 v20, 31, v2", "v_lshl_add_u32 v20, v20, 2, s29"]
    setup_d = ["s_and_b32 s92, s2, 1\ns_bfe_u32 s29, s2, 0x10004\ns_xor_b32 s29, s29, s26", f"s_and_b32 s88, s29, {C.XR}\ns_xor_b32 s89, s88, 1\ns_sub_u32 s89, s89, 1",
               "s_xor_b32 s90, s88, 2\ns_sub_u32 s90, s90, 2", "s_xor_b32 s91, s88, 3\ns_sub_u32 s91, s91, 3"]
    setup_a = [f"s_mul_i32 s29, s20, {2*A2S}\nv_lshl_add_u32 v16, v2, 4, s29",
               f"s_mul_i32 s29, s25, {8*A2S}\ns_add_u32 s29, s29, {WS_A2}", f"s_add_u32 s4, s12, s29\ns_addc_u32 s5, s13, 0\ns_mov_b32 s6, {8*A2S}",
               f"s_lshl_b32 s29, s23, 1\ns_add_u32 s29, s29, s21\ns_mul_i32 s29, s29, {8*A2S}", f"s_add_u32 s29, s29, {WS_A2}\n" + add64(12, "s29"), srd(12, 8 * A2S),
               "s_movk_i32 s34, 0x1000\ns_movk_i32 s32, 0x2000\ns_movk_i32 s28, 0x3000"]
    c0 = -2 * math.sqrt(2 / math.pi) * math.log2(math.e); c1 = c0 * 0.044715
    sc = 32 ** -0.5 * math.log2(math.e)
    rowp = lambda dst, a, off: f"ds_read_b32 v{dst}, v{a} offset:{off}\nds_read_b32 v{dst+1}, v{a} offset:{off+1280}"
    colreads = lambda ln: [f"ds_read_b128 {R(56+4*c)}, v31 offset:{256*ln+64*c}\nds_read_b128 {R(8+4*c)}, v31 offset:{1024+256*ln+64*c}" for c in range(2)]
    epi = [f"s_lshl_b32 s29, s21, 9\ns_add_u32 s29, s29, {TB}\nv_lshl_add_u32 v30, v4, 2, s29", f"s_mov_b32 s64, {f32(c1)}\ns_mov_b32 s65, {f32(c1)}\nv_mov_b32 v0, {f32(c0)}"]
    if not att:
        epi += [rowp(40 + 2 * m, 30, 64 * m) for m in range(8)]
        epi += [f"s_lshl_b32 s29, s22, 7\ns_add_u32 s29, s29, {T_CS}\nv_lshl_add_u32 v31, v3, 4, s29"] + colreads(0)
        epi += ["s_mul_i32 s29, s24, 6\ns_add_u32 s29, s29, s22\ns_add_u32 s29, s29, 32", "s_lshl_b32 s29, s29, 10\nv_lshl_add_u32 v18, v2, 4, s29"]
    else:
        epi += ["v_lshl_add_u32 v31, v3, 4, s29", f"s_lshl_b32 s29, s22, 7\ns_add_u32 s29, s29, {T_CS}\nv_lshl_add_u32 v26, v3, 4, s29", "v_lshl_add_u32 v27, v4, 2, s29"]
        epi += [f"ds_read_b128 {R([8,12,40,44][n])}, v26 offset:{256*(n>>1)+64*(n&1)}" for n in range(4)]
        epi += ["ds_read_b32 v36, v27 offset:512\nds_read_b32 v37, v27 offset:576", rowp(22, 30, 0)]
        epi += lines("v_or_b32 v28, 8, v4\nv_and_b32 v32, 8, v4\nv_lshl_add_u32 v28, v32, 1, v28\nv_add_u32 v28, 96, v28\nv_add_u32 v32, 0x100, v4")
        epi += [f"s_cmp_eq_u32 s21, 0\ns_cselect_b64 vcc, -1, 0\ns_mov_b32 s29, {TB}", "v_cndmask_b32 v28, v28, v32, vcc", "v_lshl_add_u32 v28, v28, 2, s29"]
        epi += lines("v_and_b32 v32, 1, v3\nv_lshlrev_b32 v21, 4, v32\nv_lshl_add_u32 v32, v5, 2, v32\nv_add_u32 v32, 26, v32\nv_add_u32 v34, 64, v3\nv_cndmask_b32 v32, v32, v34, vcc\nv_lshl_add_u32 v32, v32, 4, s29")
        epi += ["v_lshl_add_u32 v21, v5, 6, v21", f"s_lshl_b32 s29, s22, 5\ns_add_u32 s29, s29, {T_CS+768}\nv_add_u32 v21, s29, v21"]
        epi += ["s_lshl_b32 s29, s24, 1\ns_add_u32 s29, s29, s22\ns_lshl_b32 s29, s29, 10", "v_lshl_add_u32 v18, v2, 4, s29"]
        epi += [f"v_mul_u32_u24 v17, {A2S}, v5", "v_and_b32 v34, 31, v2", "v_lshl_add_u32 v17, v34, 4, v17",
                "s_lshl_b32 s29, s24, 1\ns_add_u32 s29, s29, s22\ns_add_u32 s29, s29, 256", "s_lshl_b32 s29, s29, 9\nv_add_u32 v17, s29, v17"]
        epi += [f"s_mov_b32 s86, {f32(sc)}\ns_mov_b32 s87, {f32(sc)}"]

    A("WAITVM x0 w0\ns_barrier"); A(ts("land0"))
    emit(A, reads(0, 0))
    A("s_waitcnt lgkmcnt(0)")
    M = mfmas(0, 0); n = len(M)
    emit(A, place(M, [(reads(0, 1), 0, n - 10), (dma_w(1), 0, n - 20)]))
    pf0 = C.PF0[att]; STJ = C.STJ[att]; SJ = STJ + 2
    c0load = "buffer_load_dword v33, v34, s[48:51], 0 offen sc1"
    tbl = ["buffer_load_dwordx2 v[40:41], v30, s[16:19], s66 offen sc1", "buffer_load_dwordx2 v[42:43], v30, s[16:19], s66 offen offset:2048 sc1"]
    for j in range(16):
        if j < 2: pads(j + 1)
        if j < 15: A(f"WAITVM x{j+1} w{j+1}" + {SJ: " st", SJ + 2: " clr sst", 12: " c0", 13: " tb"}.get(j, "") + " | lgkmcnt(0)\ns_barrier")
        else: A("s_waitcnt lgkmcnt(0)\ns_barrier")
        A(ts(f"p{j}"))
        M = mfmas(j, 1); n = len(M); S = []; D = []
        if j < 15: S.append((reads(j + 1, 0), 0, n - 10))
        if j == SJ: M = M + stm
        if j == SJ + 1: S.append((st2, 2, 40)); S.append((["s_mov_b64 exec, 0x101\nbuffer_store_dwordx2 v[44:45], v30, s[16:19], 0 offen sc1 ; @sst\ns_mov_b64 exec, -1"], n - 5, n - 4))
        if j == 11:
            D.append((None, c0load + " ; @c0"))
            sd = [f"v_min_u32 v30, {nblk*32-1}, v0", "v_and_b32 v27, 0xe0, v0", "v_lshl_add_u32 v27, v4, 1, v27", "v_and_b32 v28, 1, v3", "v_add_u32 v27, v27, v28",
                  "s_lshl_b32 s29, s23, 8\nv_add_lshl_u32 v27, v27, s29, 3"]
            if att: sd += ["v_and_b32 v28, 7, v4", "v_lshrrev_b32 v32, 3, v4", "v_lshl_add_u32 v28, v28, 1, v32", "s_max_u32 s39, s29, 16\ns_sub_u32 s39, s39, 16\nv_add_lshl_u32 v28, v28, s39, 3",
                           "v_and_b32 v31, 31, v0", "s_lshl_b32 s29, s24, 5\ns_add_u32 s29, s29, 3072\nv_add_lshl_u32 v31, v31, s29, 1"]
            else: sd += ["s_mul_i32 s29, s24, 192\nv_add_lshl_u32 v31, v30, s29, 1", "v_and_b32 v28, 127, v0", "s_lshl_b32 s29, s26, 7\nv_add_lshl_u32 v28, v28, s29, 1"]
            sd += ["v_lshlrev_b32 v30, 3, v30", "v_lshlrev_b32 v32, 2, v0"]
            S.append((sd, 4, 40))
        if j == 12:
            S.append(([spin(slow, P + "_c0", c0load, "v_cmp_gt_u32 vcc, 0x100, v33")], 0, 1))
            D += [(None, t + " ; @tb") for t in tbl]
            D.append((None, "buffer_load_dwordx2 v[44:45], v27, s[16:19], 0 offen sc1 ; @tb"))
            D.append((None, "buffer_load_dwordx2 v[46:47], v28, s[16:19], 0 offen sc1 ; @tb" if att else "buffer_load_ushort v46, v28, s[52:55], 0 offen ; @tb"))
            D.append((None, "buffer_load_ushort v36, v31, s[72:75], 0 offen ; @tb"))
        if j == 13:
            sd = [spin(slow, P + "_cs", "\n".join(tbl), "v_and_b32 v33, v41, v43\nv_cmp_ne_u32 vcc, 1, v33"), "v_add_f32 v40, v40, v42", f"v_add_u32 v32, {TB}, v32",
                  "ds_write2st64_b32 v32, v44, v45 offset0:0 offset1:5", "v_lshlrev_b32 v36, 16, v36", "ds_write2st64_b32 v32, v40, v36 offset0:10 offset1:14"]
            if att: sd += ["v_lshlrev_b32 v32, 2, v4", f"v_add_u32 v32, {TB+1024}, v32", "ds_write2st64_b32 v32, v46, v47 offset0:0 offset1:5"]
            else: sd += ["v_lshlrev_b32 v46, 16, v46", f"ds_write_b32 v32, v46 offset:{T_B2-TB}"]
            S.append((sd + setup_b, 1, n - 2))
        if att and j in (9, 10):
            sd = [f"v_mov_b32 v27, {f32(-1e30)}", "v_lshlrev_b32 v28, 2, v3", "v_sub_u32 v28, v28, v4",
                  "s_or_b32 s29, s23, s21\ns_cmp_lg_u32 s29, 0\ns_cselect_b64 s[64:65], -1, 0"]
            for q in range(2 * (j - 9), 2 * (j - 9) + 2):
                sel = lambda k: ["v_cndmask_b32 v33, v27, 0, vcc", f"v_accvgpr_write_b32 a{160+4*k+q}, v33"]
                sd += [f"v_add_u32 v32, {7+q}, v28", "v_cmp_gt_u32 vcc, 8, v32"] + sel(0) + ["v_cmp_lt_i32 vcc, 15, v32"] + sel(1)
                sd += ["s_and_b64 vcc, vcc, s[64:65]"] + sel(3) + ["v_cmp_lt_i32 vcc, 7, v32", "s_and_b64 vcc, vcc, s[64:65]\ns_mov_b32 vcc_hi, 0"] + sel(2)
            S.append((sd, 2, n - 4))
        if j + 2 <= 15: D += dma_x(j + 2)
        if j == 0: D += dma_w(2)
        if j == 14: S.append((setup_a, 2, n - 4)); D += dma_b(1) + dma_b(2)
        if j == 15: S.append((epi, 0, n - 6)); D += dma_b(5) + dma_b(6)
        S.append((D, 1, n - 6))
        emit(A, place(M, S))
        if j < 15:
            A("s_waitcnt lgkmcnt(0)")
            M = mfmas(j + 1, 0); n = len(M); S = [(reads(j + 1, 1), 0, n - 10)]; D = []
            if j + 3 <= 15: D += dma_w(j + 3)
            if j == STJ: D += stl
            if j == 1:
                D.append((f"s_mov_b64 exec, {1 if att else 15}\nbuffer_store_dword v32, v29, s[16:19], 0 offen sc1 ; @clr\ns_mov_b64 exec, -1", None))
                D.append((f"s_mov_b32 exec_lo, s38\ns_mov_b32 exec_hi, 0\ns_cbranch_execz {P}_ncl\nbuffer_store_dwordx2 v[32:33], v31, s[16:19], 0 offen sc1 ; @cond\n{P}_ncl:\ns_mov_b64 exec, -1", None))
            if j == SJ: S.append((st1, 4, n - 1))
            if j in (2, 4, 6, 8, 10): D += cph()
            if not att and 3 <= j <= 10: D.append((None, f"buffer_load_dwordx4 {aR(208+4*(j-3))}, v21, s[60:63], 0 offen offset:{2048*((j-3)>>2)+64*((j-3)&3)}"))
            if j in (SJ + 2, SJ + 3):
                D.append((f"s_bfe_u32 s29, s2, 0x10004\ns_lshl_b32 s39, s20, 1\ns_add_u32 s29, s29, s39\ns_cmp_eq_u32 s29, {j-SJ-2}\ns_cbranch_scc0 {P}_na{j}\ns_mov_b64 exec, 1\n"
                          f"buffer_atomic_add v35, v34, s[48:51], 0 offen sc1 ; @cond\ns_mov_b64 exec, -1\n{P}_na{j}:", None))
            if j >= pf0: D += pf(2 * (j - pf0)) + pf(2 * (j - pf0) + 1)
            if j == 7: D.append((f"v_mov_b32 v37, 1\ns_mov_b32 exec_lo, s38\ns_mov_b32 exec_hi, 0\ns_cbranch_execz {P}_ncs\nbuffer_store_dwordx2 v[36:37], v31, s[16:19], 0 offen sc1 ; @cond\n{P}_ncs:\ns_mov_b64 exec, -1", None))
            if j == 12: D += cpf(P + "_epi", 0) + cpf(P + "_epi", 1)
            if j == 13: D += [tuple(setup_d)] + dma_b(0) + cpf(P + "_epi", 2)
            if j == 14: D += dma_b(3) + dma_b(4)
            S.append((D, 0, n - 6))
            emit(A, place(M, S))
    A(ts("g1end")); A(ts("RTg1")); A(ts("e0"))
    A(f"{P}_epi:")
    flag = lambda lane: f"s_mov_b64 exec, {1<<lane}\nbuffer_store_dword v35, v29, s[16:19], 0 offen sc1\ns_mov_b64 exec, -1"
    poll = lambda kind: f"buffer_load_dword v33, v20, s[16:19], {['0','s34','s32','s28'][kind]} offen sc1"
    ptest = "v_cmp_eq_u32 vcc, 0, v33"
    acc2 = lambda m, n: 64 + 32 * m + 4 * n
    G2A = 232
    g2_addr = lines("v_bfe_u32 v244, v2, 2, 3\nv_and_b32 v245, 3, v2\nv_lshlrev_b32 v246, 11, v5\nv_lshl_add_u32 v246, v244, 7, v246\nv_lshl_add_u32 v246, v245, 3, v246\n"
                    f"v_lshrrev_b32 v244, 1, v244\nv_lshl_add_u32 v{G2A}, v244, 5, v246\nv_add_u32 v{G2A+4}, 0x10000, v{G2A}") + [f"v_xor_b32 v{G2A+4+c}, {32*c}, v{G2A+4}" for c in (1, 2, 3)]
    g2_addr2 = [f"v_add_u32 v{G2A+8+c}, 0x10000, v{G2A+4+c}" for c in range(4)] + [f"v_xor_b32 v{G2A+c}, {32*c}, v{G2A}" for c in (1, 2, 3)]
    def reads2(j, kk):
        st = BS(j); w = G2A + 4 * (st >> 16); st &= 0xffff
        return [f"ds_read_b64_tr_b16 a[{32*kk+4*n+2*h}:{32*kk+4*n+2*h+1}], v{w+(n&3)} offset:{st + (2*kk+h)*4096 + (n>>2)*1024}" for n in range(8) for h in range(2)]
    def gelu8(t, rs, cs, b1):
        u = [22, 24, 26, 38]; L = []
        for i in range(4): L.append(f"v_pk_fma_f32 {Pn(u[i])}, {Pn(cs[i])}, {Pn(rs[i])}, {Pn(b1[i])} op_sel:[0,1,0] op_sel_hi:[1,1,1] neg_lo:[0,1,0] neg_hi:[0,1,0]")
        for i in range(4): L.append(f"v_pk_fma_f32 {Pn(t[i])}, {Pn(t[i])}, {Pn(rs[i])}, {Pn(u[i])} op_sel_hi:[1,0,1]")
        for i in range(4): L.append(f"v_pk_mul_f32 {Pn(u[i])}, {Pn(t[i])}, {Pn(t[i])}")
        for i in range(4): L.append(f"v_pk_fma_f32 {Pn(u[i])}, {Pn(u[i])}, s[64:65], v[0:1] op_sel_hi:[1,1,0]")
        for i in range(4): L.append(f"v_pk_mul_f32 {Pn(u[i])}, {Pn(u[i])}, {Pn(t[i])}")
        for i in range(8): L.append(f"v_exp_f32 v{u[i>>1]+(i&1)}, v{u[i>>1]+(i&1)}")
        for i in range(4): L.append(f"v_pk_add_f32 {Pn(u[i])}, {Pn(u[i])}, 1.0 op_sel_hi:[1,0]")
        for i in range(8): L.append(f"v_rcp_f32 v{u[i>>1]+(i&1)}, v{u[i>>1]+(i&1)}")
        for i in range(4): L.append(f"v_pk_mul_f32 {Pn(u[i])}, {Pn(u[i])}, {Pn(t[i])}")
        for i in range(4): L.append(cvt(t[0] + i, u[i]))
        return L
    start2 = ["WAITVM b0 b1\ns_barrier"] + reads2(0, 0)
    NA0 = 2
    if not att:
        for ln in range(3):
            A("s_waitcnt lgkmcnt(0)")
            for m in range(8):
                if m in (0, 4): A(ts(f"L{ln}m{m}"))
                d = acc(m, 2 * ln)
                G = gelu8([d, d + 2, d + 4, d + 6], [40 + 2 * m] * 4, [56, 58, 60, 62], [8, 10, 12, 14]); S = []
                if m == 7 and ln < 2: S.append((colreads(ln + 1), 6, 8))
                if ln == 1 and m == 3: S.append((["WAITVM h0\n" + flag(0)], 2, 3))
                if ln == 2:
                    if m == 0: emit(A, g2_addr)
                    if m == 2: S.append(([poll(1) + " ; @p1"], 2, 3))
                    if m == 4: S.append((["WAITVM p1 h1\n" + flag(1) + "\n" + spin(slow, P + "_f1", poll(1), ptest)] + lda(0), 30, 44))
                    if m == 5: S.append((lda(1), 2, 40))
                    if m == 6: S.append(([f"s_mov_b32 s29, {T_B2}\nv_lshl_add_u32 v32, v3, 4, s29"] + [f"ds_read_b128 {R(acc2(1,n))}, v32 offset:{64*n}" for n in range(8)], 2, 30))
                    if m == 7: S.append((start2, 2, 40))
                emit(A, place(G, S))
                A(f"s_mov_b32 s29, {m*A2S + ln*2048}\nbuffer_store_dwordx4 {R(d)}, v18, s[12:15], s29 offen {C.ST_AUX} ; @h{ln}")
    else:
        tmp = [26, 38, 46 - 40, 34]
        tmp = [26, 38, 26, 38]
        for m in range(9):
            A("s_waitcnt lgkmcnt(0)")
            if m < 8: A(rowp(22 + 2 * ((m + 1) & 1), 28 if m == 7 else 30, 64 * ((m + 1) & 7)))
            else: A("ds_read_b128 v[8:11], v32\nds_read_b128 v[12:15], v32 offset:1280")
            rs = Pn(22 + 2 * (m & 1))
            for part in ((0, 1) if m < 8 else (1,)):
                src = (acc(m, 0) + 8 * part) if m < 8 else 48; dst = (acc(m, 0) + 4 * part) if m < 8 else 48; cs = [8, 40][part]
                for i in range(4): A(f"v_pk_mul_f32 {Pn(src+2*i)}, {Pn(src+2*i)}, {rs} op_sel_hi:[1,0]")
                for i in range(4): A(f"v_pk_fma_f32 {Pn(src+2*i)}, {Pn(cs+2*i)}, {rs}, {Pn(src+2*i)} op_sel:[0,1,0] op_sel_hi:[1,1,1] neg_lo:[0,1,0] neg_hi:[0,1,0]")
                for i in range(4): A(cvt(dst + i, src + 2 * i))
        A(ts("v"))
        order = [8] + list(range(8))
        for k, m in enumerate(order):
            A("s_waitcnt lgkmcnt(0)")
            b = k & 1
            if k < 8: A(f"ds_read_b128 {R([8,40][1-b])}, v31 offset:{64*k}\nds_read_b128 {R([12,44][1-b])}, v31 offset:{64*k+1280}")
            rs, mr = [8, 40][b], [12, 44][b]
            src = 56 if m == 8 else acc(m, 4)
            for i in range(4): A(f"v_pk_mul_f32 {Pn(src+2*i)}, {Pn(src+2*i)}, {Pn(rs+2*(i&1))}")
            for i in range(4): A(f"v_pk_fma_f32 {Pn(src+2*i)}, {Pn(mr+2*(i&1))}, v[36:37], {Pn(src+2*i)} op_sel:[0,{i>>1},0] op_sel_hi:[1,{i>>1},1] neg_lo:[0,1,0] neg_hi:[0,1,0]")
            for i in range(4):
                db, h = i >> 1, i & 1
                if m == 8: dsts = [acc(0, 2 + db) + h, acc(1, 2 + db) + h]
                else: dsts = [acc(m, 2 + db) + 2 + h] + ([acc(m + 2, 2 + db) + h] if m < 6 else [])
                for d in dsts: A(cvt(d, src + 2 * i))
        A(ts("s"))
        mk = [8, 12, 40, 44]
        for k in range(4):
            for q in range(4): A(f"v_accvgpr_read_b32 v{mk[k]+q}, a{160+4*k+q}")
        def smf(m): return [f"{MF} {R(acc(m,4))}, {R(48 if m < 2 else acc(m-2,1))}, {R(acc(m,0))}, {R(mk[2+m] if m < 2 else mk[1])}",
                            f"{MF} {R(acc(m,5))}, {R(acc(m,1))}, {R(acc(m,0))}, {R(mk[0])}"]
        def smax(m):
            s = acc(m, 4); mx = 22 + 2 * (m & 1); q = acc(m, 0)
            L = [f"v_max3_f32 v{mx}, v{s}, v{s+1}, v{s+2}", f"v_max3_f32 v{mx+1}, v{s+3}, v{s+4}, v{s+5}", f"v_max3_f32 v{mx}, v{mx}, v{s+6}, v{s+7}", f"v_max_f32 v{mx}, v{mx}, v{mx+1}"]
            for sw in (16, 32): L += [f"v_mov_b32 v{mx+1}, v{mx}", f"v_permlane{sw}_swap_b32 v{mx}, v{mx+1}", f"v_max_f32 v{mx}, v{mx}, v{mx+1}"]
            L.append(f"v_mul_f32 v{mx}, s86, v{mx}")
            for i in range(4): L.append(f"v_pk_fma_f32 {Pn(s+2*i)}, {Pn(s+2*i)}, s[86:87], {Pn(mx)} op_sel_hi:[1,1,0] neg_lo:[0,0,1] neg_hi:[0,0,1]")
            for i in range(8): L.append(f"v_exp_f32 v{s+i}, v{s+i}")
            for i in range(4): L.append(cvt(q + i, s + 2 * i))
            return L
        def pvf(m):
            q = acc(m, 0)
            return [f"{MF} {R(acc(m,4))}, {R(acc(m,2))}, {R(q)}, 0", f"{MF} {R(acc(m,5))}, {R(acc(m,3))}, {R(q)}, 0", f"{MF} {R(acc(m,2))}, a[136:139], {R(q)}, 0"]
        def fin(m):
            s = acc(m, 4); l = acc(m, 2); q = acc(m, 0)
            L = [f"v_rcp_f32 v{l}, v{l}"]
            for i in range(4): L.append(f"v_pk_mul_f32 {Pn(s+2*i)}, {Pn(s+2*i)}, {Pn(l)} op_sel_hi:[1,0]")
            for i in range(4): L.append(cvt(q + i, s + 2 * i))
            L.append(f"s_mov_b32 s29, {m*A2S}\nbuffer_store_dwordx4 {R(q)}, v18, s[12:15], s29 offen {C.ST_AUX} ; @o")
            return L
        zp = lambda a, b: [x for p in zip(a, b) for x in p]
        emit(A, smf(0) + smf(1))
        for i in range(8): A(f"v_accvgpr_read_b32 v{52+i}, a{176+i}")
        for mp in range(4):
            G = zp(smax(2 * mp), smax(2 * mp + 1)); S = []
            if mp < 3: S.append((smf(2 * mp + 2) + smf(2 * mp + 3), 22, 38))
            if mp > 0: S.append((pvf(2 * mp - 2) + pvf(2 * mp - 1), 1, 19))
            if mp == 1: S.append(([rowp(40 + 2 * m, 30, 64 * m) for m in range(4)], 40, 50))
            if mp == 2: S.append(([poll(1) + " ; @p1"], 40, 41))
            if mp == 3: S.append((["ds_read_b128 v[8:11], v21\nds_read_b128 v[12:15], v21 offset:1024"] + [rowp([48, 50, 60, 62][m], 30, 256 + 64 * m) for m in range(4)], 40, 50))
            emit(A, place(G, S))
            if mp > 0: emit(A, zp(fin(2 * mp - 2), fin(2 * mp - 1)))
        A(ts("h"))
        A("s_waitcnt lgkmcnt(0)")
        rp = [40, 42, 44, 46, 48, 50, 60, 62]
        for mp in range(4):
            d = 52 if mp == 0 else 128 + 8 * mp
            if mp:
                for i in range(8): A(f"v_accvgpr_read_b32 v{d+i}, a{176+8*mp+i}")
            G = gelu8([d, d + 2, d + 4, d + 6], [rp[2 * mp]] * 2 + [rp[2 * mp + 1]] * 2, [8, 10, 8, 10], [12, 14, 12, 14]); S = []
            if mp == 0: S.append((pvf(6) + pvf(7), 1, 19)); S.append((["WAITVM p1\n" + spin(slow, P + "_f1", poll(1), ptest)] + lda(0), 24, 44))
            if mp == 1: S.append((lda(1), 2, 40))
            if mp == 3: S.append((start2, 2, 40))
            emit(A, place(G, S))
            A(f"v_permlane32_swap_b32 v{d}, v{d+2}\nv_permlane32_swap_b32 v{d+1}, v{d+3}")
            A(f"s_mov_b32 s29, {2*mp*A2S}\nbuffer_store_dwordx4 {R(d)}, v17, s[12:15], s29 offen {C.ST_AUX} ; @h2")
            if mp == 0: emit(A, zp(fin(6), fin(7))); emit(A, g2_addr)

    def mfmas2(j, kk):
        first = j == 0 and kk == 0; L = []
        for n in range(8):
            for m in ((0, 1) if n % 2 == 0 or first else (1, 0)):
                d = R(acc2(m, n)); c = d if not first else ("0" if att else R(acc2(1, n)))
                L.append(f"{MF} {d}, {aR(32*kk+4*n)}, {aR(64+16*(j%DA)+8*kk+4*m)}, {c}")
        return L
    def sub2(M, Rd, S, D):
        S = [(Rd, 0, 16)] + S
        if D: S.append((D, 1, 15))
        S.append(([f"s_waitcnt lgkmcnt({8 if Rd else 0})"], 7, 8))
        emit(A, place(M, S))
    A("WAITVM a0 | lgkmcnt(0)"); A(ts("g2go")); A(ts("RTg2")); A(ts("g2go2"))
    A(f"{P}_g2:")
    first_need = {}
    for s, st in enumerate(steps): first_need.setdefault(st[3], s)
    have = {1}
    aq = list(range(NA0, NK)); bq = list(range(7, NK))
    def take_a(j, half, maxn):
        out = []
        while aq and len(out) < maxn and aq[0] - DA <= (j if half else j - 1) and steps[aq[0]][3] in have: out.append(aq.pop(0))
        return sum((lda(s) for s in out), [])
    checks = {max(first_need[k] - DA - 1, 0): k for k in first_need if k not in have}
    sub2(mfmas2(0, 0), reads2(0, 1), [(g2_addr2, 3, 14)], take_a(-1, 1, 1))
    xpoll = "buffer_load_dword v33, v34, s[16:19], 0 offen sc1"
    xloads = "\n".join(f"buffer_load_dwordx4 {R(128+4*i)}, v18, s[56:59], {'s34' if i>=4 else '0'} offen offset:{1024*(i&3)} sc1 ; @cond" for i in range(8))
    bdone = -2.0
    for j in range(NK):
        last = j == NK - 1; S = []
        if not last:
            w = f"WAITVM b{j+1}"
            if j - 2 in checks: w += f" p{checks[j-2]}"
            if j == 2: w += " h2"
            if att and j == NK - C.XCHK: w += " px"
            A(w + " | lgkmcnt(8)\ns_barrier")
            if j % 4 == 0: A(ts(f"q{j}"))
        else: A("s_waitcnt lgkmcnt(8)")
        if j - 2 in checks: S.append(([spin(slow, f"{P}_g{checks[j-2]}", poll(checks[j-2]), ptest)], 0, 1)); have.add(checks[j - 2])
        if j == 2: S.append(([flag(0 if att else 2)], 0, 1))
        if j in checks: S.append(([poll(checks[j]) + f" ; @p{checks[j]}"], 0, 1))
        if j == 4:
            sd = ["s_lshl_b32 s29, s20, 13\nv_lshl_add_u32 v18, v2, 4, s29"]
            if att: sd += ["v_mov_b32 v34, s67"] + lines(xo_base) + ["v_lshl_add_u32 v21, v3, 12, s29", "v_lshl_add_u32 v21, v4, 4, v21"]
            S.append((sd, 3, 15))
        if j == 5:
            sd = ["v_and_b32 v22, 1, v4", "v_lshlrev_b32 v22, 4, v22", "v_mov_b32 v23, 0x3f80", "v_lshlrev_b32 v22, v22, v23", "v_lshrrev_b32 v23, 1, v4", f"v_lshlrev_b32 v24, {1 if att else 2}, v3", "v_sub_u32 v23, v23, v24"]
            S.append((sd, 2, 16))
        if j == 6 and att:
            S.append((["v_mov_b32 v160, 0", "v_mov_b32 v161, 0", "v_mov_b32 v164, 0", "v_mov_b32 v165, 0", "v_mul_u32_u24 v8, 272, v4", "v_lshl_add_u32 v8, v3, 3, v8", "s_mul_i32 s29, s20, 8704\nv_add_u32 v8, s29, v8"], 2, 16))
        if j == 8 and att:
            S.append((["v_cmp_eq_u32 vcc, 0, v23", "v_mul_u32_u24 v9, 272, v3", "v_cndmask_b32 v162, 0, v22, vcc", "v_cmp_eq_u32 vcc, 1, v23", "v_lshl_add_u32 v9, v4, 4, v9", "v_cndmask_b32 v163, 0, v22, vcc", "s_mul_i32 s29, s20, 8704\nv_add_u32 v9, s29, v9"], 2, 16))
        if j in (6, 7, 8, 9) and not att:
            S.append(([x for d in range(2 * (j - 6), 2 * (j - 6) + 2) for x in (f"v_cmp_eq_i32 vcc, {(d&3) - 8*(d>>2)}, v23", f"v_cndmask_b32 v{160+d}, 0, v22, vcc")], 2, 16))
        if att and j == NK - C.XCHK - 2: S.append(([xpoll + " ; @px"], 0, 1))
        if att and j == NK - C.XCHK: S.append(([f"{ptest}\ns_mov_b64 s[64:65], vcc\ns_cbranch_vccnz {P}_nox\n{xloads}\n{P}_nox:"], 0, 1))
        if last and att: S.append((["s_barrier"], 8, 9))
        bdone += (NK - 7) / (NK - C.SM)
        if bq and bq[0] - NB + 1 <= j and (bq[0] - 7 < bdone or bq[0] <= j + 3): D = dma_b(bq.pop(0))
        else: D = take_a(j, 0, 1)
        sub2(mfmas2(j, 1), [] if last else reads2(j + 1, 0), S, D)
        if not last:
            A(f"WAITVM a{j+1} | lgkmcnt(8)")
            D = take_a(j, 1, 1)
            if j % 6 == 3 and C.CPH: D.append(("v_lshl_add_u32 v246, v4, 12, s99", "buffer_load_dword v247, v246, s[76:79], 0 offen"))
            sub2(mfmas2(j + 1, 0), reads2(j + 1, 1), [], D)
            if not att and j == 10:
                for n in range(8):
                    for m in range(2): A(f"{MF} {R(acc2(m,n))}, {R(160+4*(n&1))}, {aR(208+16*m+4*(n>>1))}, {R(acc2(m,n))}")
    assert not aq and not bq
    A(ts("g2end"))
    if not att:
        for k in [0, 4, 1, 5, 2, 6, 3, 7]:
            d = 64 + 8 * k
            for q in range(4): A(cvt(128 + 4 * k + q, d + 2 * q))
            A(f"buffer_store_dwordx4 {R(128+4*k)}, v18, s[56:59], {'s34' if k>=4 else '0'} offen offset:{1024*(k&3)} sc1")
        A("s_waitcnt vmcnt(0)\n" + flag(3))
    else:
        A(f"s_cmp_eq_u64 s[64:65], 0\ns_cbranch_scc0 {P}_x_slow\n{P}_xdone:")
        slow.append(f"{P}_x_slow:\ns_mov_b32 s39, {C.SPIN}\n{P}_x_spin:\n{xpoll}\ns_waitcnt vmcnt(0)\n{ptest}\ns_cbranch_vccz {P}_x_ok\ns_sleep 4\ns_sub_u32 s39, s39, 1\ns_cmp_lg_u32 s39, 0\ns_cbranch_scc1 {P}_x_spin\n{P}_x_ok:\n{xloads}\ns_branch {P}_xdone")
        A(ts("xgot"))
        def fm(k): return [f"s_waitcnt vmcnt({7-k})"] + [f"{MF} {R(64+8*k+4*h)}, {R(162-2*h)}, {R(128+4*k)}, {R(64+8*k+4*h)}" for h in range(2)]
        def fw(k):
            L = []
            for h in range(2):
                d = 64 + 8 * k + 4 * h
                L += [cvt(d, d), cvt(d + 1, d + 2), f"ds_write_b64 v8, {Pn(d)} offset:{4352*(k>>2) + 64*(k&3) + 32*h}"]
            return L
        emit(A, fm(0) + fm(1))
        for k in range(8):
            if k + 2 < 8: emit(A, fm(k + 2))
            emit(A, fw(k))
            if k in (3, 7):
                m = k >> 2
                for i in range(4): A(f"ds_read_b128 {R(168+16*m+4*i)}, v9 offset:{4352*m + 1088*i}")
        A("s_movk_i32 s29, 0x4000\ns_mov_b32 s30, 0x8000\ns_mov_b32 s31, 0xc000")
        for m in range(2):
            for i in range(4):
                A(f"s_waitcnt lgkmcnt({12 if m == 0 else 3-i})\nbuffer_store_dwordx4 {R(168+16*m+4*i)}, v21, s[52:55], {['0','s29','s30','s31'][i]} offen offset:{2048*m} {C.OUT_AUX}")
    stamp_out(A)
    A(f"{P}_fin:\ns_endpgm")
    for s in slow: A("s_nop 7\n" + s)
    A(f"{P}_end:")

def build(path, **kw):
    for k, v in kw.items(): setattr(C, k, v)
    A = Asm(); name = NAME + "_kernel"
    A(f".text\n.globl {name}\n.p2align 8\n.type {name},@function\n{name}:")
    A("s_cmp_ge_u32 s2, 256\ns_cbranch_scc0 L_go\ns_endpgm\nL_go:")
    for r, o in ((60, 0), (8, 8), (68, 32), (16, 80), (40, 16), (44, 48), (72, 40), (48, 72)): A(f"s_load_dwordx2 s[{r}:{r+1}], s[0:1], {o}")
    C.names = []
    A(ts("RTstart"))
    A("v_lshrrev_b32 v3, 6, v0\nv_and_b32 v2, 63, v0\nv_readfirstlane_b32 s20, v3\nv_and_b32 v4, 15, v2\nv_lshrrev_b32 v3, 4, v2")
    A("s_lshr_b32 s29, s2, 3\ns_xor_b32 s29, s29, s2\ns_and_b32 s35, s29, 1\ns_cselect_b32 s30, 7, 11")
    A("s_getpc_b64 s[76:77]\nL_pc:\ns_mul_i32 s29, s35, Lg_base-La_base\ns_add_u32 s29, s29, La_base-L_pc\n" + add64(76, "s29") + "\ns_mov_b32 s78, Lg_end-Lg_base\ns_mov_b32 s79, 0x20000")
    if C.PAD: A("s_lshl_b32 s29, s20, 7\nv_lshl_add_u32 v24, v3, 9, s29\nbuffer_load_dword a141, v24, s[76:79], 0 offen\nv_lshl_add_u32 v25, v4, 12, s29\nbuffer_load_dword a141, v25, s[76:79], 0 offen")
    A("v_lshrrev_b32 v24, 3, v2\nv_and_b32 v25, 7, v2")
    A("s_bfe_u32 s23, s2, 0x20004\ns_bfe_u32 s3, s2, 0x10001\ns_lshl_b32 s29, s3, 2\ns_add_u32 s23, s23, s29")
    A("v_and_b32 v26, 6, v24\nv_xor_b32 v26, v25, v26\nv_lshlrev_b32 v17, 12, v24\nv_lshl_add_u32 v17, v26, 4, v17\ns_lshl_b32 s29, s20, 17\ns_add_u32 s29, s29, 32768\nv_add_u32 v16, s29, v17")
    A("s_lshr_b32 s38, s2, 6\ns_lshl_b32 s80, s38, 15\ns_and_b32 s39, s38, 2\ns_add_u32 s38, s38, s39\ns_lshl_b32 s39, s20, 3\ns_add_u32 s38, s38, s39\ns_lshl_b32 s84, s38, 10")
    A("s_lshl_b32 s64, s23, 19\ns_lshl_b32 s39, s3, 10\ns_add_u32 s64, s64, s39\n" + srd(4, 18 * 32768))
    for i in range(1, 4): A(f"s_xor_b32 s{80+i}, s80, {i<<15}\ns_xor_b32 s{84+i}, s84, {((i&1) + 4*(i>>1)) << 10}")
    A("s_lshr_b32 s24, s2, 6\ns_and_b32 s29, s2, 1\ns_lshl_b32 s29, s29, 2\ns_add_u32 s24, s24, s29\ns_and_b32 s29, s2, 4\ns_lshl_b32 s29, s29, 1\ns_add_u32 s24, s24, s29")
    A("s_lshl_b32 s29, s35, 10\ns_add_u32 s36, s29, 6144\ns_lshl_b32 s29, s35, 8\ns_add_u32 s31, s29, 128")
    A("v_and_b32 v26, 2, v24\nv_xor_b32 v25, v25, v26\ns_and_b32 s39, s23, 1\ns_lshl_b32 s29, s39, 2\nv_xor_b32 v25, s29, v25")
    A("s_lshl_b32 s29, s20, 1\ns_add_u32 s29, s29, s39\ns_lshl_b32 s29, s29, 3\nv_add_u32 v26, s29, v24\nv_mul_u32_u24 v26, s36, v26\nv_lshl_add_u32 v18, v25, 4, v26")
    A("s_xor_b32 s29, s29, 8\nv_add_u32 v26, s29, v24\nv_mul_u32_u24 v26, s36, v26\nv_xor_b32 v25, 4, v25\nv_lshl_add_u32 v19, v25, 4, v26")
    A("s_mul_i32 s65, s3, s36\ns_lshl_b32 s65, s65, 9\ns_mul_i32 s31, s31, s24\ns_add_u32 s65, s65, s31")
    A(f"s_lshl_b32 s10, s36, 6\ns_mov_b32 s11, 0x20000\ns_mul_i32 s27, s20, 7168\ns_add_u32 s27, s27, {WB}\ns_mul_i32 s39, s39, 3072\ns_and_b32 s38, s23, 2")
    for k in range(3):
        A(f"s_cmp_eq_u32 s38, 0\ns_cselect_b32 s29, {k}, {(k+2)%3}\ns_lshl_b32 s{94+k}, s29, s30\ns_lshl_b32 s29, s29, 10\ns_add_u32 s29, s29, s27")
        A(f"s_add_u32 s{88+k}, s29, s39\ns_sub_u32 s29, s29, s39\ns_add_u32 s{91+k}, s29, 3072")
    A("s_mov_b32 m0, s84\ns_waitcnt lgkmcnt(0)"); A(ts("karg"))
    A("s_add_u32 s4, s60, s64\ns_addc_u32 s5, s61, 0\n" + sub64(4, 32768))
    xd = lambda i: f"buffer_load_dwordx4 v16, s[4:7], s{80+i} offen lds\nbuffer_load_dwordx4 v16, s[4:7], s{80+i} offen offset:2048 lds"
    A(xd(0))
    A("s_mov_b32 m0, s88\ns_cmp_eq_u32 s35, 0\ns_cselect_b32 s8, s8, s68\ns_cselect_b32 s9, s9, s69\n" + add64(8, "s65"))
    for k in range(3): A((f"s_mov_b32 m0, s{88+k}\n" if k else "") + f"buffer_load_dwordx4 v18, s[8:11], s{94+k} offen lds")
    A("s_mov_b32 m0, s85\n" + xd(1))
    A("s_lshr_b32 s21, s20, 1\ns_and_b32 s22, s20, 1\ns_mov_b32 s33, 0x3f803f80")
    A("s_bfe_u32 s25, s2, 0x20003\ns_and_b32 s29, s2, 6\ns_lshl_b32 s29, s29, 1\ns_add_u32 s25, s25, s29\ns_lshr_b32 s26, s2, 5")
    C.common = C.names
    A("s_cmp_eq_u32 s35, 0\ns_cbranch_scc0 Lg_base\ns_branch La_base")
    role(A, True)
    role(A, False)
    A.lines = resolve_vm(A.lines)
    if C.EXP:
        reg = None; L = []; nb = 0
        for l in A.lines:
            if l.endswith("_ret1:"): reg = "g1"
            if l.endswith("_epi:"): reg = "epi"
            if l.endswith("_g2:"): reg = "g2"
            if l.endswith("_fin:"): reg = None
            k = False
            if reg == "g2" and C.EXP & 4 and l.startswith("ds_read_b64_tr"): k = True
            if reg == "g2" and C.EXP & 8 and l.startswith("buffer_load_dwordx4") and ("v16" in l or "v19" in l): k = True
            if reg == "g1" and C.EXP & 16 and l.startswith("ds_read") and " a[" in l: k = True
            if reg == "g1" and C.EXP & 32 and l.endswith("lds") and "s31" not in l: k = True
            if reg == "epi" and C.EXP & 64 and l.startswith(("v_exp", "v_rcp", "v_pk_")): continue
            if reg == "g2" and C.EXP & 128 and l.startswith("v_mfma"): l = "s_nop 3"
            if reg == "g1" and C.EXP & 256 and l.startswith("v_mfma"): l = "s_nop 3"
            L.append("s_nop 0" if k else l)
        A.lines = L
    body = A.finish()
    hdr = "; @launch grid=(256,1,1) block=(256,1,1) lds=163840\n" + (f"; FINE0 {' '.join(C.allnames[True])}\n; FINE1 {' '.join(C.allnames[False])}\n" if C.FINE else "") + '.amdgcn_target "amdgcn-amd-amdhsa--gfx950"\n'
    if C.PAD: body, C.npads = add_pads(hdr, body, [("La_base", "La_fin", "La", "La_ret"), ("Lg_base", "Lg_fin", "Lg", "Lg_ret")])
    open(path, "w").write(hdr + body + '.section .rodata,"a"\n.p2align 6\n' + kdesc(name))
    return A.npad

if __name__ == "__main__":
    print("pads", build("v3.s"))
    build("v3_fine.s", FINE=True)
    print({k: len(v) for k, v in C.allnames.items()}, C.npads)
```

```python
import re

TRANS = ("v_exp_", "v_log_", "v_rcp_", "v_rsq_", "v_sqrt_", "v_sin_", "v_cos_")

def regs_of(tok):
    tok = tok.strip()
    tok = tok.lstrip("-")
    if tok.startswith("abs("): tok = tok[4:-1]
    if tok.startswith("|"): tok = tok.strip("|")
    m = re.fullmatch(r"([vas])(\d+)", tok)
    if m: return {(m.group(1), int(m.group(2)))}
    m = re.fullmatch(r"([vas])\[(\d+):(\d+)\]", tok)
    if m: return {(m.group(1), i) for i in range(int(m.group(2)), int(m.group(3)) + 1)}
    if tok == "vcc": return {("s", 106), ("s", 107)}
    if tok == "m0": return {("s", 124)}
    if tok == "exec": return {("s", 126), ("s", 127)}
    return set()

class Ins:
    def __init__(self, text):
        self.text = text
        t = text.split(";")[0].strip()
        self.op = t.split()[0] if t else ""
        rest = t[len(self.op):].strip()
        ops = [o.strip() for o in rest.split(",")] if rest else []
        if ops:
            last = ops[-1].split()
            self.mods = " ".join(last[1:]); ops[-1] = last[0] if last else ""
        else: self.mods = ""
        ops2 = []
        for o in ops:
            o0 = o.split()[0] if o.split() else o
            ops2.append(o0)
        self.ops = ops2
        op = self.op
        self.is_label = t.endswith(":") or op.startswith(".")
        self.mfma = op.startswith("v_mfma")
        self.valu = op.startswith("v_") and not self.mfma
        self.trans = op.startswith(TRANS)
        self.vmem = op.startswith(("buffer_", "global_"))
        self.ds = op.startswith("ds_")
        self.salu = op.startswith("s_")
        self.dma = self.vmem and " lds" in (" " + t)
        R = [regs_of(o) for o in ops2]
        self.w = set(); self.r = set(); self.c = set(); self.ab = set(); self.stdata = set()
        if self.is_label: return
        if self.mfma:
            self.w = R[0]; self.ab = R[1] | R[2]; self.c = R[3]; self.r = self.ab | self.c
        elif self.valu:
            if op.startswith("v_permlane") and "swap" in op:
                self.w = R[0] | R[1]; self.r = R[0] | R[1]
            elif op.startswith("v_cmp"):
                self.w = R[0]; self.r = set().union(*R[1:])
            elif op.startswith(("v_add_co", "v_sub_co", "v_addc_co", "v_subb_co")):
                self.w = R[0] | R[1]; self.r = set().union(*R[2:])
            elif op.startswith("v_nop"): pass
            else:
                self.w = R[0]; self.r = set().union(*R[1:]) if len(R) > 1 else set()
                if op.startswith(("v_fmac", "v_dot2c", "v_pk_fmac")) or "_dpp" in op: self.r |= R[0]
        elif self.vmem:
            if self.dma: self.r = set().union(*R) | {("s", 124)}
            elif "load" in op: self.w = R[0]; self.r = set().union(*R[1:])
            elif "store" in op or "atomic" in op:
                self.r = set().union(*R)
                d = R[0] if op.startswith("buffer_") else R[1]
                if "x3" in op or "x4" in op: self.stdata = d
                if "atomic" in op and "sc0" in t: self.w = R[0]
        elif self.ds:
            if "read" in op or "permute" in op or "swizzle" in op: self.w = R[0]; self.r = set().union(*R[1:])
            else: self.r = set().union(*R)
        elif self.salu:
            if op.startswith(("s_cmp", "s_waitcnt", "s_barrier", "s_nop", "s_cbranch", "s_branch", "s_endpgm", "s_sleep", "s_setprio")):
                self.r = set().union(*R) if R else set()
            else:
                self.w = R[0] if R else set(); self.r = set().union(*R[1:]) if len(R) > 1 else set()
    def states(self):
        if self.is_label: return 0
        if self.op == "s_nop": return int(self.ops[0]) + 1
        return 1

def vg(s): return {x for x in s if x[0] in "va"}
def sg(s): return {x for x in s if x[0] == "s"}

def need(p, c):
    n = 0
    if p.valu:
        if c.mfma and vg(p.w) & c.r: n = max(n, 2)
        if c.valu:
            if p.trans and vg(p.w) & c.r: n = max(n, 1)
            if (c.op.startswith("v_permlane") or "_dpp" in c.op) and vg(p.w) & c.r: n = max(n, 2)
            if c.op.startswith(("v_readlane", "v_readfirstlane")) and vg(p.w) & c.r: n = max(n, 1)
            if sg(p.w) & c.r: n = max(n, 4 if c.op.startswith(("v_readlane", "v_writelane")) else 2)
            if "sdwa" in p.op and vg(p.w) & (c.r | c.w): n = max(n, 1)
        if p.op.startswith("v_dot") and vg(p.w) & (c.r | c.w) and not (c.op == p.op and p.w == c.w): n = max(n, 3)
        if c.vmem and sg(p.w) & c.r: n = max(n, 5)
        if c.salu and sg(p.w) & c.r: n = max(n, 2)
    if p.mfma:
        big = "32x32" in p.op
        if c.mfma:
            if p.w & c.ab: n = max(n, 12 if big else 8)
            if p.w & c.c and p.w != c.c: n = max(n, 10 if big else 6)
            if p.w & c.w and p.w != c.c: n = max(n, 10 if big else 6)
        elif c.valu or c.vmem or c.ds:
            if p.w & (c.r | c.w): n = max(n, 12 if big else 8)
            if c.valu and p.c & c.w: n = max(n, 7 if big else 3)
    if p.stdata and p.stdata & c.w: n = max(n, 2)
    if p.salu and ("s", 124) in p.w and c.dma: n = max(n, 1)
    return n

class Asm:
    def __init__(self): self.lines = []
    def __call__(self, text):
        for l in text.split("\n"):
            l = l.strip()
            if l: self.lines.append(l)
    def finish(self, verbose=False):
        out = []; hist = []; npad = 0
        for l in self.lines:
            if l.startswith(";"): out.append(l); continue
            ins = Ins(l)
            if not ins.is_label:
                dist = 0; pad = 0
                for p in reversed(hist):
                    if dist >= 12: break
                    k = need(p, ins) - dist
                    if k > pad: pad = k
                    dist += p.states()
                if pad > 0:
                    nop = Ins(f"s_nop {pad-1}"); out.append("  " + nop.text); hist.append(nop); npad += pad
                    if verbose: print("pad", pad, "before", l)
                hist.append(ins)
                if len(hist) > 40: hist = hist[-20:]
                out.append("  " + l)
            else: out.append(l)
        self.npad = npad
        return "\n".join(out) + "\n"

def kdesc(name, vgpr=512, acc=256, sgpr=102):
    return f""".amdhsa_kernel {name}
  .amdhsa_next_free_vgpr {vgpr}
  .amdhsa_next_free_sgpr {sgpr}
  .amdhsa_accum_offset {acc}
  .amdhsa_group_segment_fixed_size 0
  .amdhsa_kernarg_size 88
  .amdhsa_user_sgpr_count 2
  .amdhsa_user_sgpr_kernarg_segment_ptr 1
  .amdhsa_system_sgpr_workgroup_id_x 1
  .amdhsa_float_denorm_mode_32 3
.end_amdhsa_kernel
"""

def f32(x):
    import struct
    return "0x%08x" % struct.unpack("<I", struct.pack("<f", x))[0]

def interleave(main, side, start=0, end=None, per_gap=1):
    n = len(main)
    if end is None: end = n
    slots = [[] for _ in range(n)]
    m = len(side)
    for i, s in enumerate(side):
        pos = start + (i * (end - start)) // max(m, 1)
        slots[min(pos, n - 1)].append(s)
    out = []
    for i, x in enumerate(main):
        out.append(x); out.extend(slots[i])
    return out

def resolve_vm(lines):
    out = []; hist = []; done = -1
    for l in lines:
        if l.startswith("VMRESET"): hist = []; done = -1; continue
        if l.startswith("VMFAKE"):
            _, tg, n = l.split(); hist += [{tg}] * int(n); continue
        if l.startswith("WAITVM"):
            body = l[6:].split("|"); tags = body[0].split(); extra = body[1].strip() if len(body) > 1 else ""
            n = 0; found = set(); best = None
            for ix in range(len(hist) - 1, -1, -1):
                tg = hist[ix]
                hit = [t for t in tags if t in tg]
                if hit and best is None: best = n; bix = ix
                found.update(hit)
                if "cond" not in tg: n += 1
            missing = set(tags) - found
            assert not missing, ("WAITVM tag never issued", missing)
            best = min(best, 63)
            if bix <= done:
                if extra: out.append(f"s_waitcnt {extra}")
                continue
            done = bix
            out.append(f"s_waitcnt vmcnt({best}) {extra}".strip()); continue
        if l.startswith(("buffer_", "global_")):
            tg = set(re.findall(r"@(\S+)", l.split(";", 1)[1])) if ";" in l else set()
            hist.append(tg)
            l = l.split(";")[0].strip()
        out.append(l)
    return out

def place(M, streams):
    n = len(M); slots = [[] for _ in range(n)]
    for items, start, end in streams:
        for i, it in enumerate(items):
            pos = start + (i * (end - start)) // max(len(items), 1)
            if isinstance(it, str): it = (it,)
            for k, x in enumerate(it):
                if x:
                    assert pos + k < n, (pos, k, n)
                    slots[pos + k].append(x)
    out = []
    for i in range(n):
        out.append(M[i]); out.extend(slots[i])
    return out

import subprocess, os, tempfile
def inst_sizes(text):
    d = tempfile.mkdtemp(); s = os.path.join(d, "a.s"); o = os.path.join(d, "a.o")
    open(s, "w").write(text)
    subprocess.run(["clang", "-x", "assembler", "-target", "amdgcn-amd-amdhsa", "-mcpu=gfx950", "-c", s, "-o", o], check=True)
    out = subprocess.run(["llvm-objdump", "-d", "--mcpu=gfx950", o], capture_output=True, text=True, check=True).stdout
    L = []
    for l in out.split("\n"):
        m = re.search(r"//\s*([0-9A-F]{12}):\s*((?:[0-9A-F]{8}\s*)+)", l)
        if m: L.append((int(m.group(1), 16), 4 * len(m.group(2).split())))
    return L

def add_pads(hdr, body, regions, nchain=4):
    lines = body.split("\n")
    stub = "\n".join(f"{p}_pad{k}:" for _, _, p, _ in regions for k in range(1, 17))
    noalign = "\n".join(l for l in lines if not l.startswith(".p2align"))
    sz = [s for _, s in inst_sizes(hdr + noalign + "\n" + stub + "\n")]
    out = []; i = 0; cur = None; off = 0; npad = {}; unsafe = False; pend = []
    for l in lines:
        t = l.strip()
        isins = l.startswith("  ") and t
        for r in regions:
            if t == r[0] + ":": cur = r; off = 0; npad[r[2]] = 0
            if t == r[1] + ":": cur = None
        if isins:
            if cur and not unsafe and off >= 4096 * (npad[cur[2]] + 1):
                assert off - 4096 * (npad[cur[2]] + 1) < 56, off
                npad[cur[2]] += 1; out.append(f"{cur[2]}_pad{npad[cur[2]]}:"); out.append(("PAD", cur, npad[cur[2]])); off += 4
            if t.startswith(("s_mov_b32 exec_lo, s", "s_mov_b64 exec, 0")) and t != "s_mov_b64 exec, 0x101": unsafe = True
            if t.startswith("s_mov_b64 exec, -1"): unsafe = False
            off += sz[i]; i += 1
        out.append(l)
    assert i == len(sz), (i, len(sz))
    res = []
    for l in out:
        if isinstance(l, tuple):
            _, r, k = l
            res.append(f"  s_cbranch_execz {r[2]+'_pad'+str(k+4) if 5 <= k <= 8 and k + 4 <= npad[r[2]] else r[3] + str(0 if k < 5 else (1 if k < 13 else 2))}")
        else:
            m = re.fullmatch(r"(\s*s_c?branch\S*) (\w+)_pad(\d+)", l)
            if m and int(m.group(3)) > npad[m.group(2)]: l = f"{m.group(1)} {m.group(2)}_ret{2 if int(m.group(3)) > 12 else 1}"
            res.append(l)
    assert all(n <= 16 for n in npad.values()), npad
    return "\n".join(res), npad
```

```python
import sys, math
from asmlib import *
NAME = "parallel_sum__sliding_local_dilated__dense_activation_gelu__prompt"
MB = 1 << 20
WS_A2 = 8 * MB; WS_XCH = 32 * MB; WS_ST = 48 * MB
O_ST, O_CS, O_FL, O_XF = 0, 16384, 262144, 524288
A2S = 144 * 1024
class C:
    FINE = False; PROBE = None; names = []; allnames = {}
    NFL = 2; A_AUX = "sc1"; ST_AUX = "sc1"; OUT_AUX = "sc1"; PF = True; CPF = True; CPH = False; PAD = True; ROT = True; PRE = 0; STJ = (1, 1); PF0 = (6, 4); NOROT = False
    SPIN = 1 << 16; DA = 4; NW = (14, 13); BM = 0; marg = {}; CAPW = 7; SWF = 6; GLAST = True; XU = 3; YCHK = 3; CAPN = 3; NPRE = 7; NA0 = (2, 2); RP = None; XCHK = 2; XSL = 1; XD = 3; YD = 3; KB = 2; D0 = 1; QS = 12; B0 = -2.0; EXP = 0; XR = 1; SM = 6.0
XS = lambda s: s * 34816
WB = 69632
TB = 155648
T_CS, T_B1, T_B2 = TB + 2560, TB + 3584, TB + 4608
NB = 9
BS = lambda j: ((j + 6) % NB) * 16384
R = lambda d: f"v[{d}:{d+3}]"
aR = lambda d: f"a[{d}:{d+3}]"
Pn = lambda r: f"v[{r}:{r+1}]"
MF = "v_mfma_f32_16x16x32_bf16"
cvt = lambda d, s: f"v_cvt_pk_bf16_f32 v{d}, v{s}, v{s+1}"
srd = lambda r, n: f"s_mov_b32 s{r+2}, {n}\ns_mov_b32 s{r+3}, 0x20000"
add64 = lambda r, x: f"s_add_u32 s{r}, s{r}, {x}\ns_addc_u32 s{r+1}, s{r+1}, 0"
sub64 = lambda r, x: f"s_sub_u32 s{r}, s{r}, {x}\ns_subb_u32 s{r+1}, s{r+1}, 0"

def ts(name):
    if not C.FINE or (C.FINE == 2 and name not in ("RTstart", "RTend", "x")) or (C.FINE == 3 and name[:2] != "RT" and name != "x"): return ""
    i = len(C.names); C.names.append(name)
    t = f"s_waitcnt lgkmcnt(0)\nv_writelane_b32 v1, s100, {i-1}\n" if i else ""
    return t + ("s_memrealtime s[100:101]" if name.startswith("RT") else "s_memtime s[100:101]")
def stamp_out(A):
    if not C.FINE: return
    A(ts("st")); A("s_waitcnt vmcnt(0)"); A(ts("end")); A(ts("RTend")); A(ts("x")); C.names.pop()
    if C.PROBE:
        a, b, wg = C.PROBE; C.uid = getattr(C, "uid", 0) + 1; u = C.uid
        if a in C.names and b in C.names:
            A(f"s_waitcnt lgkmcnt(0)\ns_cmp_lg_u32 s37, {wg*4}\ns_cbranch_scc1 Lpr{u}e\nv_readlane_b32 s4, v1, {C.names.index(b)}\nv_readlane_b32 s5, v1, {C.names.index(a)}\ns_memrealtime s[8:9]\ns_sub_u32 s4, s4, s5\n{'s_lshl_b32 s4, s4, 1' if a.startswith('RT') else 's_lshr_b32 s4, s4, 2'}\ns_add_u32 s4, s4, 1000\ns_min_u32 s4, s4, 100000")
            A(f"Lpr{u}:\ns_memrealtime s[6:7]\ns_waitcnt lgkmcnt(0)\ns_sub_u32 s6, s6, s8\ns_cmp_lt_u32 s6, s4\ns_cbranch_scc1 Lpr{u}\nLpr{u}e:")
        return
    A("s_load_dwordx2 s[4:5], s[0:1], 80\ns_waitcnt lgkmcnt(0)\n" + add64(4, WS_ST + 0x40000))
    A("s_lshl_b32 s6, s2, 2\ns_add_u32 s6, s6, s20\ns_lshl_b32 s6, s6, 8\nv_lshl_add_u32 v0, v2, 2, s6\nglobal_store_dword v0, v1, s[4:5]")
def emit(A, L):
    for d in L:
        if isinstance(d, str): A(d)
        else:
            for x in d:
                if x: A(x)
def lines(s): return [l for l in s.split("\n") if l.strip()]

def spin(slow, name, loads, test):
    slow.append(f"{name}_slow:\ns_mov_b32 s39, {C.SPIN}\n{name}_spin:\ns_sleep 8\n{loads}\ns_waitcnt vmcnt(0)\n{test}\ns_cbranch_vccz {name}_back\n"
                f"s_sub_u32 s39, s39, 1\ns_cmp_lg_u32 s39, 0\ns_cbranch_scc1 {name}_spin\ns_branch {name}_back")
    return f"{test}\ns_cbranch_vccnz {name}_slow\n{name}_back:"

def g2_steps(att):
    f = abs(C.NFL) // 2; no = C.NW[att] - 12
    pair = lambda i, lo, hi: int((i ^ 1) in range(lo, hi))
    wide = [("h", 3 * i + l, (3, 93, 12), 1 + l, i & 1, True) for l in range(3) for i in range(4)]
    wide += [("o", i, (pair(i, 0, no), 93, 4), 0, i & 1, True) for i in range(no)]
    nar = [("o", 8 * b + i, (pair(i, no, 4), 92, 4), 0, i & 1, False) for b in range(2) for i in range(no, 4)]
    nar += [("h", 48 + u, (pair(u, f, 4), 92, 4), 0, u & 1, False) for u in range(f, 4)]
    if f and att == (C.NFL < 0): nar += [("h", 48 + u + 4 * b, None, 0, 0, False) for u in range(f) for b in range(2)]
    return wide + nar

def role(A, att):
    P = "La" if att else "Lg"
    slow = []
    stride = 6144 if att else 7168
    nblk = 7 if att else 6
    A("VMRESET")
    C.names = list(C.common); C.allnames[att] = C.names
    A("VMFAKE x0 4\nVMFAKE w0 3")
    def dma_x(j):
        L = []
        for i in range(4):
            for b0 in range(2):
                L.append((f"s_add_u32 m0, s{84+i}, {XS(j%2)}" if b0 == 0 else None, f"buffer_load_dwordx4 v16, s[4:7], s{80+i} offen offset:{b0*2048} lds ; @x{j}"))
        if att: L.append((f"s_add_u32 m0, s28, {XS(j%2)}", f"buffer_load_dwordx4 v17, s[4:7], 0 offen lds ; @x{j}"))
        L[-1] += (add64(4, 128) + ("\n" + sub64(4, "s64") if j == 7 else ""),)
        return L
    def dma_w(j):
        L = [(f"s_add_u32 m0, s{88+k}, {(j%3)*28672}", f"buffer_load_dwordx4 v{18+k//3}, s[8:11], s{94+k%3} offen lds ; @w{j}") for k in range(6)]
        L[-1] += (add64(8, 64 * stride) + ("\n" + sub64(8, "s65") if j == 7 else ""),)
        if att: L.append((f"s_add_u32 m0, s27, {(j%3)*28672 + 6144}", f"buffer_load_dwordx4 v20, s[68:71], 0 offen lds ; @w{j}", add64(68, 64 * 7168) + ("\n" + sub64(68, "s97") if j == 7 else "")))
        return L
    A(f".p2align 12\n{P}_base:\ns_load_dwordx2 s[52:53], s[0:1], {64 if att else 56}")
    A("v_lshrrev_b32 v5, 5, v2\nv_and_b32 v6, 3, v2")
    if att:
        A("s_lshl_b32 s28, s22, 10\ns_lshl_b32 s29, s22, 11\ns_cmp_eq_u32 s23, 0\ns_cselect_b32 s30, 32768, 0\ns_add_u32 s29, s29, s30\nv_add_u32 v17, s29, v17\ns_add_u32 s28, s28, 32768")
        A("v_lshrrev_b32 v24, 2, v2\nv_xor_b32 v25, v5, v6\ns_lshl_b32 s29, s20, 4\nv_add_u32 v24, s29, v24\nv_mul_u32_u24 v24, 7168, v24\nv_lshl_add_u32 v20, v25, 4, v24")
        A(f"s_mul_i32 s39, s3, {512*7168}\ns_lshl_b32 s38, s24, 6\ns_add_u32 s39, s39, s38\ns_add_u32 s39, s39, 6144\n" + add64(68, "s39") + "\n" + srd(68, 64 * 7168))
    A(f"s_mov_b32 s78, {P}_end-{P}_base")
    A("s_lshr_b32 s29, s2, 4\ns_lshl_b32 s29, s29, 2\ns_add_u32 s29, s29, s20\ns_lshl_b32 s29, s29, 10\nv_and_b32 v24, 7, v2\nv_lshl_add_u32 v23, v24, 7, s29")
    if C.CPF: A("buffer_load_dword a141, v23, s[76:79], 0 offen")
    A(f"s_lshl_b32 s64, s3, 11\ns_mul_i32 s65, s3, {1024*stride}\ns_mul_i32 s97, s3, {1024*7168}")
    A("v_and_b32 v27, 6, v4\nv_xor_b32 v27, v27, v3\nv_lshlrev_b32 v27, 4, v27\nv_lshl_add_u32 v28, v4, 7, v27")
    A("s_lshl_b32 s29, s21, 14\nv_add_u32 v8, s29, v28\nv_xor_b32 v9, 64, v8")
    if att:
        A("v_add_u32 v21, 32768, v28\nv_or_b32 v28, 0x400, v28\nv_lshrrev_b32 v27, 3, v4\nv_lshl_add_u32 v28, v27, 11, v28\nv_add_u32 v28, 12288, v28")
        A("s_cmp_eq_u32 s21, 0\ns_cselect_b64 vcc, -1, 0\nv_cndmask_b32 v21, v28, v21, vcc\nv_xor_b32 v22, 64, v21")
    xo_base = "s_lshl_b32 s29, s25, 2\ns_add_u32 s29, s29, s20\ns_lshl_b32 s29, s29, 16\ns_lshl_b32 s39, s26, 8\ns_add_u32 s29, s29, s39"
    if not att: A(xo_base + "\nv_lshl_add_u32 v21, v4, 12, s29\nv_lshl_add_u32 v21, v3, 4, v21")
    A("v_bfe_u32 v27, v2, 2, 2\nv_and_b32 v28, 1, v3")
    A(f"v_mul_u32_u24 v29, 7168, v5\nv_add_u32 v29, {WB}, v29")
    A("v_mul_u32_u24 v23, 3072, v28\nv_add_u32 v23, v29, v23\nv_lshl_add_u32 v23, v27, 7, v23\nv_lshl_add_u32 v23, v6, 3, v23")
    A("v_lshrrev_b32 v24, 1, v27\nv_lshl_or_b32 v24, v28, 1, v24\ns_lshl_b32 s29, s22, 1\nv_xor_b32 v24, s29, v24")
    A("v_lshl_add_u32 v10, v24, 5, v23\nv_xor_b32 v11, 32, v10\nv_add_u32 v13, 57344, v10\nv_add_u32 v14, 57344, v11")
    A("s_and_b32 s38, s23, 3\ns_lshl_b32 s38, s38, 1\ns_add_u32 s38, s38, s21")
    A("s_min_u32 s39, s38, 5\ns_and_b32 s29, s39, 1\ns_lshl_b32 s29, s29, 5\nv_xor_b32 v23, s29, v10\ns_lshr_b32 s29, s39, 1\ns_lshl_b32 s29, s29, 10\nv_add_u32 v23, s29, v23\nv_add_u32 v24, 512, v23")
    A("s_and_b32 s29, s39, 6\ns_add_u32 s29, s29, s22\ns_lshl_b32 s29, s29, 1\ns_and_b32 s39, s39, 1\ns_add_u32 s29, s29, s39\ns_lshl_b32 s29, s29, 4\nv_add_u32 v31, s29, v4")
    if att:
        A("v_lshl_add_u32 v25, v28, 3, v27\nv_lshl_add_u32 v25, v25, 6, v29\nv_add_u32 v25, 6144, v25")
        A("v_and_b32 v26, 2, v6\nv_add_u32 v26, s22, v26\nv_xor_b32 v26, v26, v28\nv_lshl_add_u32 v25, v26, 4, v25")
        A("v_and_b32 v26, 1, v6\nv_lshl_add_u32 v12, v26, 3, v25\nv_add_u32 v15, 57344, v12\nv_add_u32 v25, 256, v12")
        A("v_and_b32 v26, 8, v4\nv_add_u32 v26, v26, v4\ns_lshl_b32 s29, s22, 3\ns_add_u32 s29, s29, 192\nv_add_u32 v26, s29, v26")
        A("s_cmp_ge_u32 s38, 6\ns_cselect_b64 vcc, -1, 0\nv_cndmask_b32 v23, v23, v12, vcc\nv_cndmask_b32 v24, v24, v25, vcc\nv_cndmask_b32 v31, v31, v26, vcc")
    A("v_add_u32 v25, 57344, v23\nv_add_u32 v26, 57344, v24")
    A(f"s_lshl_b32 s66, s24, 12\ns_add_u32 s66, s66, {O_CS + (0 if att else 65536)}\ns_lshr_b32 s29, s23, 2\ns_lshl_b32 s29, s29, 11\ns_add_u32 s29, s29, s66\nv_lshl_add_u32 v31, v31, 3, s29")
    A(f"s_cmp_lt_u32 s38, {nblk}\ns_cselect_b32 s38, 0xffff, 0")
    A("s_lshl_b32 s29, s23, 1\ns_add_u32 s29, s29, s21\ns_lshl_b32 s29, s29, 8\ns_lshl_b32 s39, s24, 1\ns_add_u32 s39, s39, s22\ns_lshl_b32 s39, s39, 2\ns_add_u32 s29, s29, s39")
    A(f"s_lshr_b32 s67, s2, 1\ns_lshl_b32 s67, s67, 2\ns_add_u32 s67, s67, s20\ns_lshl_b32 s67, s67, 7\ns_add_u32 s67, s67, {O_XF}")
    if att: A(f"s_add_u32 s29, s29, {O_FL}\nv_mov_b32 v29, s29")
    else: A(f"s_add_u32 s29, s29, {O_FL + 4096}\nv_lshl_add_u32 v29, v6, 12, s29\nv_writelane_b32 v29, s67, 3")
    A(f"s_lshl_b32 s99, s2, 2\ns_add_u32 s99, s99, s20\ns_lshl_b32 s99, s99, 7\ns_add_u32 s99, s99, {O_XF + 131072}\nv_writelane_b32 v29, s99, {1 if att else 4}")
    A("s_mov_b32 s12, s16\ns_mov_b32 s13, s17\ns_mov_b32 s56, s16\ns_mov_b32 s57, s17")
    for r, n in ((16, MB), (40, 2 * MB), (44, 7 * MB), (48, 256), (52, 4 * MB if att else 2048), (60, 4 * MB), (72, 7168), (56, 16 * MB)): A(srd(r, n))
    A(add64(56, WS_XCH))
    A("s_lshl_b32 s29, s2, 2\ns_add_u32 s37, s29, s20\ns_lshl_b32 s29, s37, 1\nv_lshrrev_b32 v30, 3, v4\nv_add_u32 v30, s29, v30\nv_and_b32 v27, 7, v2\nv_lshl_add_u32 v27, v3, 3, v27\nv_lshlrev_b32 v27, 4, v27\nv_lshl_add_u32 v27, v30, 11, v27")
    A("v_lshlrev_b32 v7, 4, v2\nv_mov_b32 v35, 1\nv_mov_b32 v34, 0\nv_mov_b32 v32, 0\nv_mov_b32 v33, 0\nv_lshlrev_b32 v30, 3, v30\ns_lshl_b32 s29, s20, 4\nv_add_lshl_u32 v6, s29, v4, 7")
    for i in range(4): A(f"v_accvgpr_write_b32 a{136+i}, s33")
    A("s_waitcnt lgkmcnt(0)")
    A(ts("setup"))
    def pads(c):
        if not C.PAD: return
        k0 = [1, 5, 13][c]
        A("s_mov_b64 exec, 0")
        for w in range(3): A(f"s_cmp_eq_u32 s20, {w}\ns_cbranch_scc1 {P}_pad{k0+w}")
        A(f"s_branch {P}_pad{k0+3}\n{P}_ret{c}:\ns_mov_b64 exec, -1")
    emit(A, dma_w(0)[3:] + dma_x(0)[4:])
    stl = [(None, f"buffer_load_dwordx4 {aR(144+4*i)}, v27, s[60:63], 0 offen offset:{512*i} ; @st") for i in range(4)]
    emit(A, dma_x(1))
    A(ts("issued")); pads(0)

    acc = lambda m, n: 64 + 4 * (6 * m + n)
    xf = lambda p, i: aR(64 * p + 4 * i)
    wf = lambda p, n: aR(64 * p + 32 + 4 * n)
    def reads(j, kk):
        p = kk; L = []; u = j % 3; hiw = u == 2
        wreg = 13 if hiw else 10; wo = (0 if hiw else u * 28672) + kk * 14336
        def wr(n):
            b = 64 * p + 32 + 4 * n
            if n < 6: return [f"ds_read_b64_tr_b16 a[{b+2*h}:{b+2*h+1}], v{wreg+(n&1)} offset:{wo + h*512 + (n>>1)*1024}" for h in range(2)]
            return [f"ds_read_b64_tr_b16 a[{b+2*h}:{b+2*h+1}], v{wreg+2} offset:{wo + h*256}" for h in range(2)]
        xr = lambda i: f"ds_read_b128 {xf(p,i)}, v{8+kk} offset:{XS(j%2) + i*2048}"
        L.append(xr(0))
        for n in range(nblk): L += wr(n)
        for i in range(1, 8): L.append(xr(i))
        if att: L.append(f"ds_read_b128 {wf(p,7)}, v{21+kk} offset:{XS(j%2)}")
        if j < 8: L += [f"ds_read_b64_tr_b16 a[{128+4*p+2*h}:{129+4*p+2*h}], v{(25 if hiw else 23)+h} offset:{wo}" for h in range(2)]
        return L
    def mfmas(j, p):
        first = j == 0 and p == 0; L = []
        for m in range(8):
            for n in (range(nblk) if m % 2 == 0 else reversed(range(nblk))):
                d = R(acc(m, n)) if n < 6 else aR(176 + 4 * m)
                a, b = wf(p, n), xf(p, m)
                if att and n in (4, 5): a, b = b, a
                L.append(f"{MF} {d}, {a}, {b}, {'0' if first else d}")
        if att:
            for i in range(4):
                a, b = wf(p, 2 + i), wf(p, 7); d = R(48 + 4 * i)
                if i >= 2: a, b = b, a
                L.append(f"{MF} {d}, {a}, {b}, {'0' if first else d}")
        if j < 8: L.append(f"{MF} v[36:39], a[136:139], {aR(128+4*p)}, {'0' if first else 'v[36:39]'}")
        return L
    def pf(i):
        if not C.PF or i > 8: return []
        if i < 7: return [(f"s_mul_i32 s29, s37, 7168\ns_add_u32 s29, s29, {1024*i}", "buffer_load_dwordx4 a[140:143], v7, s[44:47], s29 offen")]
        return [("s_lshl_b32 s29, s37, 11", f"buffer_load_dwordx4 a[140:143], v7, s[40:43], s29 offen offset:{1024*(i-7)}")]
    cpf = lambda lab, k=0, dst="a141": [(f"s_mov_b32 s29, {lab}-{P}_base+{8192*k}", f"buffer_load_dword {dst}, v6, s[76:79], s29 offen")] if C.CPF else []
    stm = []
    for i in range(4):
        stm += [f"{MF} v[40:43], a[136:139], {aR(144+4*i)}, {'v[40:43]' if i else '0'}", f"{MF} v[44:47], {aR(144+4*i)}, {aR(144+4*i)}, {'v[44:47]' if i else '0'}"]
    dpp = lambda v, m: f"v_add_f32_dpp v{v}, v{v}, v{v} {m} row_mask:0xf bank_mask:0xf"
    rnd = lambda v: [f"v_cvt_pk_bf16_f32 v{v}, v{v}, v{v}", f"v_and_b32 v{v}, 0xffff0000, v{v}"]
    st1 = ["v_lshlrev_b32 v41, 2, v3", "v_sub_u32 v41, v4, v41"]
    for q in range(4): st1 += [f"v_cmp_eq_u32 vcc, {q}, v41", dpp(40, ["quad_perm:[1,0,3,2]", "quad_perm:[2,3,0,1]", "row_half_mirror"][q]) if q < 3 else f"v_mul_f32 v40, {f32(1/1024)}, v40",
                               f"v_cndmask_b32 v42, {'v42' if q else '0'}, v{44+q}, vcc"]
    st1 += [dpp(42, "quad_perm:[1,0,3,2]"), "v_mul_f32 v41, v40, v40", dpp(42, "quad_perm:[2,3,0,1]"), rnd(40)[0], dpp(42, "row_half_mirror"), rnd(40)[1]]
    for sw in (16, 32): st1 += ["v_mov_b32 v43, v42", f"v_permlane{sw}_swap_b32 v42, v43", "v_add_f32 v42, v42, v43"]
    st2 = [f"v_mov_b32 v43, {f32(1/1024)}", "v_fma_f32 v44, v42, v43, -v41", "v_max_f32 v44, 0, v44"] + rnd(44) + [f"v_add_f32 v44, {f32(1e-5)}, v44"] + rnd(44) + ["v_sqrt_f32 v44, v44"] + rnd(44) + ["v_rcp_f32 v44, v44", "v_mul_f32 v45, v44, v40"]
    cph = lambda dst="a141": [("v_lshl_add_u32 v33, v4, 12, s99", f"buffer_load_dword {dst}, v33, s[76:79], 0 offen")] if C.CPH else []

    steps = g2_steps(att); NK = len(steps); DA = C.DA
    cls = {}
    def off(reg, tab, unit, j, imm):
        dc, sl = steps[j][2], steps[j][4]
        if dc is None: return f"s_mov_b32 s{reg}, {imm}"
        t = ""
        if cls.get((tab, sl)) != dc:
            cls[(tab, sl)] = dc
            t = f"s_mul_i32 s{tab+sl}, s{88+sl}, {dc[0]*unit}\ns_mul_i32 s{reg}, s{dc[1]}, {dc[2]*unit}\ns_add_u32 s{tab+sl}, s{tab+sl}, s{reg}\n"
        return t + f"s_add_u32 s{reg}, s{tab+sl}, {imm}"
    NW = C.NW[att]
    areg = lambda j, kk, i: 64 + 32 * (j % 4) + 16 * kk + 4 * i if j < NW else 64 + 16 * ((NW + j) % 8) + 8 * kk + 4 * i
    aprev = lambda j: j - 4 if j < NW else (NW - 4 + (j - NW) // 2 if j < NW + 8 else j - 8)
    def lda(j):
        kind, q = steps[j][:2]; ks = 2 * q + (0 if kind == "o" else 32); L = []
        for b in range(2):
            so = off(30, 80, 2048, j, ks * 1024 + b * A2S)
            for o in range(2 if steps[j][5] else 1):
                for kk in range(2):
                    L.append((so if kk + o == 0 else None, f"buffer_load_dwordx4 {aR(areg(j, kk, 2*o+b))}, v{7 if o else 16}, s[4:7], s30 offen offset:{kk*1024} {C.A_AUX} ; @a{j}"))
        return L
    def dma_b(j):
        kind, q = steps[j][:2]; L = []; sr = "s[40:43]" if kind == "o" else "s[44:47]"
        for hi in range(2):
            so = off(31, 68, 131072, j, q * 131072 + hi * 16384)
            for ln in range(2):
                L.append((f"s_add_u32 m0, s98, {BS(j) + hi*2048 + ln*896}" + ("\n" + so if ln == 0 else ""),
                          f"buffer_load_dwordx4 v19, {sr}, s31 offen offset:{128*ln} lds ; @b{j}"))
        return L
    setup_b = ["s_lshl_b32 s98, s20, 12", "v_lshrrev_b32 v18, 3, v2", "v_and_b32 v19, 7, v2", "v_and_b32 v20, 6, v18", "v_xor_b32 v19, v19, v20",
               "s_lshl_b32 s29, s20, 4\nv_add_u32 v18, s29, v18", "s_lshl_b32 s29, s26, 8\nv_lshl_add_u32 v18, v18, 11, s29", "v_lshl_add_u32 v19, v19, 4, v18",
               f"s_and_b32 s29, s25, 14\ns_lshl_b32 s29, s29, 8\ns_add_u32 s29, s29, {O_FL}", "v_and_b32 v20, 31, v2", "v_lshl_add_u32 v20, v20, 2, s29", "v_lshl_add_u32 v20, v5, 8, v20"]
    setup_d = ["s_and_b32 s92, s2, 1\ns_bfe_u32 s29, s2, 0x10004\ns_xor_b32 s29, s29, s26", f"s_and_b32 s88, s29, {C.XR}\ns_sub_u32 s89, 0, s88\ns_and_b32 s93, s2, 3"]
    setup_a = ["s_and_b32 s29, s25, 1\ns_lshl_b32 s29, s29, 2\ns_add_u32 s29, s29, s20", f"s_mul_i32 s39, s29, {2*A2S}\nv_lshl_add_u32 v16, v2, 4, s39",
               f"s_xor_b32 s29, s29, 4\ns_mul_i32 s39, s29, {2*A2S}\nv_lshl_add_u32 v7, v2, 4, s39",
               f"s_lshr_b32 s29, s25, 1\ns_mul_i32 s29, s29, {16*A2S}\ns_add_u32 s29, s29, {WS_A2}", f"s_add_u32 s4, s12, s29\ns_addc_u32 s5, s13, 0\ns_mov_b32 s6, {16*A2S}",
               f"s_lshl_b32 s29, s23, 1\ns_add_u32 s29, s29, s21\ns_mul_i32 s29, s29, {8*A2S}", f"s_add_u32 s29, s29, {WS_A2}\n" + add64(12, "s29"), srd(12, 8 * A2S),
               "s_movk_i32 s34, 0x1000\ns_movk_i32 s32, 0x2000\ns_movk_i32 s28, 0x3000"]
    c0 = -2 * math.sqrt(2 / math.pi) * math.log2(math.e); c1 = c0 * 0.044715
    sc = 32 ** -0.5 * math.log2(math.e)
    rowp = lambda dst, a, off: f"ds_read_b32 v{dst}, v{a} offset:{off}\nds_read_b32 v{dst+1}, v{a} offset:{off+1280}"
    colreads = lambda ln: [f"ds_read_b128 {R(56+4*c)}, v31 offset:{256*ln+64*c}\nds_read_b128 {R(8+4*c)}, v31 offset:{1024+256*ln+64*c}" for c in range(2)]
    epi = [f"s_lshl_b32 s29, s21, 9\ns_add_u32 s29, s29, {TB}\nv_lshl_add_u32 v30, v4, 2, s29", f"s_mov_b32 s64, {f32(c1)}\ns_mov_b32 s65, {f32(c1)}\nv_mov_b32 v0, {f32(c0)}"]
    if not att:
        epi += [rowp(40 + 2 * m, 30, 64 * m) for m in range(8)]
        epi += [f"s_lshl_b32 s29, s22, 7\ns_add_u32 s29, s29, {T_CS}\nv_lshl_add_u32 v31, v3, 4, s29"] + colreads(0)
        epi += ["s_mul_i32 s29, s24, 6\ns_add_u32 s29, s29, s22\ns_add_u32 s29, s29, 32", "s_lshl_b32 s29, s29, 10\nv_lshl_add_u32 v18, v2, 4, s29"]
    else:
        epi += ["v_lshl_add_u32 v31, v3, 4, s29", f"s_lshl_b32 s29, s22, 7\ns_add_u32 s29, s29, {T_CS}\nv_lshl_add_u32 v26, v3, 4, s29", "v_lshl_add_u32 v27, v4, 2, s29"]
        epi += [f"ds_read_b128 {R([8,12,40,44][n])}, v26 offset:{256*(n>>1)+64*(n&1)}" for n in range(4)]
        epi += ["ds_read_b32 v36, v27 offset:512\nds_read_b32 v37, v27 offset:576", rowp(22, 30, 0)]
        epi += lines("v_or_b32 v28, 8, v4\nv_and_b32 v32, 8, v4\nv_lshl_add_u32 v28, v32, 1, v28\nv_add_u32 v28, 96, v28\nv_add_u32 v32, 0x100, v4")
        epi += [f"s_cmp_eq_u32 s21, 0\ns_cselect_b64 vcc, -1, 0\ns_mov_b32 s29, {TB}", "v_cndmask_b32 v28, v28, v32, vcc", "v_lshl_add_u32 v28, v28, 2, s29"]
        epi += lines("v_and_b32 v32, 1, v3\nv_lshlrev_b32 v21, 4, v32\nv_lshl_add_u32 v32, v5, 2, v32\nv_add_u32 v32, 26, v32\nv_add_u32 v34, 64, v3\nv_cndmask_b32 v32, v32, v34, vcc\nv_lshl_add_u32 v32, v32, 4, s29")
        epi += ["v_lshl_add_u32 v21, v5, 6, v21", f"s_lshl_b32 s29, s22, 5\ns_add_u32 s29, s29, {T_CS+768}\nv_add_u32 v21, s29, v21"]
        epi += ["s_lshl_b32 s29, s24, 1\ns_add_u32 s29, s29, s22\ns_lshl_b32 s29, s29, 10", "v_lshl_add_u32 v18, v2, 4, s29"]
        epi += [f"v_mul_u32_u24 v17, {A2S}, v5", "v_and_b32 v34, 31, v2", "v_lshl_add_u32 v17, v34, 4, v17",
                "s_lshl_b32 s29, s24, 1\ns_add_u32 s29, s29, s22\ns_add_u32 s29, s29, 256", "s_lshl_b32 s29, s29, 9\nv_add_u32 v17, s29, v17"]
        epi += [f"s_mov_b32 s86, {f32(sc)}\ns_mov_b32 s87, {f32(sc)}"]

    A("WAITVM x0 w0\ns_barrier"); A(ts("land0"))
    emit(A, reads(0, 0))
    A("s_waitcnt lgkmcnt(0)")
    M = mfmas(0, 0); n = len(M)
    emit(A, place(M, [(reads(0, 1), 0, n - 10), (dma_w(1), 0, n - 20)]))
    pf0 = C.PF0[att]; STJ = C.STJ[att]; SJ = STJ + 2
    c0load = "buffer_load_dword v33, v34, s[48:51], 0 offen sc1"
    tbl = ["buffer_load_dwordx2 v[40:41], v30, s[16:19], s66 offen sc1", "buffer_load_dwordx2 v[42:43], v30, s[16:19], s66 offen offset:2048 sc1"]
    for j in range(16):
        if j < 2: pads(j + 1)
        if j < 15: A(f"WAITVM x{j+1} w{j+1}" + {SJ: " st", SJ + 2: " clr sst", 12: " c0", 13: " tb"}.get(j, "") + " | lgkmcnt(0)\ns_barrier")
        else: A("s_waitcnt lgkmcnt(0)\ns_barrier")
        A(ts(f"p{j}"))
        M = mfmas(j, 1); n = len(M); S = []; D = []
        if j < 15: S.append((reads(j + 1, 0), 0, n - 10))
        if j == SJ: M = M + stm
        if j == SJ + 1: S.append((st2, 2, 40)); S.append((["s_mov_b64 exec, 0x101\nbuffer_store_dwordx2 v[44:45], v30, s[16:19], 0 offen sc1 ; @sst\ns_mov_b64 exec, -1"], n - 5, n - 4))
        if j == 11:
            D.append((None, c0load + " ; @c0"))
            sd = [f"v_min_u32 v30, {nblk*32-1}, v0", "v_and_b32 v27, 0xe0, v0", "v_lshl_add_u32 v27, v4, 1, v27", "v_and_b32 v28, 1, v3", "v_add_u32 v27, v27, v28",
                  "s_lshl_b32 s29, s23, 8\nv_add_lshl_u32 v27, v27, s29, 3"]
            if att: sd += ["v_and_b32 v28, 7, v4", "v_lshrrev_b32 v32, 3, v4", "v_lshl_add_u32 v28, v28, 1, v32", "s_max_u32 s39, s29, 16\ns_sub_u32 s39, s39, 16\nv_add_lshl_u32 v28, v28, s39, 3",
                           "v_and_b32 v31, 31, v0", "s_lshl_b32 s29, s24, 5\ns_add_u32 s29, s29, 3072\nv_add_lshl_u32 v31, v31, s29, 1"]
            else: sd += ["s_mul_i32 s29, s24, 192\nv_add_lshl_u32 v31, v30, s29, 1", "v_and_b32 v28, 127, v0", "s_lshl_b32 s29, s26, 7\nv_add_lshl_u32 v28, v28, s29, 1"]
            sd += ["v_lshlrev_b32 v30, 3, v30", "v_lshlrev_b32 v32, 2, v0"]
            S.append((sd, 4, 40))
        if j == 12:
            S.append(([spin(slow, P + "_c0", c0load, "v_cmp_gt_u32 vcc, 0x100, v33")], 0, 1))
            D += [(None, t + " ; @tb") for t in tbl]
            D.append((None, "buffer_load_dwordx2 v[44:45], v27, s[16:19], 0 offen sc1 ; @tb"))
            D.append((None, "buffer_load_dwordx2 v[46:47], v28, s[16:19], 0 offen sc1 ; @tb" if att else "buffer_load_ushort v46, v28, s[52:55], 0 offen ; @tb"))
            D.append((None, "buffer_load_ushort v36, v31, s[72:75], 0 offen ; @tb"))
        if j == 13:
            sd = [spin(slow, P + "_cs", "\n".join(tbl), "v_and_b32 v33, v41, v43\nv_cmp_ne_u32 vcc, 1, v33"), "v_add_f32 v40, v40, v42", f"v_add_u32 v32, {TB}, v32",
                  "ds_write2st64_b32 v32, v44, v45 offset0:0 offset1:5", "v_lshlrev_b32 v36, 16, v36", "ds_write2st64_b32 v32, v40, v36 offset0:10 offset1:14"]
            if att: sd += ["v_lshlrev_b32 v32, 2, v4", f"v_add_u32 v32, {TB+1024}, v32", "ds_write2st64_b32 v32, v46, v47 offset0:0 offset1:5"]
            else: sd += ["v_lshlrev_b32 v46, 16, v46", f"ds_write_b32 v32, v46 offset:{T_B2-TB}"]
            S.append((sd + setup_b, 1, n - 2))
        if att and j in (9, 10):
            sd = [f"v_mov_b32 v27, {f32(-1e30)}", "v_lshlrev_b32 v28, 2, v3", "v_sub_u32 v28, v28, v4",
                  "s_or_b32 s29, s23, s21\ns_cmp_lg_u32 s29, 0\ns_cselect_b64 s[64:65], -1, 0"]
            for q in range(2 * (j - 9), 2 * (j - 9) + 2):
                sel = lambda k: ["v_cndmask_b32 v33, v27, 0, vcc", f"v_accvgpr_write_b32 a{160+4*k+q}, v33"]
                sd += [f"v_add_u32 v32, {7+q}, v28", "v_cmp_gt_u32 vcc, 8, v32"] + sel(0) + ["v_cmp_lt_i32 vcc, 15, v32"] + sel(1)
                sd += ["s_and_b64 vcc, vcc, s[64:65]"] + sel(3) + ["v_cmp_lt_i32 vcc, 7, v32", "s_and_b64 vcc, vcc, s[64:65]\ns_mov_b32 vcc_hi, 0"] + sel(2)
            S.append((sd, 2, n - 4))
        if j + 2 <= 15: D += dma_x(j + 2)
        if j == 0: D += dma_w(2)
        if j == 14: S.append((setup_a, 2, n - 4)); D += dma_b(1) + dma_b(2)
        if j == 15: S.append((epi, 0, n - 6)); D += dma_b(5) + dma_b(6) + (dma_b(7) if C.NPRE > 7 else [])
        S.append((D, 1, n - 6))
        emit(A, place(M, S))
        if j < 15:
            A("s_waitcnt lgkmcnt(0)")
            M = mfmas(j + 1, 0); n = len(M); S = [(reads(j + 1, 1), 0, n - 10)]; D = []
            if j + 3 <= 15: D += dma_w(j + 3)
            if j == STJ: D += stl
            if j == 1:
                D.append((f"s_mov_b64 exec, {3 if att else 31}\nbuffer_store_dword v32, v29, s[16:19], 0 offen sc1 ; @clr\ns_mov_b64 exec, -1", None))
                D.append((f"s_mov_b32 exec_lo, s38\ns_mov_b32 exec_hi, 0\ns_cbranch_execz {P}_ncl\nbuffer_store_dwordx2 v[32:33], v31, s[16:19], 0 offen sc1 ; @cond\n{P}_ncl:\ns_mov_b64 exec, -1", None))
            if j == SJ: S.append((st1, 4, n - 1))
            if j in (2, 4, 6, 8, 10): D += cph()
            if not att and 3 <= j <= 10: D.append((None, f"buffer_load_dwordx4 {aR(208+4*(j-3))}, v21, s[60:63], 0 offen offset:{2048*((j-3)>>2)+64*((j-3)&3)}"))
            if j in (SJ + 2, SJ + 3):
                D.append((f"s_bfe_u32 s29, s2, 0x10004\ns_lshl_b32 s39, s20, 1\ns_add_u32 s29, s29, s39\ns_cmp_eq_u32 s29, {j-SJ-2}\ns_cbranch_scc0 {P}_na{j}\ns_mov_b64 exec, 1\n"
                          f"buffer_atomic_add v35, v34, s[48:51], 0 offen sc1 ; @cond\ns_mov_b64 exec, -1\n{P}_na{j}:", None))
            if j >= pf0: D += pf(2 * (j - pf0)) + pf(2 * (j - pf0) + 1)
            if j == 7: D.append((f"v_mov_b32 v37, 1\ns_mov_b32 exec_lo, s38\ns_mov_b32 exec_hi, 0\ns_cbranch_execz {P}_ncs\nbuffer_store_dwordx2 v[36:37], v31, s[16:19], 0 offen sc1 ; @cond\n{P}_ncs:\ns_mov_b64 exec, -1", None))
            if j == 12: D += cpf(P + "_epi", 0) + cpf(P + "_epi", 1)
            if j == 13: D += [tuple(setup_d)] + dma_b(0) + cpf(P + "_epi", 2)
            if j == 14: D += dma_b(3) + dma_b(4)
            S.append((D, 0, n - 6))
            emit(A, place(M, S))
    A(ts("g1end")); A(ts("RTg1")); A(ts("e0"))
    A(f"{P}_epi:")
    flag = lambda lane: f"s_mov_b64 exec, {1<<lane}\nbuffer_store_dword v35, v29, s[16:19], 0 offen sc1\ns_mov_b64 exec, -1"
    poll = lambda kind: f"buffer_load_dword v33, v20, s[16:19], {['0','s34','s32','s28'][kind]} offen sc1"
    ptest = "v_cmp_eq_u32 vcc, 0, v33"
    acc2 = lambda m, n: 64 + 32 * m + 4 * n
    G2A = 232
    g2_addr = lines("v_bfe_u32 v244, v2, 2, 3\nv_and_b32 v245, 3, v2\nv_lshlrev_b32 v246, 11, v5\nv_lshl_add_u32 v246, v244, 7, v246\nv_lshl_add_u32 v246, v245, 3, v246\n"
                    f"v_lshrrev_b32 v244, 1, v244\nv_lshl_add_u32 v{G2A}, v244, 5, v246\nv_add_u32 v{G2A+4}, 0x10000, v{G2A}") + [f"v_xor_b32 v{G2A+4+c}, {32*c}, v{G2A+4}" for c in (1, 2, 3)]
    g2_addr2 = [f"v_add_u32 v{G2A+8+c}, 0x10000, v{G2A+4+c}" for c in range(4)] + [f"v_xor_b32 v{G2A+c}, {32*c}, v{G2A}" for c in (1, 2, 3)]
    def reads2(j, kk):
        st = BS(j); w = G2A + 4 * (st >> 16); st &= 0xffff
        return [f"ds_read_b64_tr_b16 a[{32*kk+4*n+2*h}:{32*kk+4*n+2*h+1}], v{w+(n&3)} offset:{st + (2*kk+h)*4096 + (n>>2)*1024}" for n in range(8) for h in range(2)]
    def gelu8(t, rs, cs, b1):
        u = [22, 24, 26, 38]; L = []
        for i in range(4): L.append(f"v_pk_fma_f32 {Pn(u[i])}, {Pn(cs[i])}, {Pn(rs[i])}, {Pn(b1[i])} op_sel:[0,1,0] op_sel_hi:[1,1,1] neg_lo:[0,1,0] neg_hi:[0,1,0]")
        for i in range(4): L.append(f"v_pk_fma_f32 {Pn(t[i])}, {Pn(t[i])}, {Pn(rs[i])}, {Pn(u[i])} op_sel_hi:[1,0,1]")
        for i in range(4): L.append(f"v_pk_mul_f32 {Pn(u[i])}, {Pn(t[i])}, {Pn(t[i])}")
        for i in range(4): L.append(f"v_pk_fma_f32 {Pn(u[i])}, {Pn(u[i])}, s[64:65], v[0:1] op_sel_hi:[1,1,0]")
        for i in range(4): L.append(f"v_pk_mul_f32 {Pn(u[i])}, {Pn(u[i])}, {Pn(t[i])}")
        for i in range(8): L.append(f"v_exp_f32 v{u[i>>1]+(i&1)}, v{u[i>>1]+(i&1)}")
        for i in range(4): L.append(f"v_pk_add_f32 {Pn(u[i])}, {Pn(u[i])}, 1.0 op_sel_hi:[1,0]")
        for i in range(8): L.append(f"v_rcp_f32 v{u[i>>1]+(i&1)}, v{u[i>>1]+(i&1)}")
        for i in range(4): L.append(f"v_pk_mul_f32 {Pn(u[i])}, {Pn(u[i])}, {Pn(t[i])}")
        for i in range(4): L.append(cvt(t[0] + i, u[i]))
        return L
    start2 = ["WAITVM b0 b1\ns_barrier"] + reads2(0, 0)
    A0 = lda(0)
    if not att:
        for ln in range(3):
            A("s_waitcnt lgkmcnt(0)")
            for m in range(8):
                if m in (0, 4): A(ts(f"L{ln}m{m}"))
                d = acc(m, 2 * ln)
                G = gelu8([d, d + 2, d + 4, d + 6], [40 + 2 * m] * 4, [56, 58, 60, 62], [8, 10, 12, 14]); S = []
                if m == 7 and ln < 2: S.append((colreads(ln + 1), 6, 8))
                if ln == 0 and m == 2 and C.NPRE > 8: S.append((dma_b(8), 2, 40))
                if ln == 1 and m == 3: S.append((["WAITVM h0\n" + flag(0)], 2, 3))
                if ln == 2:
                    if m == 0: emit(A, g2_addr)
                    if m == 2: S.append(([poll(1) + " ; @p1"], 2, 3))
                    if m == 4: S.append((["WAITVM p1 h1\n" + flag(1) + "\n" + spin(slow, P + "_f1", poll(1), ptest)] + A0[:4], 30, 44))
                    if m == 5: S.append((A0[4:], 2, 44))
                    if m == 6: S.append(([f"s_mov_b32 s29, {T_B2}\nv_lshl_add_u32 v32, v3, 4, s29"] + [f"ds_read_b128 {R(acc2(1,n))}, v32 offset:{64*n}" for n in range(8)], 2, 30))
                    if m == 7: S.append((start2, 2, 40))
                emit(A, place(G, S))
                A(f"s_mov_b32 s29, {m*A2S + ln*2048}\nbuffer_store_dwordx4 {R(d)}, v18, s[12:15], s29 offen {C.ST_AUX} ; @h{ln}")
    else:
        tmp = [26, 38, 46 - 40, 34]
        tmp = [26, 38, 26, 38]
        for m in range(9):
            A("s_waitcnt lgkmcnt(0)")
            if m < 8: A(rowp(22 + 2 * ((m + 1) & 1), 28 if m == 7 else 30, 64 * ((m + 1) & 7)))
            else: A("ds_read_b128 v[8:11], v32\nds_read_b128 v[12:15], v32 offset:1280")
            rs = Pn(22 + 2 * (m & 1))
            for part in ((0, 1) if m < 8 else (1,)):
                src = (acc(m, 0) + 8 * part) if m < 8 else 48; dst = (acc(m, 0) + 4 * part) if m < 8 else 48; cs = [8, 40][part]
                for i in range(4): A(f"v_pk_mul_f32 {Pn(src+2*i)}, {Pn(src+2*i)}, {rs} op_sel_hi:[1,0]")
                for i in range(4): A(f"v_pk_fma_f32 {Pn(src+2*i)}, {Pn(cs+2*i)}, {rs}, {Pn(src+2*i)} op_sel:[0,1,0] op_sel_hi:[1,1,1] neg_lo:[0,1,0] neg_hi:[0,1,0]")
                for i in range(4): A(cvt(dst + i, src + 2 * i))
        A(ts("v"))
        order = [8] + list(range(8))
        for k, m in enumerate(order):
            A("s_waitcnt lgkmcnt(0)")
            b = k & 1
            if k < 8: A(f"ds_read_b128 {R([8,40][1-b])}, v31 offset:{64*k}\nds_read_b128 {R([12,44][1-b])}, v31 offset:{64*k+1280}")
            rs, mr = [8, 40][b], [12, 44][b]
            src = 56 if m == 8 else acc(m, 4)
            for i in range(4): A(f"v_pk_mul_f32 {Pn(src+2*i)}, {Pn(src+2*i)}, {Pn(rs+2*(i&1))}")
            for i in range(4): A(f"v_pk_fma_f32 {Pn(src+2*i)}, {Pn(mr+2*(i&1))}, v[36:37], {Pn(src+2*i)} op_sel:[0,{i>>1},0] op_sel_hi:[1,{i>>1},1] neg_lo:[0,1,0] neg_hi:[0,1,0]")
            for i in range(4):
                db, h = i >> 1, i & 1
                if m == 8: dsts = [acc(0, 2 + db) + h, acc(1, 2 + db) + h]
                else: dsts = [acc(m, 2 + db) + 2 + h] + ([acc(m + 2, 2 + db) + h] if m < 6 else [])
                for d in dsts: A(cvt(d, src + 2 * i))
        A(ts("s"))
        mk = [8, 12, 40, 44]
        for k in range(4):
            for q in range(4): A(f"v_accvgpr_read_b32 v{mk[k]+q}, a{160+4*k+q}")
        def smf(m): return [f"{MF} {R(acc(m,4))}, {R(48 if m < 2 else acc(m-2,1))}, {R(acc(m,0))}, {R(mk[2+m] if m < 2 else mk[1])}",
                            f"{MF} {R(acc(m,5))}, {R(acc(m,1))}, {R(acc(m,0))}, {R(mk[0])}"]
        def smax(m):
            s = acc(m, 4); mx = 22 + 2 * (m & 1); q = acc(m, 0)
            L = [f"v_max3_f32 v{mx}, v{s}, v{s+1}, v{s+2}", f"v_max3_f32 v{mx+1}, v{s+3}, v{s+4}, v{s+5}", f"v_max3_f32 v{mx}, v{mx}, v{s+6}, v{s+7}", f"v_max_f32 v{mx}, v{mx}, v{mx+1}"]
            for sw in (16, 32): L += [f"v_mov_b32 v{mx+1}, v{mx}", f"v_permlane{sw}_swap_b32 v{mx}, v{mx+1}", f"v_max_f32 v{mx}, v{mx}, v{mx+1}"]
            L.append(f"v_mul_f32 v{mx}, s86, v{mx}")
            for i in range(4): L.append(f"v_pk_fma_f32 {Pn(s+2*i)}, {Pn(s+2*i)}, s[86:87], {Pn(mx)} op_sel_hi:[1,1,0] neg_lo:[0,0,1] neg_hi:[0,0,1]")
            for i in range(8): L.append(f"v_exp_f32 v{s+i}, v{s+i}")
            for i in range(4): L.append(cvt(q + i, s + 2 * i))
            return L
        def pvf(m):
            q = acc(m, 0)
            return [f"{MF} {R(acc(m,4))}, {R(acc(m,2))}, {R(q)}, 0", f"{MF} {R(acc(m,5))}, {R(acc(m,3))}, {R(q)}, 0", f"{MF} {R(acc(m,2))}, a[136:139], {R(q)}, 0"]
        def fin(m):
            s = acc(m, 4); l = acc(m, 2); q = acc(m, 0)
            L = [f"v_rcp_f32 v{l}, v{l}"]
            for i in range(4): L.append(f"v_pk_mul_f32 {Pn(s+2*i)}, {Pn(s+2*i)}, {Pn(l)} op_sel_hi:[1,0]")
            for i in range(4): L.append(cvt(q + i, s + 2 * i))
            L.append(f"s_mov_b32 s29, {m*A2S}\nbuffer_store_dwordx4 {R(q)}, v18, s[12:15], s29 offen {C.ST_AUX} ; @o")
            return L
        zp = lambda a, b: [x for p in zip(a, b) for x in p]
        emit(A, smf(0) + smf(1))
        for i in range(8): A(f"v_accvgpr_read_b32 v{52+i}, a{176+i}")
        for mp in range(4):
            G = zp(smax(2 * mp), smax(2 * mp + 1)); S = []
            if mp < 3: S.append((smf(2 * mp + 2) + smf(2 * mp + 3), 22, 38))
            if mp > 0: S.append((pvf(2 * mp - 2) + pvf(2 * mp - 1), 1, 19))
            if mp == 0 and C.NPRE > 8: S.append((dma_b(8), 2, 20))
            if mp == 1: S.append(([rowp(40 + 2 * m, 30, 64 * m) for m in range(4)], 40, 50))
            if mp == 2: S.append(([poll(1) + " ; @p1"], 40, 41))
            if mp == 3: S.append((["ds_read_b128 v[8:11], v21\nds_read_b128 v[12:15], v21 offset:1024"] + [rowp([48, 50, 60, 62][m], 30, 256 + 64 * m) for m in range(4)], 40, 50))
            emit(A, place(G, S))
            if mp > 0: emit(A, zp(fin(2 * mp - 2), fin(2 * mp - 1)))
        A(ts("h"))
        A("s_waitcnt lgkmcnt(0)")
        rp = [40, 42, 44, 46, 48, 50, 60, 62]
        for mp in range(4):
            d = 52 if mp == 0 else 128 + 8 * mp
            if mp:
                for i in range(8): A(f"v_accvgpr_read_b32 v{d+i}, a{176+8*mp+i}")
            G = gelu8([d, d + 2, d + 4, d + 6], [rp[2 * mp]] * 2 + [rp[2 * mp + 1]] * 2, [8, 10, 8, 10], [12, 14, 12, 14]); S = []
            if mp == 0: S.append((pvf(6) + pvf(7), 1, 19)); S.append((["WAITVM p1\n" + spin(slow, P + "_f1", poll(1), ptest)] + A0[:4], 24, 44))
            if mp == 1: S.append((A0[4:], 2, 44))
            if mp == 3: S.append((start2, 2, 40))
            emit(A, place(G, S))
            A(f"v_permlane32_swap_b32 v{d}, v{d+2}\nv_permlane32_swap_b32 v{d+1}, v{d+3}")
            A(f"s_mov_b32 s29, {2*mp*A2S}\nbuffer_store_dwordx4 {R(d)}, v17, s[12:15], s29 offen {C.ST_AUX} ; @h2")
            if mp == 0: emit(A, zp(fin(6), fin(7))); emit(A, g2_addr)

    def mfmas2(j, kk):
        first = j == 0 and kk == 0; L = []; ms = list(range(4 if steps[j][5] else 2))
        for n in range(8):
            for m in (ms if n % 2 == 0 or first else ms[::-1]):
                d = R(acc2(m, n)); c = d if not first else ("0" if att or m > 1 else R(acc2(1, n)))
                L.append(f"{MF} {d}, {aR(32*kk+4*n)}, {aR(areg(j, kk, m))}, {c}")
        return L
    def sub2(M, Rd, S, D):
        n = len(M); S = [(Rd, 0, n)] + S
        if D: S.append((D, 1, n + 1) if n >= 3 * len(D) else (D, 0, n - 1))
        S.append((["s_waitcnt lgkmcnt(8)"], n // 2 - 1, n // 2))
        emit(A, place(M, S))
    A("WAITVM a0 | lgkmcnt(0)"); A(ts("g2go")); A(ts("RTg2")); A(ts("g2go2"))
    A(f"{P}_g2:")
    first_need = {}
    for s, st in enumerate(steps): first_need.setdefault(st[3], s)
    bars = [j for j in range(NK - 1) if j < NW or (j - NW) % 2 == 0]
    checks = {first_need[k] - 4: k for k in first_need if k != 1}
    T = [0]
    for u in range(2 * NK): T.append(T[-1] + (32 if steps[u // 2][5] else 16))
    fixed = {2 * NW - 1: 4, 2 * NW: 4}
    UX = 2 * NK - 1 - C.XU; UY = UX - 2
    for u in range(UY if att else UX, 2 * NK): fixed[u] = 9
    ok = {k: 2 * (j + 1) + 1 for j, k in checks.items()}; ok[1] = 0
    QA = [(max(2 * aprev(x) + 2, ok[steps[x][3]]), T[2 * x], x) for x in range(1, NK) for _ in range(8 if steps[x][5] else 4)]
    QB = [(2 * next(b for b in bars if b >= x - NB + 1) + 1 if x >= NB else 0, T[2 * max(b for b in bars if b < x) + 1] - C.BM, x) for x in range(C.NPRE, NK) for _ in range(4)]
    plan = []; marg = 999
    for u in range(2 * NK - 1):
        cap = (8 if u == 0 else C.CAPW if steps[u // 2][5] else C.CAPN) - fixed.get(u, 0); P_ = []
        while len(P_) < cap:
            c = [q for q in (QA, QB) if q and q[0][0] <= u]
            if not c: break
            q = min(c, key=lambda q: q[0][1]); it = q.pop(0); P_.append(("a" if q is QA else "b", it[2]))
            marg = min(marg, it[1] + (C.BM if q is QB else 0) - T[u + 1])
        plan.append(P_)
    assert not QA and not QB and marg >= 0, marg
    C.marg[att] = marg
    qa = []; qb = []
    def take(u):
        out = []
        for k, x in plan[u]:
            q = qa if k == "a" else qb
            if not q: q.extend(lda(x) if k == "a" else dma_b(x))
            out.append(q.pop(0))
        return out
    busy = {BS(x) for x in range(bars[-1], NK)}
    STG = next(r * 16384 for r in range(NB - 2) if not busy & {(r + x) * 16384 for x in range(3)})
    sub2(mfmas2(0, 0), reads2(0, 1), [(g2_addr2, 3, 28)], take(0))
    xpoll = "buffer_load_dword v33, v34, s[16:19], 0 offen sc1"
    ypoll = "buffer_load_dword v25, v26, s[16:19], 0 offen sc1"
    xl = lambda base, a, tag: [f"buffer_load_dwordx4 {R(base+4*i)}, v{a}, s[56:59], {'s34' if i>=4 else '0'} offen offset:{1024*(i&3)} sc1 ; @{tag}" for i in (0, 4, 1, 5, 2, 6, 3, 7)]
    gl = att and C.GLAST; XL = xl(128, 18 if gl else 13, "xl"); YL = xl(160, 13 if gl else 18, "yl")
    gate = lambda v, sr: f"v_cmp_eq_u32 vcc, 0, v{v}\ns_cmp_eq_u64 vcc, 0\ns_cselect_b32 s58, {16*MB}, 0\ns_mov_b32 s{sr}, s58"
    def extra(u, S, D):
        w = ""
        if u == UX - C.XD: S.append(([xpoll + " ; @px"], 0, 1))
        if u == UX: w += " px"; S.append(([gate(33, 64)], 0, 1))
        if u in (UX, UX + 1): D += [(None, x) for x in XL[4*(u-UX):4*(u-UX)+4]]
        if att:
            if u == UY - C.YD: S.append(([ypoll + " ; @py"], 0, 1))
            if u == UY: w += " py"; S.append(([gate(25, 65)], 0, 1))
            if u in (UY, UY + 1): D += [(None, x) for x in YL[4*(u-UY):4*(u-UY)+4]]
        if u == 2 * NW + C.SWF: w += " sw"; S.append(([flag(1 if att else 4)], 0, 1))
        return w
    blocks = lambda p: [(0, 2 * p), (1, 2 * p), (1, 2 * p + 1), (0, 2 * p + 1)]
    ids = lambda p, base: [f"{MF} {R(acc2(m,n))}, {R(194-2*(n&1))}, {R(base+16*m+4*p)}, {R(acc2(m,n))}" for m, n in blocks(p)]
    def swp(p):
        V = []; D = []
        for m in range(2):
            d = acc2(2 + m, 2 * p); V += [cvt(d + q, d + 2 * q) for q in range(4)]
            D.append(f"buffer_store_dwordx4 {R(d)}, v12, s[56:59], {'s34' if m else '0'} offen offset:{1024*p} sc1 ; @sw")
        return V[:4] + [D[0]] + V[4:] + [D[1]]
    for j in range(NK - 1):
        S = []; bar = j in bars
        nxt = next((b for b in bars if b > j), NK - 1)
        w = "WAITVM" + (f" b{nxt}" if bar else "")
        if j - 1 in checks: w += f" p{checks[j-1]}"
        if j == 1: w += " h2"
        D = take(2 * j + 1); w += extra(2 * j + 1, S, D)
        A((w + " | lgkmcnt(8)" if w != "WAITVM" else "s_waitcnt lgkmcnt(8)") + ("\ns_barrier" if bar else ""))
        if j in (0, 7) or (j >= NW and j % 2 == 0): A(ts(f"q{j}"))
        M = mfmas2(j, 1)
        if j - 1 in checks: S.append(([spin(slow, f"{P}_g{checks[j-1]}", poll(checks[j-1]), ptest)], 0, 1))
        if j == 1: S.append(([flag(0 if att else 2)], 0, 1))
        if j in checks: S.append(([poll(checks[j]) + f" ; @p{checks[j]}"], 0, 1))
        if j == 2:
            sd = [f"s_lshl_b32 s29, s37, 13\ns_add_u32 s29, s29, {8*MB}\nv_lshl_add_u32 v12, v2, 4, s29", "v_xor_b32 v13, 0x10000, v12",
                  "s_lshr_b32 s29, s2, 1\ns_lshl_b32 s29, s29, 2\ns_add_u32 s29, s29, s20", "s_lshl_b32 s29, s29, 13\nv_lshl_add_u32 v18, v2, 4, s29",
                  f"s_xor_b32 s29, s99, 1024\nv_mov_b32 v{26 if gl else 34}, s29"]
            if att: sd += [f"v_mov_b32 v{34 if gl else 26}, s67"] + lines(xo_base) + ["v_lshrrev_b32 v10, 3, v2", "v_and_b32 v11, 7, v2", "v_lshl_add_u32 v21, v10, 12, s29", "v_lshl_add_u32 v21, v11, 4, v21"]
            S.append((sd, 2, 30))
        if j == 5:
            sd = ["v_and_b32 v22, 1, v4", "v_lshlrev_b32 v22, 4, v22", "v_mov_b32 v23, 0x3f80", "v_lshlrev_b32 v22, v22, v23", "v_lshrrev_b32 v23, 1, v4", "v_lshlrev_b32 v24, 1, v3", "v_sub_u32 v23, v23, v24",
                  "v_cmp_eq_u32 vcc, 0, v23", "v_mov_b32 v192, 0", "v_cndmask_b32 v194, 0, v22, vcc", "v_cmp_eq_u32 vcc, 1, v23", "v_mov_b32 v193, 0", "v_cndmask_b32 v195, 0, v22, vcc", "v_mov_b32 v196, 0", "v_mov_b32 v197, 0"]
            S.append((sd, 2, 32))
        if j == 6:
            if att: sd = ["v_mul_u32_u24 v8, 272, v4", "v_lshl_add_u32 v8, v3, 3, v8", f"s_mul_i32 s29, s20, 8704\ns_add_u32 s29, s29, {STG}\nv_add_u32 v8, s29, v8",
                          "v_mul_u32_u24 v9, 272, v10", "v_lshl_add_u32 v9, v11, 4, v9", "v_add_u32 v9, s29, v9"]
            else: sd = ["v_sub_u32 v23, v23, v24"] + [x for d in range(8) for x in (f"v_cmp_eq_i32 vcc, {(d&3) - 8*(d>>2)}, v23", f"v_cndmask_b32 v{200+d}, 0, v22, vcc")]
            S.append((sd, 2, 32))
        if j == NW - 1: S.append((swp(0) + swp(1), 11, 32))
        if j == NW - 1 and D: S.append((D, 0, 12)); D = []
        sub2(M, reads2(j + 1, 0), S, D)
        M = mfmas2(j + 1, 0); S = []
        D = take(2 * j + 2); w = extra(2 * j + 2, S, D)
        A(f"WAITVM a{j+1}{w} | lgkmcnt(8)")
        if j == NW - 1: S.append((swp(2) + swp(3), 0, 16))
        sub2(M, reads2(j + 1, 1), S, D)
        if not att and j == 8:
            for n in range(8):
                for m in range(2): A(f"{MF} {R(acc2(m,n))}, {R(200+4*(n&1))}, {aR(208+16*m+4*(n>>1))}, {R(acc2(m,n))}")
    assert not (qa or qb)
    A(ts("RTg2e")); A(ts("g2end"))
    def late(nm, sr, pl, v, L, tail):
        A(f"s_cmp_eq_u32 s{sr}, 0\ns_cbranch_scc1 {P}_{nm}_slow\n{P}_{nm}done:")
        slow.append(f"{P}_{nm}_slow:\ns_mov_b32 s39, {C.SPIN}\ns_mov_b32 s58, {16*MB}\n{P}_{nm}_spin:\n{pl}\ns_waitcnt vmcnt(0)\nv_cmp_eq_u32 vcc, 0, v{v}\ns_cbranch_vccz {P}_{nm}_ok\ns_sleep {C.XSL}\n"
                    f"s_sub_u32 s39, s39, 1\ns_cmp_lg_u32 s39, 0\ns_cbranch_scc1 {P}_{nm}_spin\n{P}_{nm}_ok:\n" + "\n".join(L) + f"\n{tail}s_branch {P}_{nm}done")
    if att: late("y", 65, ypoll, 25, YL, f"s_cmp_eq_u32 s64, 0\ns_cbranch_scc1 {P}_ydone\ns_waitcnt vmcnt(0)\n")
    late("x", 64, xpoll, 33, XL, "")
    A(ts("xgot"))
    if att:
        A("s_mov_b32 s29, 0x8000\ns_waitcnt vmcnt(8)")
        for p in range(4): emit(A, ids(p, 160))
    A("s_waitcnt lgkmcnt(8)")
    reg = mfmas2(NK - 1, 1)
    def post(p):
        L = []
        for m, n in blocks(p):
            d = acc2(m, n); o = 160 + 16 * m + 4 * p
            if att: L += [cvt(d, d), cvt(d + 1, d + 2), f"ds_write_b64 v8, {Pn(d)} offset:{4352*m + 32*n}"]
            else:
                L += [cvt(o + 2 * (n & 1), d), cvt(o + 2 * (n & 1) + 1, d + 2)]
                if n & 1: L.append(f"buffer_store_dwordx4 {R(o)}, v18, s[56:59], {'s34' if m else '0'} offen offset:{1024*p} sc1")
        return L
    rd = lambda h: [f"ds_read_b128 {R(160+16*h+4*i)}, v9 offset:{2176*i + 128*h}" for i in range(4)]
    st = lambda h, i: f"buffer_store_dwordx4 {R(160+16*h+4*i)}, v21, s[52:55], {'s29' if i&1 else '0'} offen offset:{2048*(i>>1) + 128*h} {C.OUT_AUX}"
    for p in range(4):
        S = [([f"s_waitcnt vmcnt({6 - 2*p + (0 if att else 2*max(p-1, 0))})"], 3, 4)]
        if p == 0: S.append((["s_waitcnt lgkmcnt(0)"], 7, 8))
        if att and p == 3: S.append((rd(0), 0, 2))
        if p: S.append((post(p - 1), 2, 8))
        emit(A, place(reg[4*p:4*p+4] + ids(p, 128), S))
    if att:
        A("s_waitcnt lgkmcnt(4)"); emit(A, [st(0, 0), st(0, 1)])
        emit(A, post(3) + rd(1) + [st(0, 2), st(0, 3)])
        for i in range(4): A(f"s_waitcnt lgkmcnt({3-i})\n" + st(1, i))
    else:
        emit(A, post(3))
        A(ts("xs")); A("s_waitcnt vmcnt(0)\n" + flag(3))
    stamp_out(A)
    A(f"{P}_fin:\ns_endpgm")
    for s in slow: A("s_nop 7\n" + s)
    A(f"{P}_end:")

def build(path, **kw):
    for k, v in kw.items(): setattr(C, k, v)
    A = Asm(); name = NAME + "_kernel"
    A(f".text\n.globl {name}\n.p2align 8\n.type {name},@function\n{name}:")
    A("s_cmp_ge_u32 s2, 256\ns_cbranch_scc0 L_go\ns_endpgm\nL_go:")
    for r, o in ((60, 0), (8, 8), (68, 32), (16, 80), (40, 16), (44, 48), (72, 40), (48, 72)): A(f"s_load_dwordx2 s[{r}:{r+1}], s[0:1], {o}")
    C.names = []
    A(ts("RTstart"))
    A("v_lshrrev_b32 v3, 6, v0\nv_and_b32 v2, 63, v0\nv_readfirstlane_b32 s20, v3\nv_and_b32 v4, 15, v2\nv_lshrrev_b32 v3, 4, v2")
    A("s_lshr_b32 s29, s2, 3\ns_xor_b32 s29, s29, s2\ns_and_b32 s35, s29, 1\ns_cselect_b32 s30, 7, 11")
    A("s_getpc_b64 s[76:77]\nL_pc:\ns_mul_i32 s29, s35, Lg_base-La_base\ns_add_u32 s29, s29, La_base-L_pc\n" + add64(76, "s29") + "\ns_mov_b32 s78, Lg_end-Lg_base\ns_mov_b32 s79, 0x20000")
    if C.PAD: A("s_lshl_b32 s29, s20, 7\nv_lshl_add_u32 v24, v3, 9, s29\nbuffer_load_dword a141, v24, s[76:79], 0 offen\nv_lshl_add_u32 v25, v4, 12, s29\nbuffer_load_dword a141, v25, s[76:79], 0 offen")
    A("v_lshrrev_b32 v24, 3, v2\nv_and_b32 v25, 7, v2")
    A("s_bfe_u32 s23, s2, 0x20004\ns_bfe_u32 s3, s2, 0x10001\ns_lshl_b32 s29, s3, 2\ns_add_u32 s23, s23, s29")
    A("v_and_b32 v26, 6, v24\nv_xor_b32 v26, v25, v26\nv_lshlrev_b32 v17, 12, v24\nv_lshl_add_u32 v17, v26, 4, v17\ns_lshl_b32 s29, s20, 17\ns_add_u32 s29, s29, 32768\nv_add_u32 v16, s29, v17")
    A("s_lshr_b32 s38, s2, 6\ns_lshl_b32 s80, s38, 15\ns_and_b32 s39, s38, 2\ns_add_u32 s38, s38, s39\ns_lshl_b32 s39, s20, 3\ns_add_u32 s38, s38, s39\ns_lshl_b32 s84, s38, 10")
    A("s_lshl_b32 s64, s23, 19\ns_lshl_b32 s39, s3, 10\ns_add_u32 s64, s64, s39\n" + srd(4, 18 * 32768))
    for i in range(1, 4): A(f"s_xor_b32 s{80+i}, s80, {i<<15}\ns_xor_b32 s{84+i}, s84, {((i&1) + 4*(i>>1)) << 10}")
    A("s_lshr_b32 s24, s2, 6\ns_and_b32 s29, s2, 1\ns_lshl_b32 s29, s29, 2\ns_add_u32 s24, s24, s29\ns_and_b32 s29, s2, 4\ns_lshl_b32 s29, s29, 1\ns_add_u32 s24, s24, s29")
    A("s_lshl_b32 s29, s35, 10\ns_add_u32 s36, s29, 6144\ns_lshl_b32 s29, s35, 8\ns_add_u32 s31, s29, 128")
    A("v_and_b32 v26, 2, v24\nv_xor_b32 v25, v25, v26\ns_and_b32 s39, s23, 1\ns_lshl_b32 s29, s39, 2\nv_xor_b32 v25, s29, v25")
    A("s_lshl_b32 s29, s20, 1\ns_add_u32 s29, s29, s39\ns_lshl_b32 s29, s29, 3\nv_add_u32 v26, s29, v24\nv_mul_u32_u24 v26, s36, v26\nv_lshl_add_u32 v18, v25, 4, v26")
    A("s_xor_b32 s29, s29, 8\nv_add_u32 v26, s29, v24\nv_mul_u32_u24 v26, s36, v26\nv_xor_b32 v25, 4, v25\nv_lshl_add_u32 v19, v25, 4, v26")
    A("s_mul_i32 s65, s3, s36\ns_lshl_b32 s65, s65, 9\ns_mul_i32 s31, s31, s24\ns_add_u32 s65, s65, s31")
    A(f"s_lshl_b32 s10, s36, 6\ns_mov_b32 s11, 0x20000\ns_mul_i32 s27, s20, 7168\ns_add_u32 s27, s27, {WB}\ns_mul_i32 s39, s39, 3072\ns_and_b32 s38, s23, 2")
    for k in range(3):
        A(f"s_cmp_eq_u32 s38, 0\ns_cselect_b32 s29, {k}, {(k+2)%3}\ns_lshl_b32 s{94+k}, s29, s30\ns_lshl_b32 s29, s29, 10\ns_add_u32 s29, s29, s27")
        A(f"s_add_u32 s{88+k}, s29, s39\ns_sub_u32 s29, s29, s39\ns_add_u32 s{91+k}, s29, 3072")
    A("s_mov_b32 m0, s84\ns_waitcnt lgkmcnt(0)"); A(ts("karg"))
    A("s_add_u32 s4, s60, s64\ns_addc_u32 s5, s61, 0\n" + sub64(4, 32768))
    xd = lambda i: f"buffer_load_dwordx4 v16, s[4:7], s{80+i} offen lds\nbuffer_load_dwordx4 v16, s[4:7], s{80+i} offen offset:2048 lds"
    A(xd(0))
    A("s_mov_b32 m0, s88\ns_cmp_eq_u32 s35, 0\ns_cselect_b32 s8, s8, s68\ns_cselect_b32 s9, s9, s69\n" + add64(8, "s65"))
    for k in range(3): A((f"s_mov_b32 m0, s{88+k}\n" if k else "") + f"buffer_load_dwordx4 v18, s[8:11], s{94+k} offen lds")
    A("s_mov_b32 m0, s85\n" + xd(1))
    A("s_lshr_b32 s21, s20, 1\ns_and_b32 s22, s20, 1\ns_mov_b32 s33, 0x3f803f80")
    A("s_bfe_u32 s25, s2, 0x20003\ns_and_b32 s29, s2, 4\ns_add_u32 s25, s25, s29\ns_lshl_b32 s25, s25, 1\ns_add_u32 s25, s25, s3\ns_lshr_b32 s26, s2, 5")
    C.common = C.names
    A("s_cmp_eq_u32 s35, 0\ns_cbranch_scc0 Lg_base\ns_branch La_base")
    role(A, True)
    role(A, False)
    A.lines = resolve_vm(A.lines)
    if C.EXP:
        reg = None; L = []; nb = 0
        for l in A.lines:
            if l.endswith("_ret1:"): reg = "g1"
            if l.endswith("_epi:"): reg = "epi"
            if l.endswith("_g2:"): reg = "g2"
            if l.endswith("_fin:"): reg = None
            k = False
            if reg == "g2" and C.EXP & 4 and l.startswith("ds_read_b64_tr"): k = True
            if reg == "g2" and C.EXP & 8 and l.startswith("buffer_load_dwordx4") and ("v16" in l or "v19" in l): k = True
            if reg == "g1" and C.EXP & 16 and l.startswith("ds_read") and " a[" in l: k = True
            if reg == "g1" and C.EXP & 32 and l.endswith("lds") and "s31" not in l: k = True
            if reg == "epi" and C.EXP & 64 and l.startswith(("v_exp", "v_rcp", "v_pk_")): continue
            if reg == "g2" and C.EXP & 128 and l.startswith("v_mfma"): l = "s_nop 3"
            if reg == "g1" and C.EXP & 256 and l.startswith("v_mfma"): l = "s_nop 3"
            L.append("s_nop 0" if k else l)
        A.lines = L
    body = A.finish()
    hdr = "; @launch grid=(256,1,1) block=(256,1,1) lds=163840\n" + (f"; FINE0 {' '.join(C.allnames[True])}\n; FINE1 {' '.join(C.allnames[False])}\n" if C.FINE else "") + '.amdgcn_target "amdgcn-amd-amdhsa--gfx950"\n'
    if C.PAD: body, C.npads = add_pads(hdr, body, [("La_base", "La_fin", "La", "La_ret"), ("Lg_base", "Lg_fin", "Lg", "Lg_ret")])
    open(path, "w").write(hdr + body + '.section .rodata,"a"\n.p2align 6\n' + kdesc(name))
    return A.npad

if __name__ == "__main__":
    print("pads", build("v4.s"))
    build("v4_fine.s", FINE=True)
    print({k: len(v) for k, v in C.allnames.items()}, C.npads, C.marg)
```

```python
import re

TRANS = ("v_exp_", "v_log_", "v_rcp_", "v_rsq_", "v_sqrt_", "v_sin_", "v_cos_")

def regs_of(tok):
    tok = tok.strip()
    tok = tok.lstrip("-")
    if tok.startswith("abs("): tok = tok[4:-1]
    if tok.startswith("|"): tok = tok.strip("|")
    m = re.fullmatch(r"([vas])(\d+)", tok)
    if m: return {(m.group(1), int(m.group(2)))}
    m = re.fullmatch(r"([vas])\[(\d+):(\d+)\]", tok)
    if m: return {(m.group(1), i) for i in range(int(m.group(2)), int(m.group(3)) + 1)}
    if tok == "vcc": return {("s", 106), ("s", 107)}
    if tok == "m0": return {("s", 124)}
    if tok == "exec": return {("s", 126), ("s", 127)}
    return set()

class Ins:
    def __init__(self, text):
        self.text = text
        t = text.split(";")[0].strip()
        self.op = t.split()[0] if t else ""
        rest = t[len(self.op):].strip()
        ops = [o.strip() for o in rest.split(",")] if rest else []
        if ops:
            last = ops[-1].split()
            self.mods = " ".join(last[1:]); ops[-1] = last[0] if last else ""
        else: self.mods = ""
        ops2 = []
        for o in ops:
            o0 = o.split()[0] if o.split() else o
            ops2.append(o0)
        self.ops = ops2
        op = self.op
        self.is_label = t.endswith(":") or op.startswith(".")
        self.mfma = op.startswith("v_mfma")
        self.valu = op.startswith("v_") and not self.mfma
        self.trans = op.startswith(TRANS)
        self.vmem = op.startswith(("buffer_", "global_"))
        self.ds = op.startswith("ds_")
        self.salu = op.startswith("s_")
        self.dma = self.vmem and " lds" in (" " + t)
        R = [regs_of(o) for o in ops2]
        self.w = set(); self.r = set(); self.c = set(); self.ab = set(); self.stdata = set()
        if self.is_label: return
        if self.mfma:
            self.w = R[0]; self.ab = R[1] | R[2]; self.c = R[3]; self.r = self.ab | self.c
        elif self.valu:
            if op.startswith("v_permlane") and "swap" in op:
                self.w = R[0] | R[1]; self.r = R[0] | R[1]
            elif op.startswith("v_cmp"):
                self.w = R[0]; self.r = set().union(*R[1:])
            elif op.startswith(("v_add_co", "v_sub_co", "v_addc_co", "v_subb_co")):
                self.w = R[0] | R[1]; self.r = set().union(*R[2:])
            elif op.startswith("v_nop"): pass
            else:
                self.w = R[0]; self.r = set().union(*R[1:]) if len(R) > 1 else set()
                if op.startswith(("v_fmac", "v_dot2c", "v_pk_fmac")) or "_dpp" in op: self.r |= R[0]
        elif self.vmem:
            if self.dma: self.r = set().union(*R) | {("s", 124)}
            elif "load" in op: self.w = R[0]; self.r = set().union(*R[1:])
            elif "store" in op or "atomic" in op:
                self.r = set().union(*R)
                d = R[0] if op.startswith("buffer_") else R[1]
                if "x3" in op or "x4" in op: self.stdata = d
                if "atomic" in op and "sc0" in t: self.w = R[0]
        elif self.ds:
            if "read" in op or "permute" in op or "swizzle" in op: self.w = R[0]; self.r = set().union(*R[1:])
            else: self.r = set().union(*R)
        elif self.salu:
            if op.startswith(("s_cmp", "s_waitcnt", "s_barrier", "s_nop", "s_cbranch", "s_branch", "s_endpgm", "s_sleep", "s_setprio")):
                self.r = set().union(*R) if R else set()
            else:
                self.w = R[0] if R else set(); self.r = set().union(*R[1:]) if len(R) > 1 else set()
    def states(self):
        if self.is_label: return 0
        if self.op == "s_nop": return int(self.ops[0]) + 1
        return 1

def vg(s): return {x for x in s if x[0] in "va"}
def sg(s): return {x for x in s if x[0] == "s"}

def need(p, c):
    n = 0
    if p.valu:
        if c.mfma and vg(p.w) & c.r: n = max(n, 2)
        if c.valu:
            if p.trans and vg(p.w) & c.r: n = max(n, 1)
            if (c.op.startswith("v_permlane") or "_dpp" in c.op) and vg(p.w) & c.r: n = max(n, 2)
            if c.op.startswith(("v_readlane", "v_readfirstlane")) and vg(p.w) & c.r: n = max(n, 1)
            if sg(p.w) & c.r: n = max(n, 4 if c.op.startswith(("v_readlane", "v_writelane")) else 2)
            if "sdwa" in p.op and vg(p.w) & (c.r | c.w): n = max(n, 1)
        if p.op.startswith("v_dot") and vg(p.w) & (c.r | c.w) and not (c.op == p.op and p.w == c.w): n = max(n, 3)
        if c.vmem and sg(p.w) & c.r: n = max(n, 5)
        if c.salu and sg(p.w) & c.r: n = max(n, 2)
    if p.mfma:
        big = "32x32" in p.op
        if c.mfma:
            if p.w & c.ab: n = max(n, 12 if big else 8)
            if p.w & c.c and p.w != c.c: n = max(n, 10 if big else 6)
            if p.w & c.w and p.w != c.c: n = max(n, 10 if big else 6)
        elif c.valu or c.vmem or c.ds:
            if p.w & (c.r | c.w): n = max(n, 12 if big else 8)
            if c.valu and p.c & c.w: n = max(n, 7 if big else 3)
    if p.stdata and p.stdata & c.w: n = max(n, 2)
    if p.salu and ("s", 124) in p.w and c.dma: n = max(n, 1)
    return n

class Asm:
    def __init__(self): self.lines = []
    def __call__(self, text):
        for l in text.split("\n"):
            l = l.strip()
            if l: self.lines.append(l)
    def finish(self, verbose=False):
        out = []; hist = []; npad = 0
        for l in self.lines:
            if l.startswith(";"): out.append(l); continue
            ins = Ins(l)
            if not ins.is_label:
                dist = 0; pad = 0
                for p in reversed(hist):
                    if dist >= 12: break
                    k = need(p, ins) - dist
                    if k > pad: pad = k
                    dist += p.states()
                if pad > 0:
                    nop = Ins(f"s_nop {pad-1}"); out.append("  " + nop.text); hist.append(nop); npad += pad
                    if verbose: print("pad", pad, "before", l)
                hist.append(ins)
                if len(hist) > 40: hist = hist[-20:]
                out.append("  " + l)
            else: out.append(l)
        self.npad = npad
        return "\n".join(out) + "\n"

def kdesc(name, vgpr=512, acc=256, sgpr=102):
    return f""".amdhsa_kernel {name}
  .amdhsa_next_free_vgpr {vgpr}
  .amdhsa_next_free_sgpr {sgpr}
  .amdhsa_accum_offset {acc}
  .amdhsa_group_segment_fixed_size 0
  .amdhsa_kernarg_size 88
  .amdhsa_user_sgpr_count 2
  .amdhsa_user_sgpr_kernarg_segment_ptr 1
  .amdhsa_system_sgpr_workgroup_id_x 1
  .amdhsa_float_denorm_mode_32 3
.end_amdhsa_kernel
"""

def f32(x):
    import struct
    return "0x%08x" % struct.unpack("<I", struct.pack("<f", x))[0]

def interleave(main, side, start=0, end=None, per_gap=1):
    n = len(main)
    if end is None: end = n
    slots = [[] for _ in range(n)]
    m = len(side)
    for i, s in enumerate(side):
        pos = start + (i * (end - start)) // max(m, 1)
        slots[min(pos, n - 1)].append(s)
    out = []
    for i, x in enumerate(main):
        out.append(x); out.extend(slots[i])
    return out

def resolve_vm(lines):
    out = []; hist = []; done = -1
    for l in lines:
        if l.startswith("VMRESET"): hist = []; done = -1; continue
        if l.startswith("VMSAVE"): saved = (done, len(hist)); continue
        if l.startswith("VMRESTORE"): assert len(hist) == saved[1]; done = saved[0]; continue
        if l.startswith("VMFAKE"):
            _, tg, n = l.split(); hist += [{tg}] * int(n); continue
        if l.startswith("WAITVM"):
            body = l[6:].split("|"); tags = body[0].split(); extra = body[1].strip() if len(body) > 1 else ""
            n = 0; found = set(); best = None
            for ix in range(len(hist) - 1, -1, -1):
                tg = hist[ix]
                hit = [t for t in tags if t in tg]
                if hit and best is None: best = n; bix = ix
                found.update(hit)
                if "cond" not in tg: n += 1
            missing = set(tags) - found
            assert not missing, ("WAITVM tag never issued", missing)
            best = min(best, 63)
            if bix <= done:
                if extra: out.append(f"s_waitcnt {extra}")
                continue
            done = bix
            out.append(f"s_waitcnt vmcnt({best}) {extra}".strip()); continue
        if l.startswith(("buffer_", "global_")):
            tg = set(re.findall(r"@(\S+)", l.split(";", 1)[1])) if ";" in l else set()
            hist.append(tg)
            l = l.split(";")[0].strip()
        out.append(l)
    return out

def place(M, streams):
    n = len(M); slots = [[] for _ in range(n)]
    for items, start, end, *grid in streams:
        for i, it in enumerate(items):
            pos = start + (i * (end - start)) // max(len(items), 1)
            if grid:
                g = grid[0]; ns = (end - start + g - 1) // g; pos = start + g * ((i * ns) // max(len(items), 1))
            if isinstance(it, str): it = (it,)
            for k, x in enumerate(it):
                if x:
                    assert pos + k < n, (pos, k, n)
                    slots[pos + k].append(x)
    out = []
    for i in range(n):
        out.append(M[i]); out.extend(slots[i])
    return out

import subprocess, os, tempfile
def inst_sizes(text):
    d = tempfile.mkdtemp(); s = os.path.join(d, "a.s"); o = os.path.join(d, "a.o")
    open(s, "w").write(text)
    subprocess.run(["clang", "-x", "assembler", "-target", "amdgcn-amd-amdhsa", "-mcpu=gfx950", "-c", s, "-o", o], check=True)
    out = subprocess.run(["llvm-objdump", "-d", "--mcpu=gfx950", o], capture_output=True, text=True, check=True).stdout
    L = []
    for l in out.split("\n"):
        m = re.search(r"//\s*([0-9A-F]{12}):\s*((?:[0-9A-F]{8}\s*)+)", l)
        if m: L.append((int(m.group(1), 16), 4 * len(m.group(2).split())))
    return L

def add_pads(hdr, body, regions, nchain=4):
    lines = body.split("\n")
    stub = "\n".join(f"{p}_pad{k}:" for _, _, p, _ in regions for k in range(1, 17))
    noalign = "\n".join(l for l in lines if not l.startswith(".p2align"))
    sz = [s for _, s in inst_sizes(hdr + noalign + "\n" + stub + "\n")]
    out = []; i = 0; cur = None; off = 0; npad = {}; unsafe = False; pend = []
    for l in lines:
        t = l.strip()
        isins = l.startswith("  ") and t
        for r in regions:
            if t == r[0] + ":": cur = r; off = 0; npad[r[2]] = 0
            if t == r[1] + ":": cur = None
        if isins:
            if cur and not unsafe and off >= 4096 * (npad[cur[2]] + 1):
                assert off - 4096 * (npad[cur[2]] + 1) < 56, off
                npad[cur[2]] += 1; out.append(f"{cur[2]}_pad{npad[cur[2]]}:"); out.append(("PAD", cur, npad[cur[2]])); off += 4
            if t.startswith(("s_mov_b32 exec_lo, s", "s_mov_b64 exec, 0")) and t != "s_mov_b64 exec, 0x101": unsafe = True
            if t.startswith("s_mov_b64 exec, -1"): unsafe = False
            off += sz[i]; i += 1
        out.append(l)
    assert i == len(sz), (i, len(sz))
    res = []
    for l in out:
        if isinstance(l, tuple):
            _, r, k = l
            res.append(f"  s_cbranch_execz {r[2]+'_pad'+str(k+4) if 5 <= k <= 8 and k + 4 <= npad[r[2]] else r[3] + str(0 if k < 5 else (1 if k < 13 else 2))}")
        else:
            m = re.fullmatch(r"(\s*s_c?branch\S*) (\w+)_pad(\d+)", l)
            if m and int(m.group(3)) > npad[m.group(2)]: l = f"{m.group(1)} {m.group(2)}_ret{2 if int(m.group(3)) > 12 else 1}"
            res.append(l)
    assert all(n <= 15 for n in npad.values()), npad
    return "\n".join(res), npad

def resolve_ds(lines):
    out = []; hist = []; done = -1
    for l in lines:
        if l.startswith("WAITDS"):
            tags = set(l.split()[1:])
            last = {t: max((i for i, tg in enumerate(hist) if t in tg), default=None) for t in tags}
            assert None not in last.values(), l
            ix = max(last.values())
            if ix > done:
                n = min(len(hist) - 1 - ix, 14); out.append(f"s_waitcnt lgkmcnt({n})"); done = len(hist) - 1 - n
            continue
        if l.startswith("ds_"):
            hist.append(set(re.findall(r"@(\S+)", l.split(";", 1)[1])) if ";" in l else set()); l = l.split(";")[0].strip()
        m = re.search(r"s_waitcnt.*lgkmcnt\((\d+)\)", l)
        if m: done = max(done, len(hist) - 1 - int(m.group(1)))
        out.append(l)
    return out
```

```python
import sys, math
from asmlib import *
NAME = "parallel_sum__sliding_local_dilated__dense_activation_gelu__prompt"
MB = 1 << 20
WS_A2 = 8 * MB; WS_XCH = 32 * MB; WS_ST = 48 * MB
O_ST, O_CS, O_FL, O_XF = 0, 16384, 262144, 524288
A2S = 144 * 1024
class C:
    FINE = False; PROBE = None; names = []; allnames = {}
    NFL = 2; A_AUX = "sc1"; ST_AUX = "sc1"; OUT_AUX = "sc1"; PF = True; CPF = True; CPH = False; PAD = True; ROT = True; PRE = 0; STJ = (1, 1); PF0 = (8, 5); NOROT = False
    SPIN = 1 << 16; DA = 4; NW = (14, 12); BM = 0; marg = {}; CAPW = 7; SWF = 6; GLAST = True; XU = 3; YCHK = 3; CAPN = 3; NPRE = 7; NA0 = (2, 2); RP = None; XCHK = 2; XSL = 1; XD = 3; YD = 3; KB = 2; KBW = 2; GRID = 3; RE = 6; S0E = 20; MJ = 0; MRG = "xX:04 wW:016 xX:123|wW:2345"; SEQ = ("w0:3456 x0:234 x1:01234", "w1:0123456", "x2:01234 w2:0123456|w3:0123456"); IDLE = None; XJ = (8, 8, 9, 9, 10, 10, 11, 11); PFL = ((), tuple(range(10, 18)) + tuple(range(10))); PFN = 3; D0 = 1; QS = 12; B0 = -2.0; EXP = 0; XR = 1; SM = 6.0
XS = lambda s: s * 34816
WB = 69632
TB = 155648
T_CS, T_B1, T_B2 = TB + 2560, TB + 3584, TB + 4608
NB = 9
BS = lambda j: ((j + 6) % NB) * 16384
R = lambda d: f"v[{d}:{d+3}]"
aR = lambda d: f"a[{d}:{d+3}]"
Pn = lambda r: f"v[{r}:{r+1}]"
MF = "v_mfma_f32_16x16x32_bf16"
cvt = lambda d, s: f"v_cvt_pk_bf16_f32 v{d}, v{s}, v{s+1}"
srd = lambda r, n: f"s_mov_b32 s{r+2}, {n}\ns_mov_b32 s{r+3}, 0x20000"
add64 = lambda r, x: f"s_add_u32 s{r}, s{r}, {x}\ns_addc_u32 s{r+1}, s{r+1}, 0"
sub64 = lambda r, x: f"s_sub_u32 s{r}, s{r}, {x}\ns_subb_u32 s{r+1}, s{r+1}, 0"

def ts(name):
    if not C.FINE or (C.FINE == 2 and name not in ("RTstart", "RTend", "x")) or (C.FINE == 3 and name[:2] != "RT" and name != "x"): return ""
    i = len(C.names); C.names.append(name)
    t = f"s_waitcnt lgkmcnt(0)\nv_writelane_b32 v1, s100, {i-1}\n" if i else ""
    return t + ("s_memrealtime s[100:101]" if name.startswith("RT") else "s_memtime s[100:101]")
def stamp_out(A):
    if not C.FINE: return
    A(ts("st")); A("s_waitcnt vmcnt(0)"); A(ts("end")); A(ts("RTend")); A(ts("x")); C.names.pop()
    if C.PROBE:
        a, b, wg = C.PROBE; C.uid = getattr(C, "uid", 0) + 1; u = C.uid
        if a in C.names and b in C.names:
            A(f"s_waitcnt lgkmcnt(0)\ns_cmp_lg_u32 s37, {wg*4}\ns_cbranch_scc1 Lpr{u}e\nv_readlane_b32 s4, v1, {C.names.index(b)}\nv_readlane_b32 s5, v1, {C.names.index(a)}\ns_memrealtime s[8:9]\ns_sub_u32 s4, s4, s5\n{'s_lshl_b32 s4, s4, 1' if a.startswith('RT') else 's_lshr_b32 s4, s4, 2'}\ns_add_u32 s4, s4, 1000\ns_min_u32 s4, s4, 100000")
            A(f"Lpr{u}:\ns_memrealtime s[6:7]\ns_waitcnt lgkmcnt(0)\ns_sub_u32 s6, s6, s8\ns_cmp_lt_u32 s6, s4\ns_cbranch_scc1 Lpr{u}\nLpr{u}e:")
        return
    A("s_load_dwordx2 s[4:5], s[0:1], 80\ns_waitcnt lgkmcnt(0)\n" + add64(4, WS_ST + 0x40000))
    A("s_lshl_b32 s6, s2, 2\ns_add_u32 s6, s6, s20\ns_lshl_b32 s6, s6, 8\nv_lshl_add_u32 v0, v2, 2, s6\nglobal_store_dword v0, v1, s[4:5]")
def emit(A, L):
    for d in L:
        if isinstance(d, str): A(d)
        else:
            for x in d:
                if x: A(x)
def lines(s): return [l for l in s.split("\n") if l.strip()]

def spin(slow, name, loads, test):
    slow.append(f"{name}_slow:\ns_mov_b32 s39, {C.SPIN}\n{name}_spin:\ns_sleep 8\n{loads}\ns_waitcnt vmcnt(0)\n{test}\ns_cbranch_vccz {name}_back\n"
                f"s_sub_u32 s39, s39, 1\ns_cmp_lg_u32 s39, 0\ns_cbranch_scc1 {name}_spin\ns_branch {name}_back")
    return f"{test}\ns_cbranch_vccnz {name}_slow\n{name}_back:"

def g2_steps(att):
    f = abs(C.NFL) // 2; no = C.NW[att] - 12
    pair = lambda i, lo, hi: int((i ^ 1) in range(lo, hi))
    wide = [("h", 3 * i + l, (3, 93, 12), 1 + l, i & 1, True) for l in range(3) for i in range(4)]
    wide += [("o", i, (pair(i, 0, no), 93, 4), 0, i & 1, True) for i in range(no)]
    nar = [("o", 8 * b + i, (pair(i, no, 4), 92, 4), 0, i & 1, False) for b in range(2) for i in range(no, 4)]
    nar += [("h", 48 + u, (pair(u, f, 4), 92, 4), 0, u & 1, False) for u in range(f, 4)]
    if f and att == (C.NFL < 0): nar += [("h", 48 + u + 4 * b, None, 0, 0, False) for u in range(f) for b in range(2)]
    return wide + nar

def role(A, att):
    P = "La" if att else "Lg"
    slow = []
    stride = 6144 if att else 7168
    nblk = 7 if att else 6
    A("VMRESET")
    C.names = list(C.common); C.allnames[att] = C.names
    A("VMFAKE x0 4\nVMFAKE w0 3")
    base = {"x": 0, "w": 0, "h": 0}; left = {}
    def adv(k, j, n, reg, inc, wrap):
        left[(k, j)] = left.get((k, j), n) - 1; t = []
        while left.get((k, base[k])) == 0:
            t.append(add64(reg, inc) + ("\n" + sub64(reg, wrap) if base[k] == 7 else "")); base[k] += 1
        return "\n".join(t) or None
    def px(j, i):
        d = 128 * (j - base["x"]); assert d == 0 or j < 8
        if i == 4: return [(f"s_add_u32 m0, s28, {XS(j%2) - d}", f"buffer_load_dwordx4 v17, s[4:7], 0 offen offset:{d} lds ; @x{j}", adv("x", j, 4 + att, 4, 128, "s64"))]
        assert XS(j % 2) >= d
        return [(f"s_add_u32 m0, s{84+i}, {XS(j%2) - d}", f"buffer_load_dwordx4 v16, s[4:7], s{80+i} offen offset:{d} lds ; @x{j}"),
                (None, f"buffer_load_dwordx4 v16, s[4:7], s{80+i} offen offset:{d+2048} lds ; @x{j}", adv("x", j, 4 + att, 4, 128, "s64"))]
    def pw(j, k):
        if k == 6:
            d = (j - base["h"]) * 64 * 7168
            return [(f"s_add_u32 m0, s27, {(j%3)*28672 + 6144}" + (f"\ns_mov_b32 s31, {d}" if d else ""), f"buffer_load_dwordx4 v20, s[68:71], {'s31' if d else '0'} offen lds ; @w{j}", adv("h", j, 1, 68, 64 * 7168, "s97"))]
        d = (j - base["w"]) * 64 * stride; assert d == 0 or j < 8
        return [(f"s_add_u32 m0, s{88+k}, {(j%3)*28672}" + (f"\ns_add_u32 s31, s{94+k%3}, {d}" if d else ""), f"buffer_load_dwordx4 v{18+k//3}, s[8:11], s{31 if d else 94+k%3} offen lds ; @w{j}", adv("w", j, 6, 8, 64 * stride, "s65"))]
    def seq(spec):
        L = []
        for t in spec.replace(".", ":").split():
            k, j, ps = t[0], int(t[1:t.index(":")]), t[t.index(":") + 1:]
            if j > 15: continue
            for p in map(int, ps):
                if att or p < (4 if k == "x" else 6): L += (px if k == "x" else pw)(j, p)
        return L
    seq("x0:01 w0:012")
    A(f".p2align 12\n{P}_base:\ns_load_dwordx2 s[52:53], s[0:1], {64 if att else 56}")
    A("v_lshrrev_b32 v5, 5, v2\nv_and_b32 v6, 3, v2")
    if att:
        A("s_lshl_b32 s28, s22, 10\ns_lshl_b32 s29, s22, 11\ns_cmp_eq_u32 s23, 0\ns_cselect_b32 s30, 32768, 0\ns_add_u32 s29, s29, s30\nv_add_u32 v17, s29, v17\ns_add_u32 s28, s28, 32768")
        A("v_lshrrev_b32 v24, 2, v2\nv_xor_b32 v25, v5, v6\ns_lshl_b32 s29, s20, 4\nv_add_u32 v24, s29, v24\nv_mul_u32_u24 v24, 7168, v24\nv_lshl_add_u32 v20, v25, 4, v24")
        A(f"s_mul_i32 s39, s3, {512*7168}\ns_lshl_b32 s38, s24, 6\ns_add_u32 s39, s39, s38\ns_add_u32 s39, s39, 6144\n" + add64(68, "s39") + "\n" + srd(68, 256 * 7168))
        if C.PRE: A("buffer_load_dword a140, v43, s[68:71], 0 offen")
    A(f"s_mov_b32 s78, {P}_end-{P}_base")
    A("s_lshr_b32 s29, s2, 4\ns_lshl_b32 s29, s29, 2\ns_add_u32 s29, s29, s20\ns_lshl_b32 s29, s29, 10\nv_and_b32 v24, 7, v2\nv_lshl_add_u32 v23, v24, 7, s29")
    if C.CPF: A("buffer_load_dword a141, v23, s[76:79], 0 offen")
    A(f"s_lshl_b32 s64, s3, 11\ns_mul_i32 s65, s3, {1024*stride}\ns_mul_i32 s97, s3, {1024*7168}")
    A("v_and_b32 v27, 6, v4\nv_xor_b32 v27, v27, v3\nv_lshlrev_b32 v27, 4, v27\nv_lshl_add_u32 v28, v4, 7, v27")
    A("s_lshl_b32 s29, s21, 14\nv_add_u32 v8, s29, v28\nv_xor_b32 v9, 64, v8")
    if att:
        A("v_add_u32 v21, 32768, v28\nv_or_b32 v28, 0x400, v28\nv_lshrrev_b32 v27, 3, v4\nv_lshl_add_u32 v28, v27, 11, v28\nv_add_u32 v28, 12288, v28")
        A("s_cmp_eq_u32 s21, 0\ns_cselect_b64 vcc, -1, 0\nv_cndmask_b32 v21, v28, v21, vcc\nv_xor_b32 v22, 64, v21")
    xo_base = "s_lshl_b32 s29, s25, 2\ns_add_u32 s29, s29, s20\ns_lshl_b32 s29, s29, 16\ns_lshl_b32 s39, s26, 8\ns_add_u32 s29, s29, s39"
    if not att: A(xo_base + "\nv_lshl_add_u32 v21, v4, 12, s29\nv_lshl_add_u32 v21, v3, 4, v21")
    A("v_bfe_u32 v27, v2, 2, 2\nv_and_b32 v28, 1, v3")
    A(f"v_mul_u32_u24 v29, 7168, v5\nv_add_u32 v29, {WB}, v29")
    A("v_mul_u32_u24 v23, 3072, v28\nv_add_u32 v23, v29, v23\nv_lshl_add_u32 v23, v27, 7, v23\nv_lshl_add_u32 v23, v6, 3, v23")
    A("v_lshrrev_b32 v24, 1, v27\nv_lshl_or_b32 v24, v28, 1, v24\ns_lshl_b32 s29, s22, 1\nv_xor_b32 v24, s29, v24")
    A("v_lshl_add_u32 v10, v24, 5, v23\nv_xor_b32 v11, 32, v10\nv_add_u32 v13, 57344, v10\nv_add_u32 v14, 57344, v11")
    A("s_and_b32 s38, s23, 3\ns_lshl_b32 s38, s38, 1\ns_add_u32 s38, s38, s21")
    A("s_min_u32 s39, s38, 5\ns_and_b32 s29, s39, 1\ns_lshl_b32 s29, s29, 5\nv_xor_b32 v23, s29, v10\ns_lshr_b32 s29, s39, 1\ns_lshl_b32 s29, s29, 10\nv_add_u32 v23, s29, v23\nv_add_u32 v24, 512, v23")
    A("s_and_b32 s29, s39, 6\ns_add_u32 s29, s29, s22\ns_lshl_b32 s29, s29, 1\ns_and_b32 s39, s39, 1\ns_add_u32 s29, s29, s39\ns_lshl_b32 s29, s29, 4\nv_add_u32 v31, s29, v4")
    if att:
        A("v_lshl_add_u32 v25, v28, 3, v27\nv_lshl_add_u32 v25, v25, 6, v29\nv_add_u32 v25, 6144, v25")
        A("v_and_b32 v26, 2, v6\nv_add_u32 v26, s22, v26\nv_xor_b32 v26, v26, v28\nv_lshl_add_u32 v25, v26, 4, v25")
        A("v_and_b32 v26, 1, v6\nv_lshl_add_u32 v12, v26, 3, v25\nv_add_u32 v15, 57344, v12\nv_add_u32 v25, 256, v12")
        A("v_and_b32 v26, 8, v4\nv_add_u32 v26, v26, v4\ns_lshl_b32 s29, s22, 3\ns_add_u32 s29, s29, 192\nv_add_u32 v26, s29, v26")
        A("s_cmp_ge_u32 s38, 6\ns_cselect_b64 vcc, -1, 0\nv_cndmask_b32 v23, v23, v12, vcc\nv_cndmask_b32 v24, v24, v25, vcc\nv_cndmask_b32 v31, v31, v26, vcc")
    A("v_add_u32 v25, 57344, v23\nv_add_u32 v26, 57344, v24")
    A(f"s_lshl_b32 s66, s24, 12\ns_add_u32 s66, s66, {O_CS + (0 if att else 65536)}\ns_lshr_b32 s29, s23, 2\ns_lshl_b32 s29, s29, 11\ns_add_u32 s29, s29, s66\nv_lshl_add_u32 v31, v31, 3, s29")
    A(f"s_cmp_lt_u32 s38, {nblk}\ns_cselect_b32 s38, 0xffff, 0")
    A("s_lshl_b32 s29, s23, 1\ns_add_u32 s29, s29, s21\ns_lshl_b32 s29, s29, 8\ns_lshl_b32 s39, s24, 1\ns_add_u32 s39, s39, s22\ns_lshl_b32 s39, s39, 2\ns_add_u32 s29, s29, s39")
    A(f"s_lshr_b32 s67, s2, 1\ns_lshl_b32 s67, s67, 2\ns_add_u32 s67, s67, s20\ns_lshl_b32 s67, s67, 7\ns_add_u32 s67, s67, {O_XF}")
    if att: A(f"s_add_u32 s29, s29, {O_FL}\nv_mov_b32 v29, s29")
    else: A(f"s_add_u32 s29, s29, {O_FL + 4096}\nv_lshl_add_u32 v29, v6, 12, s29\nv_writelane_b32 v29, s67, 3")
    A(f"s_lshl_b32 s99, s2, 2\ns_add_u32 s99, s99, s20\ns_lshl_b32 s99, s99, 7\ns_add_u32 s99, s99, {O_XF + 131072}\nv_writelane_b32 v29, s99, {1 if att else 4}")
    A("s_mov_b32 s12, s16\ns_mov_b32 s13, s17\ns_mov_b32 s56, s16\ns_mov_b32 s57, s17")
    for r, n in ((16, MB), (40, 2 * MB), (44, 7 * MB), (48, 256), (52, 4 * MB if att else 2048), (60, 4 * MB), (72, 7168), (56, 16 * MB)): A(srd(r, n))
    A(add64(56, WS_XCH))
    A("s_lshl_b32 s29, s2, 2\ns_add_u32 s37, s29, s20\ns_lshl_b32 s29, s37, 1\nv_lshrrev_b32 v30, 3, v4\nv_add_u32 v30, s29, v30\nv_and_b32 v27, 7, v2\nv_lshl_add_u32 v27, v3, 3, v27\nv_lshlrev_b32 v27, 4, v27\nv_lshl_add_u32 v27, v30, 11, v27")
    A("v_lshlrev_b32 v7, 4, v2\nv_mov_b32 v35, 1\nv_mov_b32 v34, 0\nv_mov_b32 v32, 0\nv_mov_b32 v33, 0\nv_lshlrev_b32 v30, 3, v30\ns_lshl_b32 s29, s20, 4\nv_add_lshl_u32 v6, s29, v4, 7")
    A("s_lshr_b32 s29, s2, 1\ns_lshl_b32 s29, s29, 2\ns_add_u32 s29, s29, s20\ns_lshl_b32 s35, s29, 10\ns_lshr_b32 s29, s29, 7\ns_mul_i32 s29, s29, 1441792\ns_add_u32 s36, s35, s29")
    for i in range(4): A(f"v_accvgpr_write_b32 a{136+i}, s33")
    A("s_waitcnt lgkmcnt(0)")
    A(ts("setup"))
    def pads(c):
        if not C.PAD: return
        k0 = [1, 5, 13][c]
        A("s_mov_b64 exec, 0")
        for w in range(3): A(f"s_cmp_eq_u32 s20, {w}\ns_cbranch_scc1 {P}_pad{k0+w}")
        A(f"s_branch {P}_pad{k0+3}\n{P}_ret{c}:\ns_mov_b64 exec, -1")
    emit(A, seq(C.SEQ[0]))
    stl = [(None, f"buffer_load_dwordx4 {aR(144+4*i)}, v27, s[60:63], 0 offen offset:{512*i} ; @st") for i in range(4)]
    A(ts("issued")); pads(0)

    acc = lambda m, n: 64 + 4 * (6 * m + n)
    xf = lambda h, i, kk: 32 * h + 8 * i + 4 * kk
    wf = lambda n, kk: 64 + 8 * n + 4 * kk
    def wofs(j):
        u = j % 3; return (u == 2), (0 if u == 2 else u * 28672)
    def rd_w(j, n):
        hiw, wo = wofs(j); wreg = 13 if hiw else 10; L = []
        for kk in range(2):
            for h in range(2):
                b = wf(n, kk) + 2 * h
                L.append(f"ds_read_b64_tr_b16 a[{b}:{b+1}], v{wreg+(n&1)} offset:{wo + kk*14336 + h*512 + (n>>1)*1024} ; @W{j}_{n}" if n < 6 else
                         f"ds_read_b64_tr_b16 a[{b}:{b+1}], v{wreg+2} offset:{wo + kk*14336 + h*256} ; @W{j}_{n}")
        return L
    rd_x = lambda j, h: [f"ds_read_b128 {aR(xf(h,i,kk))}, v{8+kk} offset:{XS(j%2) + (4*h+i)*2048} ; @X{j}_{h}" for i in range(4) for kk in range(2)]
    def rd_e(j):
        hiw, wo = wofs(j); L = []
        if att: L += [f"ds_read_b128 {aR(120+4*kk)}, v{21+kk} offset:{XS(j%2)}" for kk in range(2)]
        if j < 8: L += [f"ds_read_b64_tr_b16 a[{128+4*kk+2*h}:{129+4*kk+2*h}], v{(25 if hiw else 23)+h} offset:{wo + kk*14336}" for kk in range(2) for h in range(2)]
        return L
    def mfmas(j, h):
        L = []; end = []; t = [0]
        def chain(d, fa, fb):
            ks = (0, 1) if t[0] % 2 == 0 else (1, 0); t[0] += 1
            for q, kk in enumerate(ks): L.append(f"{MF} {d}, {aR(fa(kk))}, {aR(fb(kk))}, {'0' if j == 0 and q == 0 else d}")
        for n in range(nblk):
            W = lambda kk: wf(n, kk)
            rows = [0, 1, 2, 3] + ([4] if att and h == 1 and 2 <= n < 6 else [])
            for i in (rows if n % 2 == 0 else rows[::-1]):
                m = 4 * h + i
                d = R(48 + 4 * (n - 2)) if i == 4 else (R(acc(m, n)) if n < 6 else aR(176 + 4 * m))
                X = (lambda kk: 120 + 4 * kk) if i == 4 else (lambda kk: xf(h, i, kk))
                if att and n in (4, 5): chain(d, X, W)
                else: chain(d, W, X)
            end.append(len(L))
        if j < 8 and h == 1: chain("v[36:39]", lambda kk: 136, lambda kk: 128 + 4 * kk)
        return L, end
    def rs_a(j, end):
        S = [(rd_x(j, 0)[:4], 0, 8, 2), (rd_x(j, 0)[4:], 3, 19, 4)]
        for n in range(nblk - 1): S.append((rd_w(j, n), end[n], end[n] + 8, 2))
        return S
    def rs_b(j, end, n):
        L = (rd_w(j, nblk - 1) if j else []) + rd_x(j, 1) + rd_e(j)
        S = [(L, 0, min(2 * len(L), n - C.RE), 2)]
        for b in range(1, nblk): S.append(([f"WAITDS W{j}_{b}"], end[b - 1] - 1, end[b - 1]))
        return S
    def pf(i):
        L = C.PFL[att]
        if not C.PF or i >= len(L): return []
        g = L[i]
        if g >= 10: return [(f"s_add_u32 s29, s36, {(3*((g-10)&3)+((g-10)>>2))*131072}", "buffer_load_dwordx4 a[140:143], v7, s[44:47], s29 offen")]
        if g < 4: return [(f"s_add_u32 s29, s36, {(3*g+2)*131072}", "buffer_load_dwordx4 a[140:143], v7, s[44:47], s29 offen")]
        if g < 8: return [(f"s_add_u32 s29, s35, {(g-4)*524288}", "buffer_load_dwordx4 a[140:143], v7, s[40:43], s29 offen")]
        return [(f"s_add_u32 s29, s35, {48*131072 + (g-8)*524288}", "buffer_load_dwordx4 a[140:143], v7, s[44:47], s29 offen")]
    cpf = lambda lab, k=0, dst="a141": [(f"s_mov_b32 s29, {lab}-{P}_base+{8192*k}", f"buffer_load_dword {dst}, v6, s[76:79], s29 offen")] if C.CPF else []
    stm = []
    stm += [f"{MF} v[40:43], a[136:139], {aR(144+4*i)}, {'v[40:43]' if i else '0'}" for i in range(4)]
    stm += [f"{MF} v[44:47], {aR(144+4*i)}, {aR(144+4*i)}, {'v[44:47]' if i else '0'}" for i in range(4)]
    dpp = lambda v, m: f"v_add_f32_dpp v{v}, v{v}, v{v} {m} row_mask:0xf bank_mask:0xf"
    rnd = lambda v: [f"v_cvt_pk_bf16_f32 v{v}, v{v}, v{v}", f"v_and_b32 v{v}, 0xffff0000, v{v}"]
    st1 = ["v_lshlrev_b32 v41, 2, v3", "v_sub_u32 v41, v4, v41"]
    for q in range(4): st1 += [f"v_cmp_eq_u32 vcc, {q}, v41", dpp(40, ["quad_perm:[1,0,3,2]", "quad_perm:[2,3,0,1]", "row_half_mirror"][q]) if q < 3 else f"v_mul_f32 v40, {f32(1/1024)}, v40",
                               f"v_cndmask_b32 v42, {'v42' if q else '0'}, v{44+q}, vcc"]
    st1 += [dpp(42, "quad_perm:[1,0,3,2]"), "v_mul_f32 v41, v40, v40", dpp(42, "quad_perm:[2,3,0,1]"), rnd(40)[0], dpp(42, "row_half_mirror"), rnd(40)[1]]
    for sw in (16, 32): st1 += ["v_mov_b32 v43, v42", f"v_permlane{sw}_swap_b32 v42, v43", "v_add_f32 v42, v42, v43"]
    st2 = [f"v_mov_b32 v43, {f32(1/1024)}", "v_fma_f32 v44, v42, v43, -v41", "v_max_f32 v44, 0, v44"] + rnd(44) + [f"v_add_f32 v44, {f32(1e-5)}, v44"] + rnd(44) + ["v_sqrt_f32 v44, v44"] + rnd(44) + ["v_rcp_f32 v44, v44", "v_mul_f32 v45, v44, v40"]
    cph = lambda dst="a141": [("v_lshl_add_u32 v33, v4, 12, s99", f"buffer_load_dword {dst}, v33, s[76:79], 0 offen")] if C.CPH else []

    steps = g2_steps(att); NK = len(steps); DA = C.DA
    cls = {}
    def off(reg, tab, unit, j, imm):
        dc, sl = steps[j][2], steps[j][4]
        if dc is None: return f"s_mov_b32 s{reg}, {imm}"
        t = ""
        if cls.get((tab, sl)) != dc:
            cls[(tab, sl)] = dc
            t = f"s_mul_i32 s{tab+sl}, s{88+sl}, {dc[0]*unit}\ns_mul_i32 s{reg}, s{dc[1]}, {dc[2]*unit}\ns_add_u32 s{tab+sl}, s{tab+sl}, s{reg}\n"
        return t + f"s_add_u32 s{reg}, s{tab+sl}, {imm}"
    NW = C.NW[att]
    areg = lambda j, kk, i: 64 + 32 * (j % 4) + 16 * kk + 4 * i if j < NW else 64 + 16 * ((NW + j) % 8) + 8 * kk + 4 * i
    aprev = lambda j: j - 4 if j < NW else (NW - 4 + (j - NW) // 2 if j < NW + 8 else j - 8)
    def lda(j):
        kind, q = steps[j][:2]; ks = 2 * q + (0 if kind == "o" else 32); L = []
        for b in range(2):
            so = off(30, 80, 2048, j, ks * 1024 + b * A2S)
            for o in range(2 if steps[j][5] else 1):
                for kk in range(2):
                    L.append((so if kk + o == 0 else None, f"buffer_load_dwordx4 {aR(areg(j, kk, 2*o+b))}, v{7 if o else 16}, s[4:7], s30 offen offset:{kk*1024} {C.A_AUX} ; @a{j}"))
        return L
    def dma_b(j):
        kind, q = steps[j][:2]; L = []; sr = "s[40:43]" if kind == "o" else "s[44:47]"
        for hi in range(2):
            so = off(31, 68, 131072, j, q * 131072 + hi * 16384)
            for ln in range(2):
                L.append((f"s_add_u32 m0, s98, {BS(j) + hi*2048 + ln*896}" + ("\n" + so if ln == 0 else ""),
                          f"buffer_load_dwordx4 v19, {sr}, s31 offen offset:{128*ln} lds ; @b{j}"))
        return L
    setup_b = ["s_lshl_b32 s98, s20, 12", "v_lshrrev_b32 v18, 3, v2", "v_and_b32 v19, 7, v2", "v_and_b32 v20, 6, v18", "v_xor_b32 v19, v19, v20",
               "s_lshl_b32 s29, s20, 4\nv_add_u32 v18, s29, v18", "s_lshl_b32 s29, s26, 8\nv_lshl_add_u32 v18, v18, 11, s29", "v_lshl_add_u32 v19, v19, 4, v18",
               f"s_and_b32 s29, s25, 14\ns_lshl_b32 s29, s29, 8\ns_add_u32 s29, s29, {O_FL}", "v_and_b32 v20, 31, v2", "v_lshl_add_u32 v20, v20, 2, s29", "v_lshl_add_u32 v20, v5, 8, v20"]
    setup_d = ["s_and_b32 s92, s2, 1\ns_bfe_u32 s29, s2, 0x10004\ns_xor_b32 s29, s29, s26", f"s_and_b32 s88, s29, {C.XR}\ns_sub_u32 s89, 0, s88\ns_and_b32 s93, s2, 3"]
    setup_a = ["s_and_b32 s29, s25, 1\ns_lshl_b32 s29, s29, 2\ns_add_u32 s29, s29, s20", f"s_mul_i32 s39, s29, {2*A2S}\nv_lshl_add_u32 v16, v2, 4, s39",
               f"s_xor_b32 s29, s29, 4\ns_mul_i32 s39, s29, {2*A2S}\nv_lshl_add_u32 v7, v2, 4, s39",
               f"s_lshr_b32 s29, s25, 1\ns_mul_i32 s29, s29, {16*A2S}\ns_add_u32 s29, s29, {WS_A2}", f"s_add_u32 s4, s12, s29\ns_addc_u32 s5, s13, 0\ns_mov_b32 s6, {16*A2S}",
               f"s_lshl_b32 s29, s23, 1\ns_add_u32 s29, s29, s21\ns_mul_i32 s29, s29, {8*A2S}", f"s_add_u32 s29, s29, {WS_A2}\n" + add64(12, "s29"), srd(12, 8 * A2S),
               "s_movk_i32 s34, 0x1000\ns_movk_i32 s32, 0x2000\ns_movk_i32 s28, 0x3000"]
    c0 = -2 * math.sqrt(2 / math.pi) * math.log2(math.e); c1 = c0 * 0.044715
    sc = 32 ** -0.5 * math.log2(math.e)
    rowp = lambda dst, a, off: f"ds_read_b32 v{dst}, v{a} offset:{off}\nds_read_b32 v{dst+1}, v{a} offset:{off+1280}"
    colreads = lambda ln: [f"ds_read_b128 {R(56+4*c)}, v31 offset:{256*ln+64*c}\nds_read_b128 {R(8+4*c)}, v31 offset:{1024+256*ln+64*c}" for c in range(2)]
    epi = [f"s_lshl_b32 s29, s21, 9\ns_add_u32 s29, s29, {TB}\nv_lshl_add_u32 v30, v4, 2, s29", f"s_mov_b32 s64, {f32(c1)}\ns_mov_b32 s65, {f32(c1)}\nv_mov_b32 v0, {f32(c0)}"]
    if not att:
        epi += [rowp(40 + 2 * m, 30, 64 * m) for m in range(8)]
        epi += [f"s_lshl_b32 s29, s22, 7\ns_add_u32 s29, s29, {T_CS}\nv_lshl_add_u32 v31, v3, 4, s29"] + colreads(0)
        epi += ["s_mul_i32 s29, s24, 6\ns_add_u32 s29, s29, s22\ns_add_u32 s29, s29, 32", "s_lshl_b32 s29, s29, 10\nv_lshl_add_u32 v18, v2, 4, s29"]
    else:
        epi += ["v_lshl_add_u32 v31, v3, 4, s29", f"s_lshl_b32 s29, s22, 7\ns_add_u32 s29, s29, {T_CS}\nv_lshl_add_u32 v26, v3, 4, s29", "v_lshl_add_u32 v27, v4, 2, s29"]
        epi += [f"ds_read_b128 {R([8,12,40,44][n])}, v26 offset:{256*(n>>1)+64*(n&1)}" for n in range(4)]
        epi += ["ds_read_b32 v36, v27 offset:512\nds_read_b32 v37, v27 offset:576", rowp(22, 30, 0)]
        epi += lines("v_or_b32 v28, 8, v4\nv_and_b32 v32, 8, v4\nv_lshl_add_u32 v28, v32, 1, v28\nv_add_u32 v28, 96, v28\nv_add_u32 v32, 0x100, v4")
        epi += [f"s_cmp_eq_u32 s21, 0\ns_cselect_b64 vcc, -1, 0\ns_mov_b32 s29, {TB}", "v_cndmask_b32 v28, v28, v32, vcc", "v_lshl_add_u32 v28, v28, 2, s29"]
        epi += lines("v_and_b32 v32, 1, v3\nv_lshlrev_b32 v21, 4, v32\nv_lshl_add_u32 v32, v5, 2, v32\nv_add_u32 v32, 26, v32\nv_add_u32 v34, 64, v3\nv_cndmask_b32 v32, v32, v34, vcc\nv_lshl_add_u32 v32, v32, 4, s29")
        epi += ["v_lshl_add_u32 v21, v5, 6, v21", f"s_lshl_b32 s29, s22, 5\ns_add_u32 s29, s29, {T_CS+768}\nv_add_u32 v21, s29, v21"]
        epi += ["s_lshl_b32 s29, s24, 1\ns_add_u32 s29, s29, s22\ns_lshl_b32 s29, s29, 10", "v_lshl_add_u32 v18, v2, 4, s29"]
        epi += [f"v_mul_u32_u24 v17, {A2S}, v5", "v_and_b32 v34, 31, v2", "v_lshl_add_u32 v17, v34, 4, v17",
                "s_lshl_b32 s29, s24, 1\ns_add_u32 s29, s29, s22\ns_add_u32 s29, s29, 256", "s_lshl_b32 s29, s29, 9\nv_add_u32 v17, s29, v17"]
        epi += [f"s_mov_b32 s86, {f32(sc)}\ns_mov_b32 s87, {f32(sc)}"]

    A("WAITVM x0 w0\ns_barrier"); A(ts("land0"))
    emit(A, rd_w(0, 0) + rd_x(0, 0) + sum((rd_w(0, n) for n in range(1, nblk)), []))
    A("WAITDS W0_0 X0_0")
    M, end = mfmas(0, 0); n = len(M)
    DS = lambda L, n, a: (L, 0, n - 3, 4) if C.GRID & 2 and 4 * len(L) <= n and a == 0 else (L, a, n - 6)
    emit(A, place(M, rs_b(0, end, n) + [(seq(C.SEQ[1]), 0, n - C.S0E)]))
    pf0 = C.PF0[att]; STJ = C.STJ[att]; SJ = STJ + 2
    c0load = "buffer_load_dword v33, v34, s[48:51], 0 offen sc1"
    tbl = ["buffer_load_dwordx2 v[40:41], v30, s[16:19], s66 offen sc1", "buffer_load_dwordx2 v[42:43], v30, s[16:19], s66 offen offset:2048 sc1"]
    for j in range(16):
        if j < 2: pads(j + 1)
        if j < 15: A(f"WAITVM x{j+1} w{j+1}" + {SJ: " st", SJ + 2: " clr sst", 12: " c0", 13: " tb"}.get(j, "") + " | lgkmcnt(0)\ns_barrier")
        else: A("s_waitcnt lgkmcnt(0)\ns_barrier")
        A(ts(f"p{j}"))
        if C.IDLE and 3 <= j: A(C.IDLE)
        M, end = mfmas(j, 1); n = len(M); S = []; D = []
        if j < 15: S += rs_a(j + 1, end)
        if j == SJ: M = M + stm
        if j == SJ + 1: S.append((st2, 2, 40)); S.append((["s_mov_b64 exec, 0x101\nbuffer_store_dwordx2 v[44:45], v30, s[16:19], 0 offen sc1 ; @sst\ns_mov_b64 exec, -1"], n - 5, n - 4))
        if j == 11:
            D.append((None, c0load + " ; @c0"))
            sd = [f"v_min_u32 v30, {nblk*32-1}, v0", "v_and_b32 v27, 0xe0, v0", "v_lshl_add_u32 v27, v4, 1, v27", "v_and_b32 v28, 1, v3", "v_add_u32 v27, v27, v28",
                  "s_lshl_b32 s29, s23, 8\nv_add_lshl_u32 v27, v27, s29, 3"]
            if att: sd += ["v_and_b32 v28, 7, v4", "v_lshrrev_b32 v32, 3, v4", "v_lshl_add_u32 v28, v28, 1, v32", "s_max_u32 s39, s29, 16\ns_sub_u32 s39, s39, 16\nv_add_lshl_u32 v28, v28, s39, 3",
                           "v_and_b32 v31, 31, v0", "s_lshl_b32 s29, s24, 5\ns_add_u32 s29, s29, 3072\nv_add_lshl_u32 v31, v31, s29, 1"]
            else: sd += ["s_mul_i32 s29, s24, 192\nv_add_lshl_u32 v31, v30, s29, 1", "v_and_b32 v28, 127, v0", "s_lshl_b32 s29, s26, 7\nv_add_lshl_u32 v28, v28, s29, 1"]
            sd += ["v_lshlrev_b32 v30, 3, v30", "v_lshlrev_b32 v32, 2, v0"]
            S.append((sd, 4, 40))
        if j == 12:
            S.append(([spin(slow, P + "_c0", c0load, "v_cmp_gt_u32 vcc, 0x100, v33")], 0, 1))
            D += [(None, t + " ; @tb") for t in tbl]
            D.append((None, "buffer_load_dwordx2 v[44:45], v27, s[16:19], 0 offen sc1 ; @tb"))
            D.append((None, "buffer_load_dwordx2 v[46:47], v28, s[16:19], 0 offen sc1 ; @tb" if att else "buffer_load_ushort v46, v28, s[52:55], 0 offen ; @tb"))
            D.append((None, "buffer_load_ushort v36, v31, s[72:75], 0 offen ; @tb"))
        if j == 13:
            sd = [spin(slow, P + "_cs", "\n".join(tbl), "v_and_b32 v33, v41, v43\nv_cmp_ne_u32 vcc, 1, v33"), "v_add_f32 v40, v40, v42", f"v_add_u32 v32, {TB}, v32",
                  "ds_write2st64_b32 v32, v44, v45 offset0:0 offset1:5", "v_lshlrev_b32 v36, 16, v36", "ds_write2st64_b32 v32, v40, v36 offset0:10 offset1:14"]
            if att: sd += ["v_lshlrev_b32 v32, 2, v4", f"v_add_u32 v32, {TB+1024}, v32", "ds_write2st64_b32 v32, v46, v47 offset0:0 offset1:5"]
            else: sd += ["v_lshlrev_b32 v46, 16, v46", f"ds_write_b32 v32, v46 offset:{T_B2-TB}"]
            S.append((sd + setup_b, 1, n - 2))
        if att and j in (9, 10):
            sd = [f"v_mov_b32 v27, {f32(-1e30)}", "v_lshlrev_b32 v28, 2, v3", "v_sub_u32 v28, v28, v4",
                  "s_or_b32 s29, s23, s21\ns_cmp_lg_u32 s29, 0\ns_cselect_b64 s[64:65], -1, 0"]
            for q in range(2 * (j - 9), 2 * (j - 9) + 2):
                sel = lambda k: ["v_cndmask_b32 v33, v27, 0, vcc", f"v_accvgpr_write_b32 a{160+4*k+q}, v33"]
                sd += [f"v_add_u32 v32, {7+q}, v28", "v_cmp_gt_u32 vcc, 8, v32"] + sel(0) + ["v_cmp_lt_i32 vcc, 15, v32"] + sel(1)
                sd += ["s_and_b64 vcc, vcc, s[64:65]"] + sel(3) + ["v_cmp_lt_i32 vcc, 7, v32", "s_and_b64 vcc, vcc, s[64:65]\ns_mov_b32 vcc_hi, 0"] + sel(2)
            S.append((sd, 2, n - 4))
        sq = C.SEQ[2 + j] if 2 + j < len(C.SEQ) else (C.MRG if j < C.MJ else "xX:01234|wW:0123456").replace("X", str(j + 2)).replace("W", str(j + 3))
        D += seq(sq.split("|")[0])
        if j == 14: S.append((setup_a, 2, n - 4)); D += dma_b(1) + dma_b(2)
        if j == 15: S.append((epi, 0, n - 6)); D += dma_b(5) + dma_b(6) + (dma_b(7) if C.NPRE > 7 else [])
        S.append(DS(D, n, int(j == 12)))
        emit(A, place(M, S))
        if j < 15:
            A(f"WAITDS W{j+1}_0 X{j+1}_0")
            M, end = mfmas(j + 1, 0); n = len(M); S = rs_b(j + 1, end, n); D = []
            D += seq(sq.split("|")[1])
            if j == STJ: D += stl
            if j == 1:
                D.append((f"s_mov_b64 exec, {3 if att else 31}\nbuffer_store_dword v32, v29, s[16:19], 0 offen sc1 ; @clr\ns_mov_b64 exec, -1", None))
                D.append((f"s_mov_b32 exec_lo, s38\ns_mov_b32 exec_hi, 0\ns_cbranch_execz {P}_ncl\nbuffer_store_dwordx2 v[32:33], v31, s[16:19], 0 offen sc1 ; @cond\n{P}_ncl:\ns_mov_b64 exec, -1", None))
            if j == SJ: S.append((st1, 4, n - 1))
            if j in (2, 4, 6, 8, 10): D += cph()
            if not att: D += [(None, f"buffer_load_dwordx4 {aR(208+4*i)}, v21, s[60:63], 0 offen offset:{2048*(i>>2)+64*(i&3)}") for i in range(8) if C.XJ[i] == j]
            if j in (SJ + 2, SJ + 3):
                D.append((f"s_bfe_u32 s29, s2, 0x10004\ns_lshl_b32 s39, s20, 1\ns_add_u32 s29, s29, s39\ns_cmp_eq_u32 s29, {j-SJ-2}\ns_cbranch_scc0 {P}_na{j}\ns_mov_b64 exec, 1\n"
                          f"buffer_atomic_add v35, v34, s[48:51], 0 offen sc1 ; @cond\ns_mov_b64 exec, -1\n{P}_na{j}:", None))
            if j >= pf0: D += sum((pf(C.PFN * (j - pf0) + k) for k in range(C.PFN)), [])
            if j == 7: D.append((f"v_mov_b32 v37, 1\ns_mov_b32 exec_lo, s38\ns_mov_b32 exec_hi, 0\ns_cbranch_execz {P}_ncs\nbuffer_store_dwordx2 v[36:37], v31, s[16:19], 0 offen sc1 ; @cond\n{P}_ncs:\ns_mov_b64 exec, -1", None))
            if j == 12: D += cpf(P + "_epi", 0) + cpf(P + "_epi", 1)
            if j == 13: D += [tuple(setup_d)] + dma_b(0) + cpf(P + "_epi", 2)
            if j == 14: D += dma_b(3) + dma_b(4)
            S.append(DS(D, n, 0))
            emit(A, place(M, S))
    A(ts("g1end")); A(ts("RTg1")); A(ts("e0"))
    A(f"{P}_epi:")
    flag = lambda lane: f"s_mov_b64 exec, {1<<lane}\nbuffer_store_dword v35, v29, s[16:19], 0 offen sc1\ns_mov_b64 exec, -1"
    poll = lambda kind: f"buffer_load_dword v33, v20, s[16:19], {['0','s34','s32','s28'][kind]} offen sc1"
    ptest = "v_cmp_eq_u32 vcc, 0, v33"
    acc2 = lambda m, n: 64 + 32 * m + 4 * n
    G2A = 232
    g2_addr = lines("v_bfe_u32 v244, v2, 2, 3\nv_and_b32 v245, 3, v2\nv_lshlrev_b32 v246, 11, v5\nv_lshl_add_u32 v246, v244, 7, v246\nv_lshl_add_u32 v246, v245, 3, v246\n"
                    f"v_lshrrev_b32 v244, 1, v244\nv_lshl_add_u32 v{G2A}, v244, 5, v246\nv_add_u32 v{G2A+4}, 0x10000, v{G2A}") + [f"v_xor_b32 v{G2A+4+c}, {32*c}, v{G2A+4}" for c in (1, 2, 3)]
    g2_addr2 = [f"v_add_u32 v{G2A+8+c}, 0x10000, v{G2A+4+c}" for c in range(4)] + [f"v_xor_b32 v{G2A+c}, {32*c}, v{G2A}" for c in (1, 2, 3)]
    def reads2(j, p):
        st = BS(j); w = G2A + 4 * (st >> 16); st &= 0xffff
        fr = [(f >> 1, p, f & 1) if j < NK - 1 else (f & 3, f >> 2, p) for f in range(8)]
        return [f"ds_read_b64_tr_b16 a[{32*p+4*f+2*h}:{32*p+4*f+2*h+1}], v{w+c} offset:{st + (2*kk+h)*4096 + ln*1024}" for f, (c, ln, kk) in enumerate(fr) for h in range(2)]
    def gelu8(t, rs, cs, b1):
        u = [22, 24, 26, 38]; L = []
        for i in range(4): L.append(f"v_pk_fma_f32 {Pn(u[i])}, {Pn(cs[i])}, {Pn(rs[i])}, {Pn(b1[i])} op_sel:[0,1,0] op_sel_hi:[1,1,1] neg_lo:[0,1,0] neg_hi:[0,1,0]")
        for i in range(4): L.append(f"v_pk_fma_f32 {Pn(t[i])}, {Pn(t[i])}, {Pn(rs[i])}, {Pn(u[i])} op_sel_hi:[1,0,1]")
        for i in range(4): L.append(f"v_pk_mul_f32 {Pn(u[i])}, {Pn(t[i])}, {Pn(t[i])}")
        for i in range(4): L.append(f"v_pk_fma_f32 {Pn(u[i])}, {Pn(u[i])}, s[64:65], v[0:1] op_sel_hi:[1,1,0]")
        for i in range(4): L.append(f"v_pk_mul_f32 {Pn(u[i])}, {Pn(u[i])}, {Pn(t[i])}")
        for i in range(8): L.append(f"v_exp_f32 v{u[i>>1]+(i&1)}, v{u[i>>1]+(i&1)}")
        for i in range(4): L.append(f"v_pk_add_f32 {Pn(u[i])}, {Pn(u[i])}, 1.0 op_sel_hi:[1,0]")
        for i in range(8): L.append(f"v_rcp_f32 v{u[i>>1]+(i&1)}, v{u[i>>1]+(i&1)}")
        for i in range(4): L.append(f"v_pk_mul_f32 {Pn(u[i])}, {Pn(u[i])}, {Pn(t[i])}")
        for i in range(4): L.append(cvt(t[0] + i, u[i]))
        return L
    start2 = ["WAITVM b0 b1\ns_barrier"] + reads2(0, 0)
    A0 = lda(0)
    if not att:
        for ln in range(3):
            A("s_waitcnt lgkmcnt(0)")
            for m in range(8):
                if m in (0, 4): A(ts(f"L{ln}m{m}"))
                d = acc(m, 2 * ln)
                G = gelu8([d, d + 2, d + 4, d + 6], [40 + 2 * m] * 4, [56, 58, 60, 62], [8, 10, 12, 14]); S = []
                if m == 7 and ln < 2: S.append((colreads(ln + 1), 6, 8))
                if ln == 0 and m == 2 and C.NPRE > 8: S.append((dma_b(8), 2, 40))
                if ln == 1 and m == 3: S.append((["WAITVM h0\n" + flag(0)], 2, 3))
                if ln == 2:
                    if m == 0: emit(A, g2_addr)
                    if m == 2: S.append(([poll(1) + " ; @p1"], 2, 3))
                    if m == 4: S.append((["WAITVM p1 h1\n" + flag(1) + "\n" + spin(slow, P + "_f1", poll(1), ptest)] + A0[:4], 30, 44))
                    if m == 5: S.append((A0[4:], 2, 44))
                    if m == 6: S.append(([f"s_mov_b32 s29, {T_B2}\nv_lshl_add_u32 v32, v3, 4, s29"] + [f"ds_read_b128 {R(acc2(1,n))}, v32 offset:{64*n}" for n in range(8)], 2, 30))
                    if m == 7: S.append((start2, 2, 40))
                emit(A, place(G, S))
                A(f"s_mov_b32 s29, {m*A2S + ln*2048}\nbuffer_store_dwordx4 {R(d)}, v18, s[12:15], s29 offen {C.ST_AUX} ; @h{ln}")
    else:
        tmp = [26, 38, 46 - 40, 34]
        tmp = [26, 38, 26, 38]
        for m in range(9):
            A("s_waitcnt lgkmcnt(0)")
            if m < 8: A(rowp(22 + 2 * ((m + 1) & 1), 28 if m == 7 else 30, 64 * ((m + 1) & 7)))
            else: A("ds_read_b128 v[8:11], v32\nds_read_b128 v[12:15], v32 offset:1280")
            rs = Pn(22 + 2 * (m & 1))
            for part in ((0, 1) if m < 8 else (1,)):
                src = (acc(m, 0) + 8 * part) if m < 8 else 48; dst = (acc(m, 0) + 4 * part) if m < 8 else 48; cs = [8, 40][part]
                for i in range(4): A(f"v_pk_mul_f32 {Pn(src+2*i)}, {Pn(src+2*i)}, {rs} op_sel_hi:[1,0]")
                for i in range(4): A(f"v_pk_fma_f32 {Pn(src+2*i)}, {Pn(cs+2*i)}, {rs}, {Pn(src+2*i)} op_sel:[0,1,0] op_sel_hi:[1,1,1] neg_lo:[0,1,0] neg_hi:[0,1,0]")
                for i in range(4): A(cvt(dst + i, src + 2 * i))
        A(ts("v"))
        order = [8] + list(range(8))
        for k, m in enumerate(order):
            A("s_waitcnt lgkmcnt(0)")
            b = k & 1
            if k < 8: A(f"ds_read_b128 {R([8,40][1-b])}, v31 offset:{64*k}\nds_read_b128 {R([12,44][1-b])}, v31 offset:{64*k+1280}")
            rs, mr = [8, 40][b], [12, 44][b]
            src = 56 if m == 8 else acc(m, 4)
            for i in range(4): A(f"v_pk_mul_f32 {Pn(src+2*i)}, {Pn(src+2*i)}, {Pn(rs+2*(i&1))}")
            for i in range(4): A(f"v_pk_fma_f32 {Pn(src+2*i)}, {Pn(mr+2*(i&1))}, v[36:37], {Pn(src+2*i)} op_sel:[0,{i>>1},0] op_sel_hi:[1,{i>>1},1] neg_lo:[0,1,0] neg_hi:[0,1,0]")
            for i in range(4):
                db, h = i >> 1, i & 1
                if m == 8: dsts = [acc(0, 2 + db) + h, acc(1, 2 + db) + h]
                else: dsts = [acc(m, 2 + db) + 2 + h] + ([acc(m + 2, 2 + db) + h] if m < 6 else [])
                for d in dsts: A(cvt(d, src + 2 * i))
        A(ts("s"))
        mk = [8, 12, 40, 44]
        for k in range(4):
            for q in range(4): A(f"v_accvgpr_read_b32 v{mk[k]+q}, a{160+4*k+q}")
        def smf(m): return [f"{MF} {R(acc(m,4))}, {R(48 if m < 2 else acc(m-2,1))}, {R(acc(m,0))}, {R(mk[2+m] if m < 2 else mk[1])}",
                            f"{MF} {R(acc(m,5))}, {R(acc(m,1))}, {R(acc(m,0))}, {R(mk[0])}"]
        def smax(m):
            s = acc(m, 4); mx = 22 + 2 * (m & 1); q = acc(m, 0)
            L = [f"v_max3_f32 v{mx}, v{s}, v{s+1}, v{s+2}", f"v_max3_f32 v{mx+1}, v{s+3}, v{s+4}, v{s+5}", f"v_max3_f32 v{mx}, v{mx}, v{s+6}, v{s+7}", f"v_max_f32 v{mx}, v{mx}, v{mx+1}"]
            for sw in (16, 32): L += [f"v_mov_b32 v{mx+1}, v{mx}", f"v_permlane{sw}_swap_b32 v{mx}, v{mx+1}", f"v_max_f32 v{mx}, v{mx}, v{mx+1}"]
            L.append(f"v_mul_f32 v{mx}, s86, v{mx}")
            for i in range(4): L.append(f"v_pk_fma_f32 {Pn(s+2*i)}, {Pn(s+2*i)}, s[86:87], {Pn(mx)} op_sel_hi:[1,1,0] neg_lo:[0,0,1] neg_hi:[0,0,1]")
            for i in range(8): L.append(f"v_exp_f32 v{s+i}, v{s+i}")
            for i in range(4): L.append(cvt(q + i, s + 2 * i))
            return L
        def pvf(m):
            q = acc(m, 0)
            return [f"{MF} {R(acc(m,4))}, {R(acc(m,2))}, {R(q)}, 0", f"{MF} {R(acc(m,5))}, {R(acc(m,3))}, {R(q)}, 0", f"{MF} {R(acc(m,2))}, a[136:139], {R(q)}, 0"]
        def fin(m):
            s = acc(m, 4); l = acc(m, 2); q = acc(m, 0)
            L = [f"v_rcp_f32 v{l}, v{l}"]
            for i in range(4): L.append(f"v_pk_mul_f32 {Pn(s+2*i)}, {Pn(s+2*i)}, {Pn(l)} op_sel_hi:[1,0]")
            for i in range(4): L.append(cvt(q + i, s + 2 * i))
            L.append(f"s_mov_b32 s29, {m*A2S}\nbuffer_store_dwordx4 {R(q)}, v18, s[12:15], s29 offen {C.ST_AUX} ; @o")
            return L
        zp = lambda a, b: [x for p in zip(a, b) for x in p]
        emit(A, smf(0) + smf(1))
        for i in range(8): A(f"v_accvgpr_read_b32 v{52+i}, a{176+i}")
        for mp in range(4):
            G = zp(smax(2 * mp), smax(2 * mp + 1)); S = []
            if mp < 3: S.append((smf(2 * mp + 2) + smf(2 * mp + 3), 22, 38))
            if mp > 0: S.append((pvf(2 * mp - 2) + pvf(2 * mp - 1), 1, 19))
            if mp == 0 and C.NPRE > 8: S.append((dma_b(8), 2, 20))
            if mp == 1: S.append(([rowp(40 + 2 * m, 30, 64 * m) for m in range(4)], 40, 50))
            if mp == 2: S.append(([poll(1) + " ; @p1"], 40, 41))
            if mp == 3: S.append((["ds_read_b128 v[8:11], v21\nds_read_b128 v[12:15], v21 offset:1024"] + [rowp([48, 50, 60, 62][m], 30, 256 + 64 * m) for m in range(4)], 40, 50))
            emit(A, place(G, S))
            if mp > 0: emit(A, zp(fin(2 * mp - 2), fin(2 * mp - 1)))
        A(ts("h"))
        A("s_waitcnt lgkmcnt(0)")
        rp = [40, 42, 44, 46, 48, 50, 60, 62]
        for mp in range(4):
            d = 52 if mp == 0 else 128 + 8 * mp
            if mp:
                for i in range(8): A(f"v_accvgpr_read_b32 v{d+i}, a{176+8*mp+i}")
            G = gelu8([d, d + 2, d + 4, d + 6], [rp[2 * mp]] * 2 + [rp[2 * mp + 1]] * 2, [8, 10, 8, 10], [12, 14, 12, 14]); S = []
            if mp == 0: S.append((pvf(6) + pvf(7), 1, 19)); S.append((["WAITVM p1\n" + spin(slow, P + "_f1", poll(1), ptest)] + A0[:4], 24, 44))
            if mp == 1: S.append((A0[4:], 2, 44))
            if mp == 3: S.append((start2, 2, 40))
            emit(A, place(G, S))
            A(f"v_permlane32_swap_b32 v{d}, v{d+2}\nv_permlane32_swap_b32 v{d+1}, v{d+3}")
            A(f"s_mov_b32 s29, {2*mp*A2S}\nbuffer_store_dwordx4 {R(d)}, v17, s[12:15], s29 offen {C.ST_AUX} ; @h2")
            if mp == 0: emit(A, zp(fin(6), fin(7))); emit(A, g2_addr)

    def mfmas2(j, p):
        L = []; ms = list(range(4 if steps[j][5] else 2)); t = 0
        if j == NK - 1:
            return [f"{MF} {R(acc2(m,n))}, {aR(32*p+4*n)}, {aR(areg(j, p, m))}, {R(acc2(m,n))}" for n in range(8) for m in (ms if n % 2 == 0 else ms[::-1])]
        for c in range(4):
            n = 4 * p + c
            for m in (ms if n % 2 == 0 or j == 0 else ms[::-1]):
                d = R(acc2(m, n)); t += 1
                for q, kk in enumerate((0, 1) if t % 2 else (1, 0)):
                    cc = d if j or q else ("0" if att or m > 1 else R(acc2(1, n)))
                    L.append(f"{MF} {d}, {aR(32*p+8*c+4*kk)}, {aR(areg(j, kk, m))}, {cc}")
        return L
    def sub2(M, Rd, S, D):
        n = len(M); S = [(Rd, 0, n)] + S
        if D: S.append((D, 0, n, 4) if C.GRID & 1 and n >= 4 * len(D) else (D, 1, n + 1) if n >= 3 * len(D) else (D, 0, n - 1))
        S.append((["s_waitcnt lgkmcnt(8)"], n // 2 - 1, n // 2))
        emit(A, place(M, S))
    A("WAITVM a0 | lgkmcnt(0)"); A(ts("g2go")); A(ts("RTg2")); A(ts("g2go2"))
    A(f"{P}_g2:")
    first_need = {}
    for s, st in enumerate(steps): first_need.setdefault(st[3], s)
    bars = [j for j in range(NK - 1) if (j < NW and j % C.KBW == 0) or (j >= NW and (j - NW) % C.KB == 0)]
    checks = {first_need[k] - 4: k for k in first_need if k != 1}
    T = [0]
    for u in range(2 * NK): T.append(T[-1] + (32 if steps[u // 2][5] else 16))
    fixed = {2 * NW - 2: 2, 2 * NW - 1: 4, 2 * NW: 2}
    UX = 2 * NK - 1 - C.XU; UY = UX - 2
    for u in range(UY if att else UX, 2 * NK): fixed[u] = 9
    ok = {k: 2 * (j + 1) + 1 for j, k in checks.items()}; ok[1] = 0
    QA = [(max(2 * aprev(x) + 2, ok[steps[x][3]]), T[2 * x], x) for x in range(1, NK) for _ in range(8 if steps[x][5] else 4)]
    QB = [(2 * next(b for b in bars if b >= x - NB + 1) + 1 if x >= NB else 0, T[2 * max(b for b in bars if b < x) + 1] - C.BM, x) for x in range(C.NPRE, NK) for _ in range(4)]
    plan = []; marg = 999
    for u in range(2 * NK - 1):
        cap = (8 if u == 0 else C.CAPW if steps[u // 2][5] else C.CAPN) - fixed.get(u, 0); P_ = []
        while len(P_) < cap:
            c = [q for q in (QA, QB) if q and q[0][0] <= u]
            if not c: break
            q = min(c, key=lambda q: q[0][1]); it = q.pop(0); P_.append(("a" if q is QA else "b", it[2]))
            marg = min(marg, it[1] + (C.BM if q is QB else 0) - T[u + 1])
        plan.append(P_)
    assert not QA and not QB and marg >= 0, marg
    C.marg[att] = marg
    qa = []; qb = []
    def take(u):
        out = []
        for k, x in plan[u]:
            q = qa if k == "a" else qb
            if not q: q.extend(lda(x) if k == "a" else dma_b(x))
            out.append(q.pop(0))
        return out
    busy = {BS(x) for x in range(bars[-1], NK)}
    STG = next(r * 16384 for r in range(NB - 2) if not busy & {(r + x) * 16384 for x in range(3)})
    sub2(mfmas2(0, 0), reads2(0, 1), [(g2_addr2, 3, 28)], take(0))
    xpoll = "buffer_load_dword v33, v34, s[16:19], 0 offen sc1"
    ypoll = "buffer_load_dword v25, v26, s[16:19], 0 offen sc1"
    xl = lambda base, a, tag: [f"buffer_load_dwordx4 {R(base+4*i)}, v{a}, s[56:59], {'s34' if i>=4 else '0'} offen offset:{1024*(i&3)} sc1 ; @{tag}" for i in (0, 4, 1, 5, 2, 6, 3, 7)]
    gl = att and C.GLAST; XL = xl(128, 18 if gl else 13, "xl"); YL = xl(160, 13 if gl else 18, "yl")
    gate = lambda v, sr: f"v_cmp_eq_u32 vcc, 0, v{v}\ns_cmp_eq_u64 vcc, 0\ns_cselect_b32 s58, {16*MB}, 0\ns_mov_b32 s{sr}, s58"
    def extra(u, S, D):
        w = ""
        if u == UX - C.XD: S.append(([xpoll + " ; @px"], 0, 1))
        if u == UX: w += " px"; S.append(([gate(33, 64)], 0, 1))
        if u in (UX, UX + 1): D += [(None, x) for x in XL[4*(u-UX):4*(u-UX)+4]]
        if att:
            if u == UY - C.YD: S.append(([ypoll + " ; @py"], 0, 1))
            if u == UY: w += " py"; S.append(([gate(25, 65)], 0, 1))
            if u in (UY, UY + 1): D += [(None, x) for x in YL[4*(u-UY):4*(u-UY)+4]]
        if u == 2 * NW + C.SWF: w += " sw"; S.append(([flag(1 if att else 4)], 0, 1))
        return w
    blocks = lambda p: [(0, 2 * p), (1, 2 * p), (1, 2 * p + 1), (0, 2 * p + 1)]
    ids = lambda p, base: [f"{MF} {R(acc2(m,n))}, {R(194-2*(n&1))}, {R(base+16*m+4*p)}, {R(acc2(m,n))}" for m, n in blocks(p)]
    def swp(p):
        V = []; D = []
        for m in range(2):
            d = acc2(2 + m, 2 * p); V += [cvt(d + q, d + 2 * q) for q in range(4)]
            D.append(f"buffer_store_dwordx4 {R(d)}, v12, s[56:59], {'s34' if m else '0'} offen offset:{1024*p} sc1 ; @sw")
        return V[:4] + [D[0]] + V[4:] + [D[1]]
    for j in range(NK - 1):
        S = []; bar = j in bars
        nxt = next((b for b in bars if b > j), NK - 1)
        w = "WAITVM" + (f" b{nxt}" if bar else "")
        if j - 1 in checks: w += f" p{checks[j-1]}"
        if j == 1: w += " h2"
        D = take(2 * j + 1); w += extra(2 * j + 1, S, D)
        A((w + " | lgkmcnt(8)" if w != "WAITVM" else "s_waitcnt lgkmcnt(8)") + ("\ns_barrier" if bar else ""))
        if j in (0, 7) or (j >= NW and j % 2 == 0): A(ts(f"q{j}"))
        M = mfmas2(j, 1)
        if j - 1 in checks: S.append(([spin(slow, f"{P}_g{checks[j-1]}", poll(checks[j-1]), ptest)], 0, 1))
        if j == 1: S.append(([flag(0 if att else 2)], 0, 1))
        if j in checks: S.append(([poll(checks[j]) + f" ; @p{checks[j]}"], 0, 1))
        if j == 2:
            sd = [f"s_lshl_b32 s29, s37, 13\ns_add_u32 s29, s29, {8*MB}\nv_lshl_add_u32 v12, v2, 4, s29", "v_xor_b32 v13, 0x10000, v12",
                  "s_lshr_b32 s29, s2, 1\ns_lshl_b32 s29, s29, 2\ns_add_u32 s29, s29, s20", "s_lshl_b32 s29, s29, 13\nv_lshl_add_u32 v18, v2, 4, s29",
                  f"s_xor_b32 s29, s99, 1024\nv_mov_b32 v{26 if gl else 34}, s29"]
            if att: sd += [f"v_mov_b32 v{34 if gl else 26}, s67"] + lines(xo_base) + ["v_lshrrev_b32 v10, 3, v2", "v_and_b32 v11, 7, v2", "v_lshl_add_u32 v21, v10, 12, s29", "v_lshl_add_u32 v21, v11, 4, v21"]
            S.append((sd, 2, 30))
        if j == 5:
            sd = ["v_and_b32 v22, 1, v4", "v_lshlrev_b32 v22, 4, v22", "v_mov_b32 v23, 0x3f80", "v_lshlrev_b32 v22, v22, v23", "v_lshrrev_b32 v23, 1, v4", "v_lshlrev_b32 v24, 1, v3", "v_sub_u32 v23, v23, v24",
                  "v_cmp_eq_u32 vcc, 0, v23", "v_mov_b32 v192, 0", "v_cndmask_b32 v194, 0, v22, vcc", "v_cmp_eq_u32 vcc, 1, v23", "v_mov_b32 v193, 0", "v_cndmask_b32 v195, 0, v22, vcc", "v_mov_b32 v196, 0", "v_mov_b32 v197, 0"]
            S.append((sd, 2, 32))
        if j == 6:
            if att: sd = ["v_mul_u32_u24 v8, 272, v4", "v_lshl_add_u32 v8, v3, 3, v8", f"s_mul_i32 s29, s20, 8704\ns_add_u32 s29, s29, {STG}\nv_add_u32 v8, s29, v8",
                          "v_mul_u32_u24 v9, 272, v10", "v_lshl_add_u32 v9, v11, 4, v9", "v_add_u32 v9, s29, v9"]
            else: sd = ["v_sub_u32 v23, v23, v24"] + [x for d in range(8) for x in (f"v_cmp_eq_i32 vcc, {(d&3) - 8*(d>>2)}, v23", f"v_cndmask_b32 v{200+d}, 0, v22, vcc")]
            S.append((sd, 2, 32))
        if j == NW - 1: S.append((swp(1), 4, 16)); S.append((swp(2), 20, 32))
        sub2(M, reads2(j + 1, 0), S, D)
        M = mfmas2(j + 1, 0); S = []
        D = take(2 * j + 2); w = extra(2 * j + 2, S, D)
        A(f"WAITVM a{j+1}{w} | lgkmcnt(8)")
        if j == NW - 2: S.append((swp(0), 20, 32))
        if j == NW - 1: S.append((swp(3), 4, 16))
        sub2(M, reads2(j + 1, 1), S, D)
        if not att and j == 8:
            for n in range(8):
                for m in range(2): A(f"{MF} {R(acc2(m,n))}, {R(200+4*(n&1))}, {aR(208+16*m+4*(n>>1))}, {R(acc2(m,n))}")
    assert not (qa or qb)
    A(ts("RTg2e")); A(ts("g2end"))
    def late(nm, sr, pl, v, L, tail):
        A(f"s_cmp_eq_u32 s{sr}, 0\ns_cbranch_scc1 {P}_{nm}_slow\n{P}_{nm}done:")
        slow.append(f"{P}_{nm}_slow:\ns_mov_b32 s39, {C.SPIN}\ns_mov_b32 s58, {16*MB}\n{P}_{nm}_spin:\n{pl}\ns_waitcnt vmcnt(0)\nv_cmp_eq_u32 vcc, 0, v{v}\ns_cbranch_vccz {P}_{nm}_ok\ns_sleep {C.XSL}\n"
                    f"s_sub_u32 s39, s39, 1\ns_cmp_lg_u32 s39, 0\ns_cbranch_scc1 {P}_{nm}_spin\n{P}_{nm}_ok:\n" + "\n".join(L) + f"\n{tail}s_branch {P}_{nm}done")
    if att: late("y", 65, ypoll, 25, YL, f"s_cmp_eq_u32 s64, 0\ns_cbranch_scc1 {P}_ydone\ns_waitcnt vmcnt(0)\n")
    late("x", 64, xpoll, 33, XL, "")
    A(ts("xgot"))
    if att:
        A("s_mov_b32 s29, 0x8000\ns_waitcnt vmcnt(8)")
        for p in range(4): emit(A, ids(p, 160))
    A("s_waitcnt lgkmcnt(8)")
    reg = mfmas2(NK - 1, 1)
    def post(p):
        L = []
        for m, n in blocks(p):
            d = acc2(m, n); o = 160 + 16 * m + 4 * p
            if att: L += [cvt(d, d), cvt(d + 1, d + 2), f"ds_write_b64 v8, {Pn(d)} offset:{4352*m + 32*n}"]
            else:
                L += [cvt(o + 2 * (n & 1), d), cvt(o + 2 * (n & 1) + 1, d + 2)]
                if n & 1: L.append(f"buffer_store_dwordx4 {R(o)}, v18, s[56:59], {'s34' if m else '0'} offen offset:{1024*p} sc1")
        return L
    rd = lambda h: [f"ds_read_b128 {R(160+16*h+4*i)}, v9 offset:{2176*i + 128*h}" for i in range(4)]
    st = lambda h, i: f"buffer_store_dwordx4 {R(160+16*h+4*i)}, v21, s[52:55], {'s29' if i&1 else '0'} offen offset:{2048*(i>>1) + 128*h} {C.OUT_AUX}"
    for p in range(4):
        S = [([f"s_waitcnt vmcnt({6 - 2*p + (0 if att else 2*max(p-1, 0))})"], 3, 4)]
        if p == 0: S.append((["s_waitcnt lgkmcnt(0)"], 7, 8))
        if att and p == 3: S.append((rd(0), 0, 2))
        if p: S.append((post(p - 1), 2, 8))
        emit(A, place(reg[4*p:4*p+4] + ids(p, 128), S))
    if att:
        A("s_waitcnt lgkmcnt(4)"); emit(A, [st(0, 0), st(0, 1)])
        emit(A, post(3) + rd(1) + [st(0, 2), st(0, 3)])
        for i in range(4): A(f"s_waitcnt lgkmcnt({3-i})\n" + st(1, i))
    else:
        emit(A, post(3))
        A(ts("xs")); A("s_waitcnt vmcnt(0)\n" + flag(3))
    stamp_out(A)
    A(f"{P}_fin:\ns_endpgm")
    for s in slow: A("s_nop 7\n" + s)
    A(f"{P}_end:")

def build(path, **kw):
    for k, v in kw.items(): setattr(C, k, v)
    A = Asm(); name = NAME + "_kernel"
    A(f".text\n.globl {name}\n.p2align 8\n.type {name},@function\n{name}:")
    A("s_cmp_ge_u32 s2, 256\ns_cbranch_scc0 L_go\ns_endpgm\nL_go:")
    for r, o in ((60, 0), (8, 8), (68, 32), (16, 80), (40, 16), (44, 48), (72, 40), (48, 72)): A(f"s_load_dwordx2 s[{r}:{r+1}], s[0:1], {o}")
    C.names = []
    if C.FINE == 1: A("s_memtime s[98:99]")
    A(ts("RTstart"))
    A("v_lshrrev_b32 v3, 6, v0\nv_and_b32 v2, 63, v0\nv_readfirstlane_b32 s20, v3\nv_and_b32 v4, 15, v2\nv_lshrrev_b32 v3, 4, v2")
    A("s_lshr_b32 s29, s2, 3\ns_xor_b32 s29, s29, s2\ns_and_b32 s35, s29, 1\ns_cselect_b32 s30, 7, 11")
    A("s_getpc_b64 s[76:77]\nL_pc:\ns_mul_i32 s29, s35, Lg_base-La_base\ns_add_u32 s29, s29, La_base-L_pc\n" + add64(76, "s29") + "\ns_mov_b32 s78, Lg_end-Lg_base\ns_mov_b32 s79, 0x20000")
    if C.PAD: A("s_lshl_b32 s29, s20, 7\nv_lshl_add_u32 v24, v3, 9, s29\nbuffer_load_dword a141, v24, s[76:79], 0 offen\nv_lshl_add_u32 v25, v4, 12, s29\nbuffer_load_dword a141, v25, s[76:79], 0 offen")
    A("v_lshrrev_b32 v24, 3, v2\nv_and_b32 v25, 7, v2")
    A("s_bfe_u32 s23, s2, 0x20004\ns_bfe_u32 s3, s2, 0x10001\ns_lshl_b32 s29, s3, 2\ns_add_u32 s23, s23, s29" + ("\ns_mov_b32 s3, 0" if C.NOROT else ""))
    A("v_and_b32 v26, 6, v24\nv_xor_b32 v26, v25, v26\nv_lshlrev_b32 v17, 12, v24\nv_lshl_add_u32 v17, v26, 4, v17\ns_lshl_b32 s29, s20, 17\ns_add_u32 s29, s29, 32768\nv_add_u32 v16, s29, v17")
    A("s_lshr_b32 s38, s2, 6\ns_lshl_b32 s80, s38, 15\ns_and_b32 s39, s38, 2\ns_add_u32 s38, s38, s39\ns_lshl_b32 s39, s20, 3\ns_add_u32 s38, s38, s39\ns_lshl_b32 s84, s38, 10")
    A("s_lshl_b32 s64, s23, 19\ns_lshl_b32 s39, s3, 10\ns_add_u32 s64, s64, s39\n" + srd(4, 18 * 32768))
    for i in range(1, 4): A(f"s_xor_b32 s{80+i}, s80, {i<<15}\ns_xor_b32 s{84+i}, s84, {((i&1) + 4*(i>>1)) << 10}")
    A("s_lshr_b32 s24, s2, 6\ns_and_b32 s29, s2, 1\ns_lshl_b32 s29, s29, 2\ns_add_u32 s24, s24, s29\ns_and_b32 s29, s2, 4\ns_lshl_b32 s29, s29, 1\ns_add_u32 s24, s24, s29")
    A("s_lshl_b32 s29, s35, 10\ns_add_u32 s36, s29, 6144\ns_lshl_b32 s29, s35, 8\ns_add_u32 s31, s29, 128")
    A("v_and_b32 v26, 2, v24\nv_xor_b32 v25, v25, v26\ns_and_b32 s39, s23, 1\ns_lshl_b32 s29, s39, 2\nv_xor_b32 v25, s29, v25")
    A("s_lshl_b32 s29, s20, 1\ns_add_u32 s29, s29, s39\ns_lshl_b32 s29, s29, 3\nv_add_u32 v26, s29, v24\nv_mul_u32_u24 v26, s36, v26\nv_lshl_add_u32 v18, v25, 4, v26")
    A("s_xor_b32 s29, s29, 8\nv_add_u32 v26, s29, v24\nv_mul_u32_u24 v26, s36, v26\nv_xor_b32 v25, 4, v25\nv_lshl_add_u32 v19, v25, 4, v26")
    A("s_mul_i32 s65, s3, s36\ns_lshl_b32 s65, s65, 9\ns_mul_i32 s31, s31, s24\ns_add_u32 s65, s65, s31")
    A(f"s_lshl_b32 s10, s36, 8\ns_mov_b32 s11, 0x20000\ns_mul_i32 s27, s20, 7168\ns_add_u32 s27, s27, {WB}\ns_mul_i32 s39, s39, 3072\ns_and_b32 s38, s23, 2")
    for k in range(3):
        A(f"s_cmp_eq_u32 s38, 0\ns_cselect_b32 s29, {k}, {(k+2)%3}\ns_lshl_b32 s{94+k}, s29, s30\ns_lshl_b32 s29, s29, 10\ns_add_u32 s29, s29, s27")
        A(f"s_add_u32 s{88+k}, s29, s39\ns_sub_u32 s29, s29, s39\ns_add_u32 s{91+k}, s29, 3072")
    if C.PRE:
        A("s_lshr_b32 s29, s2, 6\ns_lshl_b32 s29, s29, 1\ns_bfe_u32 s39, s2, 0x10003\ns_add_u32 s29, s29, s39\ns_lshl_b32 s29, s29, 2\ns_add_u32 s29, s29, s20\ns_lshl_b32 s29, s29, 14\ns_add_u32 s29, s29, 32896")
        A(f"v_and_b32 v41, 7, v2\nv_lshl_add_u32 v40, v41, 11, s29\nv_min_u32 v41, {C.PRE-1}, v24\nv_lshl_add_u32 v40, v41, 7, v40")
        A(f"s_lshl_b32 s10, s36, 8\ns_and_b32 s29, s23, 3\ns_lshl_b32 s29, s29, 2\ns_add_u32 s29, s29, s20\ns_lshl_b32 s29, s29, 2\ns_add_u32 s29, s29, 64\nv_and_b32 v41, 3, v2\nv_min_u32 v42, {C.PRE-1}, v3\nv_lshl_add_u32 v41, v42, 6, v41\nv_add_u32 v43, s29, v41")
        A("v_mul_u32_u24 v41, s36, v43\nv_bfe_u32 v42, v2, 2, 2\nv_min_u32 v42, 2, v42\nv_lshlrev_b32 v42, s30, v42\nv_add_u32 v41, v41, v42\nv_mul_u32_u24 v43, 7168, v43")
    if C.FINE == 1: A("s_memtime s[66:67]")
    A("s_mov_b32 m0, s84\ns_waitcnt lgkmcnt(0)")
    if C.FINE == 1:
        A("v_writelane_b32 v1, s100, 0\nv_writelane_b32 v1, s98, 1\ns_mov_b32 s100, s66"); C.names += ["t0", "pre"]
    A(ts("karg"))
    A("s_add_u32 s4, s60, s64\ns_addc_u32 s5, s61, 0\n" + sub64(4, 32768))
    xd = lambda i: f"buffer_load_dwordx4 v16, s[4:7], s{80+i} offen lds\nbuffer_load_dwordx4 v16, s[4:7], s{80+i} offen offset:2048 lds"
    A(xd(0))
    A("s_mov_b32 m0, s88\ns_cmp_eq_u32 s35, 0\ns_cselect_b32 s8, s8, s68\ns_cselect_b32 s9, s9, s69\n" + add64(8, "s65"))
    for k in range(3):
        A((f"s_mov_b32 m0, s{88+k}\n" if k else "") + f"buffer_load_dwordx4 v18, s[8:11], s{94+k} offen lds")
        if k == 1 and C.PRE: A("buffer_load_dword a140, v40, s[4:7], 0 offen\nbuffer_load_dword a140, v41, s[8:11], 0 offen")
    A("s_mov_b32 m0, s85\n" + xd(1))
    A("s_lshr_b32 s21, s20, 1\ns_and_b32 s22, s20, 1\ns_mov_b32 s33, 0x3f803f80")
    A("s_bfe_u32 s25, s2, 0x20003\ns_and_b32 s29, s2, 4\ns_add_u32 s25, s25, s29\ns_lshl_b32 s25, s25, 1\ns_add_u32 s25, s25, s3\ns_lshr_b32 s26, s2, 5".replace("s_add_u32 s25, s25, s3", "s_bfe_u32 s29, s2, 0x10001\ns_add_u32 s25, s25, s29"))
    C.common = C.names
    A("s_cmp_eq_u32 s35, 0\ns_cbranch_scc0 Lg_base\ns_branch La_base")
    role(A, True)
    role(A, False)
    A.lines = resolve_ds(resolve_vm(A.lines))
    if C.EXP:
        reg = None; L = []; nb = 0
        for l in A.lines:
            if l.endswith("_ret1:"): reg = "g1"
            if l.endswith("_epi:"): reg = "epi"
            if l.endswith("_g2:"): reg = "g2"
            if l.endswith("_fin:"): reg = None
            k = False
            if reg == "g2" and C.EXP & 4 and l.startswith("ds_read_b64_tr"): k = True
            if reg == "g2" and C.EXP & 8 and l.startswith("buffer_load_dwordx4") and ("v16" in l or "v19" in l): k = True
            if reg == "g1" and C.EXP & 16 and l.startswith("ds_read") and " a[" in l: k = True
            if reg == "g1" and C.EXP & 32 and l.endswith("lds") and "s31" not in l: k = True
            if reg == "epi" and C.EXP & 64 and l.startswith(("v_exp", "v_rcp", "v_pk_")): continue
            if reg == "g2" and C.EXP & 128 and l.startswith("v_mfma"): l = "s_nop 3"
            if reg == "g1" and C.EXP & 256 and l.startswith("v_mfma"): l = "s_nop 3"
            L.append("s_nop 0" if k else l)
        A.lines = L
    body = A.finish()
    hdr = "; @launch grid=(256,1,1) block=(256,1,1) lds=163840\n" + (f"; FINE0 {' '.join(C.allnames[True])}\n; FINE1 {' '.join(C.allnames[False])}\n" if C.FINE else "") + '.amdgcn_target "amdgcn-amd-amdhsa--gfx950"\n'
    if C.PAD: body, C.npads = add_pads(hdr, body, [("La_base", "La_fin", "La", "La_ret"), ("Lg_base", "Lg_fin", "Lg", "Lg_ret")])
    open(path, "w").write(hdr + body + '.section .rodata,"a"\n.p2align 6\n' + kdesc(name))
    return A.npad

if __name__ == "__main__":
    print("pads", build("v5.s"))
    build("v5_fine.s", FINE=True)
    print({k: len(v) for k, v in C.allnames.items()}, C.npads, C.marg)
```

```python
import sys, math
from asmlib import *
NAME = "parallel_sum__sliding_local_dilated__dense_activation_gelu__prompt"
MB = 1 << 20
WS_A2 = 8 * MB; WS_XCH = 32 * MB; WS_ST = 48 * MB
O_ST, O_CS, O_FL, O_XF = 0, 16384, 262144, 524288
A2S = 144 * 1024
class C:
    FINE = False; PROBE = None; names = []; allnames = {}
    NFL = -2; A_AUX = "sc1"; ST_AUX = "sc1"; OUT_AUX = "sc1"; PF = True; CPF = True; CPH = False; PAD = True; ROT = True; PRE = 0; STJ = (2, 2); PF0 = (8, 6); NOROT = False
    SPIN = 1 << 16; DA = 4; NW = (14, 14); BM = 0; marg = {}; CAPW = 7; SWF = 5; GLAST = True; XU = 3; YCHK = 3; CAPN = 3; NPRE = 7; NA0 = (2, 2); RP = None; XCHK = 2; XSL = 1; XD = 3; YD = 3; KB = 2; KBW = 2; GRID = 3; RE = 6; HF = 2; OE = 2; HP = 30; CJ = 5; AD = 2; CF = True; HC = 2; S0E = 20; MJ = 0; MRG = "xX:04 wW:016 xX:123|wW:2345"; SEQ = ("w0:3456 x0:234 x1:01234", "w1:0123456", "x2:01234 w2:0123456|w3:0123456"); IDLE = None; XJ = (8, 8, 9, 9, 10, 10, 11, 11); PFL = ((), tuple(range(10, 18)) + tuple(range(10))); PFN = 3; D0 = 1; QS = 12; B0 = -2.0; EXP = 0; XR = 1; SM = 6.0
XS = lambda s: s * 34816
WB = 69632
TB = 155648
T_CS, T_B1, T_B2 = TB + 2560, TB + 3584, TB + 4608
NB = 9
BS = lambda j: ((j + 6) % NB) * 16384
R = lambda d: f"v[{d}:{d+3}]"
aR = lambda d: f"a[{d}:{d+3}]"
Pn = lambda r: f"v[{r}:{r+1}]"
MF = "v_mfma_f32_16x16x32_bf16"
cvt = lambda d, s: f"v_cvt_pk_bf16_f32 v{d}, v{s}, v{s+1}"
srd = lambda r, n: f"s_mov_b32 s{r+2}, {n}\ns_mov_b32 s{r+3}, 0x20000"
add64 = lambda r, x: f"s_add_u32 s{r}, s{r}, {x}\ns_addc_u32 s{r+1}, s{r+1}, 0"
sub64 = lambda r, x: f"s_sub_u32 s{r}, s{r}, {x}\ns_subb_u32 s{r+1}, s{r+1}, 0"

def ts(name):
    if not C.FINE or (C.FINE == 2 and name not in ("RTstart", "RTend", "x")) or (C.FINE == 3 and name[:2] != "RT" and name != "x"): return ""
    i = len(C.names); C.names.append(name)
    t = f"s_waitcnt lgkmcnt(0)\nv_writelane_b32 v1, s100, {i-1}\n" if i else ""
    return t + ("s_memrealtime s[100:101]" if name.startswith("RT") else "s_memtime s[100:101]")
def stamp_out(A):
    if not C.FINE: return
    A(ts("st")); A("s_waitcnt vmcnt(0)"); A(ts("end")); A(ts("RTend")); A(ts("x")); C.names.pop()
    if C.PROBE:
        a, b, wg = C.PROBE; C.uid = getattr(C, "uid", 0) + 1; u = C.uid
        if a in C.names and b in C.names:
            A(f"s_waitcnt lgkmcnt(0)\ns_cmp_lg_u32 s37, {wg*4}\ns_cbranch_scc1 Lpr{u}e\nv_readlane_b32 s4, v1, {C.names.index(b)}\nv_readlane_b32 s5, v1, {C.names.index(a)}\ns_memrealtime s[8:9]\ns_sub_u32 s4, s4, s5\n{'s_lshl_b32 s4, s4, 1' if a.startswith('RT') else 's_lshr_b32 s4, s4, 2'}\ns_add_u32 s4, s4, 1000\ns_min_u32 s4, s4, 100000")
            A(f"Lpr{u}:\ns_memrealtime s[6:7]\ns_waitcnt lgkmcnt(0)\ns_sub_u32 s6, s6, s8\ns_cmp_lt_u32 s6, s4\ns_cbranch_scc1 Lpr{u}\nLpr{u}e:")
        return
    A("s_load_dwordx2 s[4:5], s[0:1], 80\ns_waitcnt lgkmcnt(0)\n" + add64(4, WS_ST + 0x40000))
    A("s_lshl_b32 s6, s2, 2\ns_add_u32 s6, s6, s20\ns_lshl_b32 s6, s6, 8\nv_lshl_add_u32 v0, v2, 2, s6\nglobal_store_dword v0, v1, s[4:5]")
def emit(A, L):
    for d in L:
        if isinstance(d, str): A(d)
        else:
            for x in d:
                if x: A(x)
def lines(s): return [l for l in s.split("\n") if l.strip()]

def spin(slow, name, loads, test):
    slow.append(f"{name}_slow:\ns_mov_b32 s39, {C.SPIN}\n{name}_spin:\ns_sleep 8\n{loads}\ns_waitcnt vmcnt(0)\n{test}\ns_cbranch_vccz {name}_back\n"
                f"s_sub_u32 s39, s39, 1\ns_cmp_lg_u32 s39, 0\ns_cbranch_scc1 {name}_spin\ns_branch {name}_back")
    return f"{test}\ns_cbranch_vccnz {name}_slow\n{name}_back:"

def g2_steps(att):
    f = abs(C.NFL) // 2; no = C.NW[att] - 12
    pair = lambda i, lo, hi: int((i ^ 1) in range(lo, hi))
    wide = [("h", 3 * i + l, (3, 93, 12), 1 + l, i & 1, True) for l in range(3) for i in range(4)]
    wide += [("o", i, (pair(i, 0, no), 93, 4), 0, i & 1, True) for i in range(no)]
    nar = [("o", 8 * b + i, (pair(i, no, 4), 92, 4), 0, i & 1, False) for b in range(2) for i in range(no, 4)]
    nar += [("h", 48 + u, (pair(u, f, 4), 92, 4), 0, u & 1, False) for u in range(f, 4)]
    if f and att == (C.NFL < 0): nar += [("h", 48 + u + 4 * b, None, 0, 0, False) for u in range(f) for b in range(2)]
    return wide + nar

def role(A, att):
    P = "La" if att else "Lg"
    slow = []
    stride = 6144 if att else 7168
    nblk = 7 if att else 6
    A("VMRESET")
    C.names = list(C.common); C.allnames[att] = C.names
    A("VMFAKE x0 4\nVMFAKE w0 3")
    base = {"x": 0, "w": 0, "h": 0}; left = {}
    def adv(k, j, n, reg, inc, wrap):
        left[(k, j)] = left.get((k, j), n) - 1; t = []
        while left.get((k, base[k])) == 0:
            t.append(add64(reg, inc) + ("\n" + sub64(reg, wrap) if base[k] == 7 else "")); base[k] += 1
        return "\n".join(t) or None
    def px(j, i):
        d = 128 * (j - base["x"]); assert d == 0 or j < 8
        if i == 4: return [(f"s_add_u32 m0, s28, {XS(j%2) - d}", f"buffer_load_dwordx4 v17, s[4:7], 0 offen offset:{d} lds ; @x{j}", adv("x", j, 4, 4, 128, "s64"))]
        assert XS(j % 2) >= d
        return [(f"s_add_u32 m0, s{84+i}, {XS(j%2) - d}", f"buffer_load_dwordx4 v16, s[4:7], s{80+i} offen offset:{d} lds ; @x{j}"),
                (None, f"buffer_load_dwordx4 v16, s[4:7], s{80+i} offen offset:{d+2048} lds ; @x{j}", adv("x", j, 4, 4, 128, "s64"))]
    def pw(j, k):
        if k == 6:
            d = (j - base["h"]) * 64 * 7168
            return [(f"s_add_u32 m0, s27, {(j%3)*28672 + 6144}" + (f"\ns_mov_b32 s31, {d}" if d else ""), f"buffer_load_dwordx4 v20, s[68:71], {'s31' if d else '0'} offen lds ; @w{j}", adv("h", j, 1, 68, 64 * 7168, "s97"))]
        d = (j - base["w"]) * 64 * stride; assert d == 0 or j < 8
        return [(f"s_add_u32 m0, s{88+k}, {(j%3)*28672}" + (f"\ns_add_u32 s31, s{94+k%3}, {d}" if d else ""), f"buffer_load_dwordx4 v{18+k//3}, s[8:11], s{31 if d else 94+k%3} offen lds ; @w{j}", adv("w", j, 6, 8, 64 * stride, "s65"))]
    def seq(spec):
        L = []
        for t in spec.replace(".", ":").split():
            k, j, ps = t[0], int(t[1:t.index(":")]), t[t.index(":") + 1:]
            if j > 15: continue
            for p in map(int, ps):
                if p < (4 if k == "x" else 6 + att): L += (px if k == "x" else pw)(j, p)
        return L
    seq("x0:01 w0:012")
    A(f".p2align 12\n{P}_base:\ns_load_dwordx2 s[52:53], s[0:1], {64 if att else 56}")
    A("v_lshrrev_b32 v5, 5, v2\nv_and_b32 v6, 3, v2")
    for i in range(4): A(f"v_accvgpr_write_b32 a{136+i}, s33")
    if att:
        A("v_lshrrev_b32 v24, 2, v2\nv_xor_b32 v25, v5, v6\ns_lshl_b32 s29, s20, 4\nv_add_u32 v24, s29, v24\nv_mul_u32_u24 v24, 7168, v24\nv_lshl_add_u32 v20, v25, 4, v24")
        A(f"s_mul_i32 s39, s3, {512*7168}\ns_lshl_b32 s38, s24, 6\ns_add_u32 s39, s39, s38\ns_add_u32 s39, s39, 6144\n" + add64(68, "s39") + "\n" + srd(68, 256 * 7168))
        if C.PRE: A("buffer_load_dword a140, v43, s[68:71], 0 offen")
    A(f"s_mov_b32 s78, {P}_end-{P}_base")
    A("s_lshr_b32 s29, s2, 4\ns_lshl_b32 s29, s29, 2\ns_add_u32 s29, s29, s20\ns_lshl_b32 s29, s29, 10\nv_and_b32 v24, 7, v2\nv_lshl_add_u32 v23, v24, 7, s29")
    if C.CPF: A("buffer_load_dword a141, v23, s[76:79], 0 offen")
    A(f"s_lshl_b32 s64, s3, 11\ns_mul_i32 s65, s3, {1024*stride}\ns_mul_i32 s97, s3, {1024*7168}")
    A("v_and_b32 v27, 6, v4\nv_xor_b32 v27, v27, v3\nv_lshlrev_b32 v27, 4, v27\nv_lshl_add_u32 v28, v4, 7, v27")
    A("s_lshl_b32 s29, s21, 14\nv_add_u32 v8, s29, v28\nv_xor_b32 v9, 64, v8")
    xo_base = "s_lshl_b32 s29, s25, 2\ns_add_u32 s29, s29, s20\ns_lshl_b32 s29, s29, 16\ns_lshl_b32 s39, s26, 8\ns_add_u32 s29, s29, s39"
    if not att: A(xo_base + "\nv_lshl_add_u32 v21, v4, 12, s29\nv_lshl_add_u32 v21, v3, 4, v21")
    A("v_bfe_u32 v27, v2, 2, 2\nv_and_b32 v28, 1, v3")
    A(f"v_mul_u32_u24 v29, 7168, v5\nv_add_u32 v29, {WB}, v29")
    A("v_mul_u32_u24 v23, 3072, v28\nv_add_u32 v23, v29, v23\nv_lshl_add_u32 v23, v27, 7, v23\nv_lshl_add_u32 v23, v6, 3, v23")
    A("v_lshrrev_b32 v24, 1, v27\nv_lshl_or_b32 v24, v28, 1, v24\ns_lshl_b32 s29, s22, 1\nv_xor_b32 v24, s29, v24")
    A("v_lshl_add_u32 v10, v24, 5, v23\nv_xor_b32 v11, 32, v10\nv_add_u32 v13, 57344, v10\nv_add_u32 v14, 57344, v11")
    A("s_and_b32 s38, s23, 3\ns_lshl_b32 s38, s38, 1\ns_add_u32 s38, s38, s21")
    A("s_min_u32 s39, s38, 5\ns_and_b32 s29, s39, 1\ns_lshl_b32 s29, s29, 5\nv_xor_b32 v23, s29, v10\ns_lshr_b32 s29, s39, 1\ns_lshl_b32 s29, s29, 10\nv_add_u32 v23, s29, v23\nv_add_u32 v24, 512, v23")
    A("s_and_b32 s29, s39, 6\ns_add_u32 s29, s29, s22\ns_lshl_b32 s29, s29, 1\ns_and_b32 s39, s39, 1\ns_add_u32 s29, s29, s39\ns_lshl_b32 s29, s29, 4\nv_add_u32 v31, s29, v4")
    if att:
        A("v_lshl_add_u32 v25, v28, 3, v27\nv_lshl_add_u32 v25, v25, 6, v29\nv_add_u32 v25, 6144, v25")
        A("v_and_b32 v26, 2, v6\nv_add_u32 v26, s22, v26\nv_xor_b32 v26, v26, v28\nv_lshl_add_u32 v25, v26, 4, v25")
        A("v_and_b32 v26, 1, v6\nv_lshl_add_u32 v12, v26, 3, v25\nv_add_u32 v15, 57344, v12\nv_add_u32 v25, 256, v12")
        A("v_and_b32 v26, 8, v4\nv_add_u32 v26, v26, v4\ns_lshl_b32 s29, s22, 3\ns_add_u32 s29, s29, 192\nv_add_u32 v26, s29, v26")
        A("s_cmp_ge_u32 s38, 6\ns_cselect_b64 vcc, -1, 0\nv_cndmask_b32 v23, v23, v12, vcc\nv_cndmask_b32 v24, v24, v25, vcc\nv_cndmask_b32 v31, v31, v26, vcc")
    A("v_add_u32 v25, 57344, v23\nv_add_u32 v26, 57344, v24")
    A(f"s_lshl_b32 s66, s24, 12\ns_add_u32 s66, s66, {O_CS + (0 if att else 65536)}\ns_lshr_b32 s29, s23, 2\ns_lshl_b32 s29, s29, 11\ns_add_u32 s29, s29, s66\nv_lshl_add_u32 v31, v31, 3, s29")
    A(f"s_cmp_lt_u32 s38, {nblk}\ns_cselect_b32 s38, 0xffff, 0")
    A("s_lshl_b32 s29, s23, 1\ns_add_u32 s29, s29, s21\ns_lshl_b32 s29, s29, 8\ns_lshl_b32 s39, s24, 1\ns_add_u32 s39, s39, s22\ns_lshl_b32 s39, s39, 2\ns_add_u32 s29, s29, s39")
    A(f"s_lshr_b32 s67, s2, 1\ns_lshl_b32 s67, s67, 2\ns_add_u32 s67, s67, s20\ns_lshl_b32 s67, s67, 7\ns_add_u32 s67, s67, {O_XF}")
    if att: A(f"s_add_u32 s29, s29, {O_FL}\nv_mov_b32 v29, s29")
    else: A(f"s_add_u32 s29, s29, {O_FL + 4096}\nv_lshl_add_u32 v29, v6, 12, s29\nv_writelane_b32 v29, s67, 3")
    A(f"s_lshl_b32 s99, s2, 2\ns_add_u32 s99, s99, s20\ns_lshl_b32 s99, s99, 7\ns_add_u32 s99, s99, {O_XF + 131072}\nv_writelane_b32 v29, s99, {1 if att else 4}")
    if att:
        A(f"s_lshl_b32 s29, s23, 1\ns_add_u32 s29, s29, s21\ns_lshl_b32 s29, s29, 4\ns_add_u32 s29, s29, s24\ns_lshl_b32 s29, s29, 1\ns_add_u32 s33, s29, s22\ns_lshl_b32 s32, s33, 12\ns_add_u32 s32, s32, {MB}")
        for i in range(4): A(f"v_mov_b32 v{48+i}, -1")
    A("s_mov_b32 s12, s16\ns_mov_b32 s13, s17\ns_mov_b32 s56, s16\ns_mov_b32 s57, s17")
    for r, n in ((16, 4 * MB), (40, 2 * MB), (44, 7 * MB), (48, 256), (52, 4 * MB if att else 2048), (60, 4 * MB), (72, 7168), (56, 16 * MB)): A(srd(r, n))
    A(add64(56, WS_XCH))
    A("s_lshl_b32 s29, s2, 2\ns_add_u32 s37, s29, s20\ns_lshl_b32 s29, s37, 1\nv_lshrrev_b32 v30, 3, v4\nv_add_u32 v30, s29, v30\nv_and_b32 v27, 7, v2\nv_lshl_add_u32 v27, v3, 3, v27\nv_lshlrev_b32 v27, 4, v27\nv_lshl_add_u32 v27, v30, 11, v27")
    A("v_lshlrev_b32 v7, 4, v2\nv_mov_b32 v35, 1\nv_mov_b32 v34, 0\nv_mov_b32 v32, 0\nv_mov_b32 v33, 0\nv_lshlrev_b32 v30, 3, v30\ns_lshl_b32 s29, s20, 4\nv_add_lshl_u32 v6, s29, v4, 7")
    A("s_lshr_b32 s29, s2, 1\ns_lshl_b32 s29, s29, 2\ns_add_u32 s29, s29, s20\ns_lshl_b32 s35, s29, 10\ns_lshr_b32 s29, s29, 7\ns_mul_i32 s29, s29, 1441792\ns_add_u32 s36, s35, s29")
    A("s_waitcnt lgkmcnt(0)")
    A(ts("setup"))
    def pads(c):
        if not C.PAD: return
        k0 = [1, 5, 13][c]
        A("s_mov_b64 exec, 0")
        for w in range(3): A(f"s_cmp_eq_u32 s20, {w}\ns_cbranch_scc1 {P}_pad{k0+w}")
        A(f"s_branch {P}_pad{k0+3}\n{P}_ret{c}:\ns_mov_b64 exec, -1")
    emit(A, seq(C.SEQ[0]))
    stl = [(None, f"buffer_load_dwordx4 {aR(144+4*i)}, v27, s[60:63], 0 offen offset:{512*i} ; @st") for i in range(4)]
    A(ts("issued")); pads(0)

    acc = lambda m, n: 64 + 4 * (6 * m + n)
    xf = lambda h, i, kk: 32 * h + 8 * i + 4 * kk
    wf = lambda n, kk: 64 + 8 * n + 4 * kk
    def wofs(j):
        u = j % 3; return (u == 2), (0 if u == 2 else u * 28672)
    def rd_w(j, n):
        hiw, wo = wofs(j); wreg = 13 if hiw else 10; L = []
        for kk in range(2):
            for h in range(2):
                b = wf(n, kk) + 2 * h
                L.append(f"ds_read_b64_tr_b16 a[{b}:{b+1}], v{wreg+(n&1)} offset:{wo + kk*14336 + h*512 + (n>>1)*1024} ; @W{j}_{n}" if n < 6 else
                         f"ds_read_b64_tr_b16 a[{b}:{b+1}], v{wreg+2} offset:{wo + kk*14336 + h*256} ; @W{j}_{n}")
        return L
    rd_x = lambda j, h: [f"ds_read_b128 {aR(xf(h,i,kk))}, v{8+kk} offset:{XS(j%2) + (4*h+i)*2048} ; @X{j}_{h}" for i in range(4) for kk in range(2)]
    def rd_e(j):
        hiw, wo = wofs(j); L = []
        if j < 8: L += [f"ds_read_b64_tr_b16 a[{128+4*kk+2*h}:{129+4*kk+2*h}], v{(25 if hiw else 23)+h} offset:{wo + kk*14336}" for kk in range(2) for h in range(2)]
        return L
    def mfmas(j, h):
        L = []; end = []; t = [0]
        def chain(d, fa, fb):
            ks = (0, 1) if t[0] % 2 == 0 else (1, 0); t[0] += 1
            for q, kk in enumerate(ks): L.append(f"{MF} {d}, {aR(fa(kk))}, {aR(fb(kk))}, {'0' if j == 0 and q == 0 else d}")
        for n in range(nblk):
            W = lambda kk: wf(n, kk)
            rows = [0, 1, 2, 3]
            for i in (rows if n % 2 == 0 else rows[::-1]):
                m = 4 * h + i
                d = R(48 + 4 * (n - 2)) if i == 4 else (R(acc(m, n)) if n < 6 else aR(176 + 4 * m))
                X = (lambda kk: 120 + 4 * kk) if i == 4 else (lambda kk: xf(h, i, kk))
                if att and n in (4, 5): chain(d, X, W)
                else: chain(d, W, X)
            end.append(len(L))
        if j < 8 and h == 1: chain("v[36:39]", lambda kk: 136, lambda kk: 128 + 4 * kk)
        return L, end
    def rs_a(j, end):
        S = [(rd_x(j, 0)[:4], 0, 8, 2), (rd_x(j, 0)[4:], 3, 19, 4)]
        for n in range(nblk - 1): S.append((rd_w(j, n), end[n], end[n] + 8, 2))
        return S
    def rs_b(j, end, n):
        L = (rd_w(j, nblk - 1) if j else []) + rd_x(j, 1) + rd_e(j)
        S = [(L, 0, min(2 * len(L), n - C.RE), 2)]
        for b in range(1, nblk): S.append(([f"WAITDS W{j}_{b}"], end[b - 1] - 1, end[b - 1]))
        return S
    def pf(i):
        L = C.PFL[att]
        if not C.PF or i >= len(L): return []
        g = L[i]
        if g >= 10: return [(f"s_add_u32 s29, s36, {(3*((g-10)&3)+((g-10)>>2))*131072}", "buffer_load_dwordx4 a[140:143], v7, s[44:47], s29 offen")]
        if g < 4: return [(f"s_add_u32 s29, s36, {(3*g+2)*131072}", "buffer_load_dwordx4 a[140:143], v7, s[44:47], s29 offen")]
        if g < 8: return [(f"s_add_u32 s29, s35, {(g-4)*524288}", "buffer_load_dwordx4 a[140:143], v7, s[40:43], s29 offen")]
        return [(f"s_add_u32 s29, s35, {48*131072 + (g-8)*524288}", "buffer_load_dwordx4 a[140:143], v7, s[44:47], s29 offen")]
    cpf = lambda lab, k=0, dst="a141": [(f"s_mov_b32 s29, {lab}-{P}_base+{8192*k}", f"buffer_load_dword {dst}, v6, s[76:79], s29 offen")] if C.CPF else []
    stm = []
    stm += [f"{MF} v[40:43], a[136:139], {aR(144+4*i)}, {'v[40:43]' if i else '0'}" for i in range(4)]
    stm += [f"{MF} v[44:47], {aR(144+4*i)}, {aR(144+4*i)}, {'v[44:47]' if i else '0'}" for i in range(4)]
    dpp = lambda v, m: f"v_add_f32_dpp v{v}, v{v}, v{v} {m} row_mask:0xf bank_mask:0xf"
    rnd = lambda v: [f"v_cvt_pk_bf16_f32 v{v}, v{v}, v{v}", f"v_and_b32 v{v}, 0xffff0000, v{v}"]
    st1 = ["v_lshlrev_b32 v41, 2, v3", "v_sub_u32 v41, v4, v41"]
    for q in range(4): st1 += [f"v_cmp_eq_u32 vcc, {q}, v41", dpp(40, ["quad_perm:[1,0,3,2]", "quad_perm:[2,3,0,1]", "row_half_mirror"][q]) if q < 3 else f"v_mul_f32 v40, {f32(1/1024)}, v40",
                               f"v_cndmask_b32 v42, {'v42' if q else '0'}, v{44+q}, vcc"]
    st1 += [dpp(42, "quad_perm:[1,0,3,2]"), "v_mul_f32 v41, v40, v40", dpp(42, "quad_perm:[2,3,0,1]"), rnd(40)[0], dpp(42, "row_half_mirror"), rnd(40)[1]]
    for sw in (16, 32): st1 += ["v_mov_b32 v43, v42", f"v_permlane{sw}_swap_b32 v42, v43", "v_add_f32 v42, v42, v43"]
    st2 = [f"v_mov_b32 v43, {f32(1/1024)}", "v_fma_f32 v44, v42, v43, -v41", "v_max_f32 v44, 0, v44"] + rnd(44) + [f"v_add_f32 v44, {f32(1e-5)}, v44"] + rnd(44) + ["v_sqrt_f32 v44, v44"] + rnd(44) + ["v_rcp_f32 v44, v44", "v_mul_f32 v45, v44, v40"]
    cph = lambda dst="a141": [("v_lshl_add_u32 v33, v4, 12, s99", f"buffer_load_dword {dst}, v33, s[76:79], 0 offen")] if C.CPH else []

    steps = g2_steps(att); NK = len(steps); DA = C.DA
    cls = {}
    def off(reg, tab, unit, j, imm):
        dc, sl = steps[j][2], steps[j][4]
        if dc is None: return f"s_mov_b32 s{reg}, {imm}"
        t = ""
        if cls.get((tab, sl)) != dc:
            cls[(tab, sl)] = dc
            t = f"s_mul_i32 s{tab+sl}, s{88+sl}, {dc[0]*unit}\ns_mul_i32 s{reg}, s{dc[1]}, {dc[2]*unit}\ns_add_u32 s{tab+sl}, s{tab+sl}, s{reg}\n"
        return t + f"s_add_u32 s{reg}, s{tab+sl}, {imm}"
    NW = C.NW[att]
    areg = lambda j, kk, i: 64 + 32 * (j % 4) + 16 * kk + 4 * i if j < NW else 64 + 16 * ((NW + j) % 8) + 8 * kk + 4 * i
    aprev = lambda j: j - 4 if j < NW else (NW - 4 + (j - NW) // 2 if j < NW + 8 else j - 8)
    def lda(j):
        kind, q = steps[j][:2]; ks = 2 * q + (0 if kind == "o" else 32); L = []
        for b in range(2):
            so = off(30, 80, 2048, j, ks * 1024 + b * A2S)
            for o in range(2 if steps[j][5] else 1):
                for kk in range(2):
                    L.append((so if kk + o == 0 else None, f"buffer_load_dwordx4 {aR(areg(j, kk, 2*o+b))}, v{7 if o else 16}, s[4:7], s30 offen offset:{kk*1024} {C.A_AUX} ; @a{j}"))
        return L
    def dma_b(j):
        kind, q = steps[j][:2]; L = []; sr = "s[40:43]" if kind == "o" else "s[44:47]"
        for hi in range(2):
            so = off(31, 68, 131072, j, q * 131072 + hi * 16384)
            for ln in range(2):
                L.append((f"s_add_u32 m0, s98, {BS(j) + hi*2048 + ln*896}" + ("\n" + so if ln == 0 else ""),
                          f"buffer_load_dwordx4 v19, {sr}, s31 offen offset:{128*ln} lds ; @b{j}"))
        return L
    setup_b = ["s_lshl_b32 s98, s20, 12", "v_lshrrev_b32 v18, 3, v2", "v_and_b32 v19, 7, v2", "v_and_b32 v20, 6, v18", "v_xor_b32 v19, v19, v20",
               "s_lshl_b32 s29, s20, 4\nv_add_u32 v18, s29, v18", "s_lshl_b32 s29, s26, 8\nv_lshl_add_u32 v18, v18, 11, s29", "v_lshl_add_u32 v19, v19, 4, v18",
               f"s_and_b32 s29, s25, 14\ns_lshl_b32 s29, s29, 8\ns_add_u32 s29, s29, {O_FL}", "v_and_b32 v20, 31, v2", "v_lshl_add_u32 v20, v20, 2, s29", "v_lshl_add_u32 v20, v5, 8, v20"]
    setup_d = ["s_and_b32 s92, s2, 1\ns_bfe_u32 s29, s2, 0x10004\ns_xor_b32 s29, s29, s26", f"s_and_b32 s88, s29, {C.XR}\ns_sub_u32 s89, 0, s88\ns_and_b32 s93, s2, 3"]
    setup_a = ["s_and_b32 s29, s25, 1\ns_lshl_b32 s29, s29, 2\ns_add_u32 s29, s29, s20", f"s_mul_i32 s39, s29, {2*A2S}\nv_lshl_add_u32 v16, v2, 4, s39",
               f"s_xor_b32 s29, s29, 4\ns_mul_i32 s39, s29, {2*A2S}\nv_lshl_add_u32 v7, v2, 4, s39",
               f"s_lshr_b32 s29, s25, 1\ns_mul_i32 s29, s29, {16*A2S}\ns_add_u32 s29, s29, {WS_A2}", f"s_add_u32 s4, s12, s29\ns_addc_u32 s5, s13, 0\ns_mov_b32 s6, {16*A2S}",
               f"s_lshl_b32 s29, s23, 1\ns_add_u32 s29, s29, s21\ns_mul_i32 s29, s29, {8*A2S}", f"s_add_u32 s29, s29, {WS_A2}\n" + add64(12, "s29"), srd(12, 8 * A2S),
               "s_movk_i32 s34, 0x1000\ns_movk_i32 s32, 0x2000\ns_movk_i32 s28, 0x3000"]
    c0 = -2 * math.sqrt(2 / math.pi) * math.log2(math.e); c1 = c0 * 0.044715
    sc = 32 ** -0.5 * math.log2(math.e)
    rowp = lambda dst, a, off: f"ds_read_b32 v{dst}, v{a} offset:{off}\nds_read_b32 v{dst+1}, v{a} offset:{off+1280}"
    colreads = lambda ln: [f"ds_read_b128 {R(56+4*c)}, v31 offset:{256*ln+64*c}\nds_read_b128 {R(8+4*c)}, v31 offset:{1024+256*ln+64*c}" for c in range(2)]
    epi = [f"s_lshl_b32 s29, s21, 9\ns_add_u32 s29, s29, {TB}\nv_lshl_add_u32 v30, v4, 2, s29", f"s_mov_b32 s64, {f32(c1)}\ns_mov_b32 s65, {f32(c1)}\nv_mov_b32 v0, {f32(c0)}"]
    if not att:
        epi += [rowp(40 + 2 * m, 30, 64 * m) for m in range(8)]
        epi += [f"s_lshl_b32 s29, s22, 7\ns_add_u32 s29, s29, {T_CS}\nv_lshl_add_u32 v31, v3, 4, s29"] + colreads(0)
        epi += ["s_mul_i32 s29, s24, 6\ns_add_u32 s29, s29, s22\ns_add_u32 s29, s29, 32", "s_lshl_b32 s29, s29, 10\nv_lshl_add_u32 v18, v2, 4, s29"]
    else:
        epi += ["v_lshl_add_u32 v31, v3, 4, s29", f"s_lshl_b32 s29, s22, 7\ns_add_u32 s29, s29, {T_CS}\nv_lshl_add_u32 v26, v3, 4, s29", "v_lshl_add_u32 v27, v4, 2, s29"]
        epi += [f"ds_read_b128 {R([8,12,40,44][n])}, v26 offset:{256*(n>>1)+64*(n&1)}" for n in range(4)]
        r4 = lambda m: f"ds_read_b128 {R(48+8*(m&1))}, v31 offset:{64*m}\nds_read_b128 {R(52+8*(m&1))}, v31 offset:{64*m+1280}"
        epi += ["ds_read_b32 v36, v27 offset:512\nds_read_b32 v37, v27 offset:576", rowp(24, 30, 448), r4(7)]
        epi += ["v_and_b32 v32, 1, v3", "v_lshlrev_b32 v21, 4, v32", "v_lshlrev_b32 v28, 4, v2", "v_lshlrev_b32 v32, 3, v2"]
        epi += [f"s_lshl_b32 s90, s33, 12\ns_add_u32 s90, s90, {MB}\ns_sub_u32 s91, s90, 131072", "s_cmp_lt_u32 s33, 32\ns_cselect_b32 s91, 0x40000000, s91"]
        epi += ["v_lshl_add_u32 v21, v5, 6, v21", f"s_lshl_b32 s29, s22, 5\ns_add_u32 s29, s29, {T_CS+768}\nv_add_u32 v21, s29, v21"]
        epi += ["s_lshl_b32 s29, s24, 1\ns_add_u32 s29, s29, s22\ns_lshl_b32 s29, s29, 10", "v_lshl_add_u32 v18, v2, 4, s29"]
        epi += [f"v_mul_u32_u24 v17, {A2S}, v5", "v_and_b32 v34, 31, v2", "v_lshl_add_u32 v17, v34, 4, v17",
                "s_lshl_b32 s29, s24, 1\ns_add_u32 s29, s29, s22\ns_add_u32 s29, s29, 256", "s_lshl_b32 s29, s29, 9\nv_add_u32 v17, s29, v17"]
        epi += [f"s_mov_b32 s86, {f32(sc)}\ns_mov_b32 s87, {f32(sc)}"]

    A("WAITVM x0 w0\ns_barrier"); A(ts("land0"))
    emit(A, rd_w(0, 0) + rd_x(0, 0) + sum((rd_w(0, n) for n in range(1, nblk)), []))
    A("WAITDS W0_0 X0_0")
    M, end = mfmas(0, 0); n = len(M)
    DS = lambda L, n, a: (L, 0, n - 3, 4) if C.GRID & 2 and 4 * len(L) <= n and a == 0 else (L, a, n - 6)
    emit(A, place(M, rs_b(0, end, n) + [(seq(C.SEQ[1]), 0, n - C.S0E)]))
    pf0 = C.PF0[att]; STJ = C.STJ[att]; SJ = STJ + 2; AJ = SJ + C.AD; assert C.CJ < 7 and AJ <= 7
    c0load = "buffer_load_dword v33, v34, s[48:51], 0 offen sc1"
    tbl = ["buffer_load_dwordx2 v[40:41], v30, s[16:19], s66 offen sc1", "buffer_load_dwordx2 v[42:43], v30, s[16:19], s66 offen offset:2048 sc1"]
    for j in range(16):
        if j < 2: pads(j + 1)
        if j < 15: A(f"WAITVM x{j+1} w{j+1}" + {SJ: " st", AJ: " clr", 12: " c0", 13: " tb"}.get(j, "") + (" hc" if att and j == 7 else "") + " | lgkmcnt(0)\ns_barrier")
        else: A("s_waitcnt lgkmcnt(0)\ns_barrier")
        A(ts(f"p{j}"))
        if C.IDLE and 3 <= j: A(C.IDLE)
        M, end = mfmas(j, 1); n = len(M); S = []; D = []
        if j < 15: S += rs_a(j + 1, end)
        if j == SJ: M = M + stm
        if j == SJ + 1: S.append((st2, 2, 40))
        if j == 11:
            D.append((None, c0load + " ; @c0"))
            sd = [f"v_min_u32 v30, {nblk*32-1}, v0", "v_and_b32 v27, 0xe0, v0", "v_lshl_add_u32 v27, v4, 1, v27", "v_and_b32 v28, 1, v3", "v_add_u32 v27, v27, v28",
                  "s_lshl_b32 s29, s23, 8\nv_add_lshl_u32 v27, v27, s29, 3"]
            if att: sd += ["v_and_b32 v31, 31, v0", "s_lshl_b32 s29, s24, 5\ns_add_u32 s29, s29, 3072\nv_add_lshl_u32 v31, v31, s29, 1"]
            else: sd += ["s_mul_i32 s29, s24, 192\nv_add_lshl_u32 v31, v30, s29, 1", "v_and_b32 v28, 127, v0", "s_lshl_b32 s29, s26, 7\nv_add_lshl_u32 v28, v28, s29, 1"]
            sd += ["v_lshlrev_b32 v30, 3, v30", "v_lshlrev_b32 v32, 2, v0"]
            S.append((sd, 4, 40))
        if j == 12:
            S.append(([spin(slow, P + "_c0", c0load, "v_cmp_gt_u32 vcc, 0x100, v33")], 0, 1))
            D += [(None, t + " ; @tb") for t in tbl]
            D.append((None, "buffer_load_dwordx2 v[44:45], v27, s[16:19], 0 offen sc1 ; @tb"))
            if not att: D.append((None, "buffer_load_ushort v46, v28, s[52:55], 0 offen ; @tb"))
            D.append((None, "buffer_load_ushort v36, v31, s[72:75], 0 offen ; @tb"))
        if j == 13:
            sd = [spin(slow, P + "_cs", "\n".join(tbl), "v_and_b32 v33, v41, v43\nv_cmp_ne_u32 vcc, 1, v33"), "v_add_f32 v40, v40, v42", f"v_add_u32 v32, {TB}, v32",
                  "ds_write2st64_b32 v32, v44, v45 offset0:0 offset1:5", "v_lshlrev_b32 v36, 16, v36", "ds_write2st64_b32 v32, v40, v36 offset0:10 offset1:14"]
            if not att: sd += ["v_lshlrev_b32 v46, 16, v46", f"ds_write_b32 v32, v46 offset:{T_B2-TB}"]
            S.append((sd + setup_b, 1, n - 2))
        if att and j in (9, 10):
            sd = [f"v_mov_b32 v27, {f32(-1e30)}", "v_lshlrev_b32 v28, 2, v3", "v_sub_u32 v28, v28, v4",
                  "s_or_b32 s29, s23, s21\ns_cmp_lg_u32 s29, 0\ns_cselect_b64 s[64:65], -1, 0"]
            for q in range(2 * (j - 9), 2 * (j - 9) + 2):
                sel = lambda k: ["v_cndmask_b32 v33, v27, 0, vcc", f"v_accvgpr_write_b32 a{160+4*k+q}, v33"]
                sd += [f"v_add_u32 v32, {7+q}, v28", "v_cmp_gt_u32 vcc, 8, v32"] + sel(0) + ["v_cmp_lt_i32 vcc, 15, v32"] + sel(1)
                sd += ["s_and_b64 vcc, vcc, s[64:65]"] + sel(2)
            S.append((sd, 2, n - 4))
        sq = C.SEQ[2 + j] if 2 + j < len(C.SEQ) else (C.MRG if j < C.MJ else "xX:01234|wW:0123456").replace("X", str(j + 2)).replace("W", str(j + 3))
        D += seq(sq.split("|")[0])
        if j == 14: S.append((setup_a, 2, n - 4)); D += dma_b(1) + dma_b(2)
        if j == 15: S.append((epi, 0, n - 6)); D += dma_b(5) + dma_b(6) + (dma_b(7) if C.NPRE > 7 else [])
        S.append(DS(D, n, int(j == 12)))
        emit(A, place(M, S))
        if j < 15:
            A(f"WAITDS W{j+1}_0 X{j+1}_0")
            M, end = mfmas(j + 1, 0); n = len(M); S = rs_b(j + 1, end, n); D = []
            D += seq(sq.split("|")[1])
            if j == STJ: D += stl
            if j == SJ + 1:
                D = [(f"s_mov_b32 exec_lo, s38\ns_mov_b32 exec_hi, 0\ns_cbranch_execz {P}_ncl\nbuffer_store_dwordx2 v[32:33], v31, s[16:19], 0 offen sc1 ; @cond\n{P}_ncl:\ns_mov_b64 exec, -1", None),
                     (f"s_mov_b64 exec, {3 if att else 31}\nbuffer_store_dword v32, v29, s[16:19], 0 offen sc1 ; @clr\ns_mov_b64 exec, -1", None),
                     ("s_mov_b64 exec, 0x101\nbuffer_store_dwordx2 v[44:45], v30, s[16:19], 0 offen sc1 ; @clr\ns_mov_b64 exec, -1", None)] + D
            if att and j == C.CJ:
                D = [(None, f"buffer_store_dwordx4 v[48:51], v7, s[16:19], s32 offen offset:{1024*i} sc1 ; @hc") for i in range(4)] + D
            if j == SJ: S.append((st1, 4, n - 1))
            if j in (2, 4, 6, 8, 10): D += cph()
            if not att: D += [(None, f"buffer_load_dwordx4 {aR(208+4*i)}, v21, s[60:63], 0 offen offset:{2048*(i>>2)+64*(i&3)}") for i in range(8) if C.XJ[i] == j]
            if j in (AJ, AJ + 1):
                D.append((f"s_bfe_u32 s29, s2, 0x10004\ns_lshl_b32 s39, s20, 1\ns_add_u32 s29, s29, s39\ns_cmp_eq_u32 s29, {j-AJ}\ns_cbranch_scc0 {P}_na{j}\ns_mov_b64 exec, 1\n"
                          f"buffer_atomic_add v35, v34, s[48:51], 0 offen sc1 ; @cond\ns_mov_b64 exec, -1\n{P}_na{j}:", None))
            if j >= pf0: D += sum((pf(C.PFN * (j - pf0) + k) for k in range(C.PFN)), [])
            if j == 7: D.append((f"v_mov_b32 v37, 1\ns_mov_b32 exec_lo, s38\ns_mov_b32 exec_hi, 0\ns_cbranch_execz {P}_ncs\nbuffer_store_dwordx2 v[36:37], v31, s[16:19], 0 offen sc1 ; @cond\n{P}_ncs:\ns_mov_b64 exec, -1", None))
            if j == 12: D += cpf(P + "_epi", 0) + cpf(P + "_epi", 1)
            if j == 13: D += [tuple(setup_d)] + dma_b(0) + cpf(P + "_epi", 2)
            if j == 14: D += dma_b(3) + dma_b(4)
            S.append(DS(D, n, 0))
            emit(A, place(M, S))
    A(ts("g1end")); A(ts("RTg1")); A(ts("e0"))
    A(f"{P}_epi:")
    flag = lambda lane: f"s_mov_b64 exec, {1<<lane}\nbuffer_store_dword v35, v29, s[16:19], 0 offen sc1\ns_mov_b64 exec, -1"
    poll = lambda kind: f"buffer_load_dword v33, v20, s[16:19], {['0','s34','s32','s28'][kind]} offen sc1"
    ptest = "v_cmp_eq_u32 vcc, 0, v33"
    acc2 = lambda m, n: 64 + 32 * m + 4 * n
    G2A = 236 if att else 232; GT = 252 if att else 244
    g2_addr = lines(f"v_bfe_u32 v{GT}, v2, 2, 3\nv_and_b32 v{GT+1}, 3, v2\nv_lshlrev_b32 v{GT+2}, 11, v5\nv_lshl_add_u32 v{GT+2}, v{GT}, 7, v{GT+2}\nv_lshl_add_u32 v{GT+2}, v{GT+1}, 3, v{GT+2}\n"
                    f"v_lshrrev_b32 v{GT}, 1, v{GT}\nv_lshl_add_u32 v{G2A}, v{GT}, 5, v{GT+2}\nv_add_u32 v{G2A+4}, 0x10000, v{G2A}") + [f"v_xor_b32 v{G2A+4+c}, {32*c}, v{G2A+4}" for c in (1, 2, 3)]
    g2_addr2 = [f"v_add_u32 v{G2A+8+c}, 0x10000, v{G2A+4+c}" for c in range(4)] + [f"v_xor_b32 v{G2A+c}, {32*c}, v{G2A}" for c in (1, 2, 3)]
    def reads2(j, p):
        st = BS(j); w = G2A + 4 * (st >> 16); st &= 0xffff
        fr = [(f >> 1, p, f & 1) if j < NK - 1 else (f & 3, f >> 2, p) for f in range(8)]
        return [f"ds_read_b64_tr_b16 a[{32*p+4*f+2*h}:{32*p+4*f+2*h+1}], v{w+c} offset:{st + (2*kk+h)*4096 + ln*1024}" for f, (c, ln, kk) in enumerate(fr) for h in range(2)]
    def gelu8(t, rs, cs, b1):
        u = [22, 24, 26, 38]; L = []
        for i in range(4): L.append(f"v_pk_fma_f32 {Pn(u[i])}, {Pn(cs[i])}, {Pn(rs[i])}, {Pn(b1[i])} op_sel:[0,1,0] op_sel_hi:[1,1,1] neg_lo:[0,1,0] neg_hi:[0,1,0]")
        for i in range(4): L.append(f"v_pk_fma_f32 {Pn(t[i])}, {Pn(t[i])}, {Pn(rs[i])}, {Pn(u[i])} op_sel_hi:[1,0,1]")
        for i in range(4): L.append(f"v_pk_mul_f32 {Pn(u[i])}, {Pn(t[i])}, {Pn(t[i])}")
        for i in range(4): L.append(f"v_pk_fma_f32 {Pn(u[i])}, {Pn(u[i])}, s[64:65], v[0:1] op_sel_hi:[1,1,0]")
        for i in range(4): L.append(f"v_pk_mul_f32 {Pn(u[i])}, {Pn(u[i])}, {Pn(t[i])}")
        for i in range(8): L.append(f"v_exp_f32 v{u[i>>1]+(i&1)}, v{u[i>>1]+(i&1)}")
        for i in range(4): L.append(f"v_pk_add_f32 {Pn(u[i])}, {Pn(u[i])}, 1.0 op_sel_hi:[1,0]")
        for i in range(8): L.append(f"v_rcp_f32 v{u[i>>1]+(i&1)}, v{u[i>>1]+(i&1)}")
        for i in range(4): L.append(f"v_pk_mul_f32 {Pn(u[i])}, {Pn(u[i])}, {Pn(t[i])}")
        for i in range(4): L.append(cvt(t[0] + i, u[i]))
        return L
    start2 = ["WAITVM b0 b1\ns_barrier"] + reads2(0, 0)
    A0 = lda(0)
    if not att:
        for ln in range(3):
            A("s_waitcnt lgkmcnt(0)")
            for m in range(8):
                if m in (0, 4): A(ts(f"L{ln}m{m}"))
                d = acc(m, 2 * ln)
                G = gelu8([d, d + 2, d + 4, d + 6], [40 + 2 * m] * 4, [56, 58, 60, 62], [8, 10, 12, 14]); S = []
                if m == 7 and ln < 2: S.append((colreads(ln + 1), 6, 8))
                if ln == 0 and m == 2 and C.NPRE > 8: S.append((dma_b(8), 2, 40))
                if ln == 1 and m == 3: S.append((["WAITVM h0\n" + flag(0)], 2, 3))
                if ln == 2:
                    if m == 0: emit(A, g2_addr)
                    if m == 2: S.append(([poll(1) + " ; @p1"], 2, 3))
                    if m == 4: S.append((["WAITVM p1 h1\n" + flag(1) + "\n" + spin(slow, P + "_f1", poll(1), ptest)] + A0[:4], 30, 44))
                    if m == 5: S.append((A0[4:], 2, 44))
                    if m == 6: S.append(([f"s_mov_b32 s29, {T_B2}\nv_lshl_add_u32 v32, v3, 4, s29"] + [f"ds_read_b128 {R(acc2(1,n))}, v32 offset:{64*n}" for n in range(8)], 2, 30))
                    if m == 7: S.append((start2, 2, 40))
                emit(A, place(G, S))
                A(f"s_mov_b32 s29, {m*A2S + ln*2048}\nbuffer_store_dwordx4 {R(d)}, v18, s[12:15], s29 offen {C.ST_AUX} ; @h{ln}")
    else:
        hx = lambda op, so, base, tag: ([f"buffer_{op}_dwordx4 {R(base[b])}, v28, s[16:19], {so} offen offset:{1024*b} sc1 ; @{tag}" for b in range(2)]
                                        + [f"buffer_{op}_dwordx2 {Pn(base[2+i])}, v32, s[16:19], {so} offen offset:{2048+512*i} sc1 ; @{tag}" for i in range(4)])
        EXP_ = hx("store", "s90", [acc(6, 1), acc(7, 1)] + [acc(6 + b, 2 + db) + 2 for b in range(2) for db in range(2)], "hx")
        IMP_ = hx("load", "s91", [48, 52] + [acc(b, 2 + db) for b in range(2) for db in range(2)], "hi")
        hpoll = "buffer_load_dword v6, v34, s[16:19], 0 offen sc1"
        for m in range(7, -1, -1):
            A("s_waitcnt lgkmcnt(0)")
            if m: A(rowp(22 + 2 * ((m - 1) & 1), 30, 64 * (m - 1))); A(r4(m - 1))
            rs = Pn(22 + 2 * (m & 1)); G = []
            for part in (0, 1):
                src = acc(m, 0) + 8 * part; dst = acc(m, 0) + 4 * part; cs = [8, 40][part]
                for i in range(4): G.append(f"v_pk_mul_f32 {Pn(src+2*i)}, {Pn(src+2*i)}, {rs} op_sel_hi:[1,0]")
                for i in range(4): G.append(f"v_pk_fma_f32 {Pn(src+2*i)}, {Pn(cs+2*i)}, {rs}, {Pn(src+2*i)} op_sel:[0,1,0] op_sel_hi:[1,1,1] neg_lo:[0,1,0] neg_hi:[0,1,0]")
                for i in range(4): G.append(cvt(dst + i, src + 2 * i))
            r, mr = 48 + 8 * (m & 1), 52 + 8 * (m & 1); src = acc(m, 4)
            for i in range(4): G.append(f"v_pk_mul_f32 {Pn(src+2*i)}, {Pn(src+2*i)}, {Pn(r+2*(i&1))}")
            for i in range(4): G.append(f"v_pk_fma_f32 {Pn(src+2*i)}, {Pn(mr+2*(i&1))}, v[36:37], {Pn(src+2*i)} op_sel:[0,{i>>1},0] op_sel_hi:[1,{i>>1},1] neg_lo:[0,1,0] neg_hi:[0,1,0]")
            for i in range(4):
                db, h = i >> 1, i & 1
                for d in [acc(m, 2 + db) + 2 + h] + ([acc(m + 2, 2 + db) + h] if m < 6 else []): G.append(cvt(d, src + 2 * i))
            S = []
            if m == 4: A(ts("e4"))
            if m == 6: S.append(([EXP_[1], EXP_[4], EXP_[5]], 1, 36))
            if m == 5: S.append(([EXP_[0], EXP_[2], EXP_[3]], 1, 36))
            emit(A, place(G, S))
        A(ts("s"))
        mk = [8, 12, 40]
        mrd = lambda k: [f"v_accvgpr_read_b32 v{mk[k]+q}, a{160+4*k+q}" for q in range(4)]
        def smf(m): return [f"{MF} {R(acc(m,4))}, {R(48 + 4*m if m < 2 else acc(m-2,1))}, {R(acc(m,0))}, {R(mk[2] if m < 2 else mk[1])}",
                            f"{MF} {R(acc(m,5))}, {R(acc(m,1))}, {R(acc(m,0))}, {R(mk[0])}"]
        def smax(m):
            s = acc(m, 4); mx = 22 + 2 * (m & 1); q = acc(m, 0)
            L = [f"v_max3_f32 v{mx}, v{s}, v{s+1}, v{s+2}", f"v_max3_f32 v{mx+1}, v{s+3}, v{s+4}, v{s+5}", f"v_max3_f32 v{mx}, v{mx}, v{s+6}, v{s+7}", f"v_max_f32 v{mx}, v{mx}, v{mx+1}"]
            for sw in (16, 32): L += [f"v_mov_b32 v{mx+1}, v{mx}", f"v_permlane{sw}_swap_b32 v{mx}, v{mx+1}", f"v_max_f32 v{mx}, v{mx}, v{mx+1}"]
            L.append(f"v_mul_f32 v{mx}, s86, v{mx}")
            for i in range(4): L.append(f"v_pk_fma_f32 {Pn(s+2*i)}, {Pn(s+2*i)}, s[86:87], {Pn(mx)} op_sel_hi:[1,1,0] neg_lo:[0,0,1] neg_hi:[0,0,1]")
            for i in range(8): L.append(f"v_exp_f32 v{s+i}, v{s+i}")
            for i in range(4): L.append(cvt(q + i, s + 2 * i))
            return L
        def pvf(m):
            q = acc(m, 0)
            return [f"{MF} {R(acc(m,4))}, {R(acc(m,2))}, {R(q)}, 0", f"{MF} {R(acc(m,5))}, {R(acc(m,3))}, {R(q)}, 0", f"{MF} {R(acc(m,2))}, a[136:139], {R(q)}, 0"]
        def fin(m):
            s = acc(m, 4); l = acc(m, 2); q = acc(m, 0)
            L = [f"v_rcp_f32 v{l}, v{l}"]
            for i in range(4): L.append(f"v_pk_mul_f32 {Pn(s+2*i)}, {Pn(s+2*i)}, {Pn(l)} op_sel_hi:[1,0]")
            for i in range(4): L.append(cvt(q + i, s + 2 * i))
            L.append(f"s_mov_b32 s29, {m*A2S}\nbuffer_store_dwordx4 {R(q)}, v18, s[12:15], s29 offen {C.ST_AUX} ; @o")
            return L
        zp = lambda a, b: [x for p in zip(a, b) for x in p]
        two = lambda f, a: f(a) + f(a + 1)
        sm2 = lambda a: zp(smax(a), smax(a + 1))
        fin2 = lambda a: zp(fin(a)[:-1], fin(a + 1)[:-1])
        ost = lambda *ms: [fin(m)[-1] for m in ms]
        def half(mp, S):
            d = [164, 172, 188, 196][mp]
            G = [f"v_accvgpr_read_b32 v{d+i}, a{176+8*mp+i}" for i in range(8)] + gelu8([d, d + 2, d + 4, d + 6], [212 + 4 * mp] * 2 + [214 + 4 * mp] * 2, [228, 230, 228, 230], [248, 250, 248, 250])
            emit(A, place(G, S))
            A(f"v_permlane32_swap_b32 v{d}, v{d+2}\nv_permlane32_swap_b32 v{d+1}, v{d+3}")
            A(f"s_mov_b32 s29, {2*mp*A2S}\nbuffer_store_dwordx4 {R(d)}, v17, s[12:15], s29 offen {C.ST_AUX} ; @h2")
        ir = list(range(48, 56)) + [acc(b, 2 + db) + h for b in range(2) for db in range(2) for h in range(2)]
        itest = "\n".join([f"v_max3_u32 v6, v{ir[0]}, v{ir[1]}, v{ir[2]}", f"v_max3_u32 v34, v{ir[3]}, v{ir[4]}, v{ir[5]}"]
                          + [f"v_max3_u32 v{[6,34][k&1]}, v{[6,34][k&1]}, v{ir[6+2*k]}, v{ir[7+2*k]}" for k in range(5)] + ["v_max_u32 v6, v6, v34", "v_cmp_eq_u32 vcc, -1, v6"])
        emit(A, mrd(0) + mrd(1) + two(smf, 6) + mrd(2))
        emit(A, place(sm2(6), [(two(smf, 4), 22, 38)]))
        A(ts("s4")); emit(A, place(sm2(4) + fin2(6), [(two(pvf, 6), 1, 19), (two(smf, 2), 22, 38)]))
        emit(A, place(sm2(2) + fin2(4) + g2_addr, [(two(pvf, 4), 1, 19), ([rowp(212 + 2 * m, 30, 64 * m) for m in range(8)] + ["ds_read_b128 v[228:231], v21\nds_read_b128 v[248:251], v21 offset:1024"], 22, 50),
                                                  ([poll(1) + " ; @p1"] + IMP_, C.HP, 80)]))
        A(ts("h")); A("s_waitcnt lgkmcnt(0)")
        half(0, [(two(pvf, 2), 9, 27), (ost(6, 7, 4), 2, 46)])
        A(ts("h1")); emit(A, fin2(2))
        half(1, [(["WAITVM p1\n" + spin(slow, P + "_f1", poll(1), ptest)] + A0[:4], 0, 50)]); A(ts("h2"))
        half(2, [(A0[4:], 6, 50), (["WAITVM hi\n" + spin(slow, P + "_hx", "\n".join(x.split(";")[0] for x in IMP_), itest)] + two(smf, 0), 36, 48)])
        rest = [None] * 5 + ost(5, 2, 3)
        A(ts("h3"))
        emit(A, place(sm2(0), [(rest[5:], 8, 52)]))
        A(ts("h4")); half(3, [(two(pvf, 0), 9, 27), (start2, 12, 52)])
        emit(A, fin2(0) + ost(0, 1))

    def mfmas2(j, p):
        L = []; ms = list(range(4 if steps[j][5] else 2)); t = 0
        if j == NK - 1:
            return [f"{MF} {R(acc2(m,n))}, {aR(32*p+4*n)}, {aR(areg(j, p, m))}, {R(acc2(m,n))}" for n in range(8) for m in (ms if n % 2 == 0 else ms[::-1])]
        for c in range(4):
            n = 4 * p + c
            for m in (ms if n % 2 == 0 or j == 0 else ms[::-1]):
                d = R(acc2(m, n)); t += 1
                for q, kk in enumerate((0, 1) if t % 2 else (1, 0)):
                    cc = d if j or q else ("0" if att or m > 1 else R(acc2(1, n)))
                    L.append(f"{MF} {d}, {aR(32*p+8*c+4*kk)}, {aR(areg(j, kk, m))}, {cc}")
        return L
    def sub2(M, Rd, S, D):
        n = len(M); S = [(Rd, 0, n)] + S
        if D: S.append((D, 0, n, 4) if C.GRID & 1 and n >= 4 * len(D) else (D, 1, n + 1) if n >= 3 * len(D) else (D, 0, n - 1))
        S.append((["s_waitcnt lgkmcnt(8)"], n // 2 - 1, n // 2))
        emit(A, place(M, S))
    A("WAITVM a0 | lgkmcnt(0)"); A(ts("g2go")); A(ts("RTg2")); A(ts("g2go2"))
    A(f"{P}_g2:")
    first_need = {}
    for s, st in enumerate(steps): first_need.setdefault(st[3], s)
    bars = [j for j in range(NK - 1) if (j < NW and j % C.KBW == 0) or (j >= NW and (j - NW) % C.KB == 0)]
    checks = {first_need[k] - 4: k for k in first_need if k != 1}
    T = [0]
    for u in range(2 * NK): T.append(T[-1] + (32 if steps[u // 2][5] else 16))
    fixed = {2 * NW - 2: 2, 2 * NW - 1: 4, 2 * NW: 2}
    UX = 2 * NK - 1 - C.XU; UY = UX - 2
    for u in range(UY if att else UX, 2 * NK): fixed[u] = 9
    ok = {k: 2 * (j + 1) + 1 for j, k in checks.items()}; ok[1] = 0
    QA = [(max(2 * aprev(x) + 2, ok[steps[x][3]]), T[2 * x], x) for x in range(1, NK) for _ in range(8 if steps[x][5] else 4)]
    QB = [(2 * next(b for b in bars if b >= x - NB + 1) + 1 if x >= NB else 0, T[2 * max(b for b in bars if b < x) + 1] - C.BM, x) for x in range(C.NPRE, NK) for _ in range(4)]
    plan = []; marg = 999
    for u in range(2 * NK - 1):
        cap = (8 if u == 0 else C.CAPW if steps[u // 2][5] else C.CAPN) - fixed.get(u, 0); P_ = []
        while len(P_) < cap:
            c = [q for q in (QA, QB) if q and q[0][0] <= u]
            if not c: break
            q = min(c, key=lambda q: q[0][1]); it = q.pop(0); P_.append(("a" if q is QA else "b", it[2]))
            marg = min(marg, it[1] + (C.BM if q is QB else 0) - T[u + 1])
        plan.append(P_)
    assert not QA and not QB and marg >= 0, marg
    C.marg[att] = marg
    qa = []; qb = []
    def take(u):
        out = []
        for k, x in plan[u]:
            q = qa if k == "a" else qb
            if not q: q.extend(lda(x) if k == "a" else dma_b(x))
            out.append(q.pop(0))
        return out
    busy = {BS(x) for x in range(bars[-1], NK)}
    STG = next(r * 16384 for r in range(NB - 2) if not busy & {(r + x) * 16384 for x in range(3)})
    sub2(mfmas2(0, 0), reads2(0, 1), [(g2_addr2, 3, 28)], take(0))
    xpoll = "buffer_load_dword v33, v34, s[16:19], 0 offen sc1"
    ypoll = "buffer_load_dword v25, v26, s[16:19], 0 offen sc1"
    xl = lambda base, a, tag: [f"buffer_load_dwordx4 {R(base+4*i)}, v{a}, s[56:59], {'s34' if i>=4 else '0'} offen offset:{1024*(i&3)} sc1 ; @{tag}" for i in (0, 4, 1, 5, 2, 6, 3, 7)]
    gl = att and C.GLAST; XL = xl(128, 18 if gl else 13, "xl"); YL = xl(160, 13 if gl else 18, "yl")
    gate = lambda v, sr: f"v_cmp_eq_u32 vcc, 0, v{v}\ns_cmp_eq_u64 vcc, 0\ns_cselect_b32 s58, {16*MB}, 0\ns_mov_b32 s{sr}, s58"
    def extra(u, S, D):
        w = ""
        if u == UX - C.XD: S.append(([xpoll + " ; @px"], 0, 1))
        if u == UX: w += " px"; S.append(([gate(33, 64)], 0, 1))
        if u in (UX, UX + 1): D += [(None, x) for x in XL[4*(u-UX):4*(u-UX)+4]]
        if att:
            if u == UY - C.YD: S.append(([ypoll + " ; @py"], 0, 1))
            if u == UY: w += " py"; S.append(([gate(25, 65)], 0, 1))
            if u in (UY, UY + 1): D += [(None, x) for x in YL[4*(u-UY):4*(u-UY)+4]]
        if u == 2 * NW + C.SWF: w += " sw"; S.append(([flag(1 if att else 4)], 0, 1))
        return w
    blocks = lambda p: [(0, 2 * p), (1, 2 * p), (1, 2 * p + 1), (0, 2 * p + 1)]
    ids = lambda p, base: [f"{MF} {R(acc2(m,n))}, {R(194-2*(n&1))}, {R(base+16*m+4*p)}, {R(acc2(m,n))}" for m, n in blocks(p)]
    def swp(p):
        V = []; D = []
        for m in range(2):
            d = acc2(2 + m, 2 * p); V += [cvt(d + q, d + 2 * q) for q in range(4)]
            D.append(f"buffer_store_dwordx4 {R(d)}, v12, s[56:59], {'s34' if m else '0'} offen offset:{1024*p} sc1 ; @sw")
        return V[:4] + [D[0]] + V[4:] + [D[1]]
    for j in range(NK - 1):
        S = []; bar = j in bars
        nxt = next((b for b in bars if b > j), NK - 1)
        w = "WAITVM" + (f" b{nxt}" if bar else "")
        if j - 1 in checks: w += f" p{checks[j-1]}"
        if j == 1: w += " h2 o" if att else " h2"
        D = take(2 * j + 1); w += extra(2 * j + 1, S, D)
        A((w + " | lgkmcnt(8)" if w != "WAITVM" else "s_waitcnt lgkmcnt(8)") + ("\ns_barrier" if bar else ""))
        if j in (0, 7) or (j >= NW and j % 2 == 0): A(ts(f"q{j}"))
        M = mfmas2(j, 1)
        if j - 1 in checks: S.append(([spin(slow, f"{P}_g{checks[j-1]}", poll(checks[j-1]), ptest)], 0, 1))
        if j == 1: S.append(([flag(0 if att else 2)], 0, 1))
        if j in checks: S.append(([poll(checks[j]) + f" ; @p{checks[j]}"], 0, 1))
        if j == 2:
            sd = [f"s_lshl_b32 s29, s37, 13\ns_add_u32 s29, s29, {8*MB}\nv_lshl_add_u32 v12, v2, 4, s29", "v_xor_b32 v13, 0x10000, v12",
                  "s_lshr_b32 s29, s2, 1\ns_lshl_b32 s29, s29, 2\ns_add_u32 s29, s29, s20", "s_lshl_b32 s29, s29, 13\nv_lshl_add_u32 v18, v2, 4, s29",
                  f"s_xor_b32 s29, s99, 1024\nv_mov_b32 v{26 if gl else 34}, s29"]
            if att: sd += [f"v_mov_b32 v{34 if gl else 26}, s67"] + lines(xo_base) + ["v_lshrrev_b32 v10, 3, v2", "v_and_b32 v11, 7, v2", "v_lshl_add_u32 v21, v10, 12, s29", "v_lshl_add_u32 v21, v11, 4, v21"]
            S.append((sd, 2, 30))
        if j == 5:
            sd = ["v_and_b32 v22, 1, v4", "v_lshlrev_b32 v22, 4, v22", "v_mov_b32 v23, 0x3f80", "v_lshlrev_b32 v22, v22, v23", "v_lshrrev_b32 v23, 1, v4", "v_lshlrev_b32 v24, 1, v3", "v_sub_u32 v23, v23, v24",
                  "v_cmp_eq_u32 vcc, 0, v23", "v_mov_b32 v192, 0", "v_cndmask_b32 v194, 0, v22, vcc", "v_cmp_eq_u32 vcc, 1, v23", "v_mov_b32 v193, 0", "v_cndmask_b32 v195, 0, v22, vcc", "v_mov_b32 v196, 0", "v_mov_b32 v197, 0"]
            S.append((sd, 2, 32))
        if j == 6:
            if att: sd = ["v_mul_u32_u24 v8, 272, v4", "v_lshl_add_u32 v8, v3, 3, v8", f"s_mul_i32 s29, s20, 8704\ns_add_u32 s29, s29, {STG}\nv_add_u32 v8, s29, v8",
                          "v_mul_u32_u24 v9, 272, v10", "v_lshl_add_u32 v9, v11, 4, v9", "v_add_u32 v9, s29, v9"]
            else: sd = ["v_sub_u32 v23, v23, v24"] + [x for d in range(8) for x in (f"v_cmp_eq_i32 vcc, {(d&3) - 8*(d>>2)}, v23", f"v_cndmask_b32 v{200+d}, 0, v22, vcc")]
            S.append((sd, 2, 32))
        if j == NW - 1: S.append((swp(1), 4, 16)); S.append((swp(2), 20, 32))
        sub2(M, reads2(j + 1, 0), S, D)
        M = mfmas2(j + 1, 0); S = []
        D = take(2 * j + 2); w = extra(2 * j + 2, S, D)
        A(f"WAITVM a{j+1}{w} | lgkmcnt(8)")
        if j == NW - 2: S.append((swp(0), 20, 32))
        if j == NW - 1: S.append((swp(3), 4, 16))
        sub2(M, reads2(j + 1, 1), S, D)
        if not att and j == 8:
            for n in range(8):
                for m in range(2): A(f"{MF} {R(acc2(m,n))}, {R(200+4*(n&1))}, {aR(208+16*m+4*(n>>1))}, {R(acc2(m,n))}")
    assert not (qa or qb)
    A(ts("RTg2e")); A(ts("g2end"))
    def late(nm, sr, pl, v, L, tail):
        A(f"s_cmp_eq_u32 s{sr}, 0\ns_cbranch_scc1 {P}_{nm}_slow\n{P}_{nm}done:")
        slow.append(f"{P}_{nm}_slow:\ns_mov_b32 s39, {C.SPIN}\ns_mov_b32 s58, {16*MB}\n{P}_{nm}_spin:\n{pl}\ns_waitcnt vmcnt(0)\nv_cmp_eq_u32 vcc, 0, v{v}\ns_cbranch_vccz {P}_{nm}_ok\ns_sleep {C.XSL}\n"
                    f"s_sub_u32 s39, s39, 1\ns_cmp_lg_u32 s39, 0\ns_cbranch_scc1 {P}_{nm}_spin\n{P}_{nm}_ok:\n" + "\n".join(L) + f"\n{tail}s_branch {P}_{nm}done")
    if att: late("y", 65, ypoll, 25, YL, f"s_cmp_eq_u32 s64, 0\ns_cbranch_scc1 {P}_ydone\ns_waitcnt vmcnt(0)\n")
    late("x", 64, xpoll, 33, XL, "")
    A(ts("xgot"))
    if att:
        A("s_mov_b32 s29, 0x8000\ns_waitcnt vmcnt(8)")
        for p in range(4): emit(A, ids(p, 160))
    A("s_waitcnt lgkmcnt(8)")
    reg = mfmas2(NK - 1, 1)
    def post(p):
        L = []
        for m, n in blocks(p):
            d = acc2(m, n); o = 160 + 16 * m + 4 * p
            if att: L += [cvt(d, d), cvt(d + 1, d + 2), f"ds_write_b64 v8, {Pn(d)} offset:{4352*m + 32*n}"]
            else:
                L += [cvt(o + 2 * (n & 1), d), cvt(o + 2 * (n & 1) + 1, d + 2)]
                if n & 1: L.append(f"buffer_store_dwordx4 {R(o)}, v18, s[56:59], {'s34' if m else '0'} offen offset:{1024*p} sc1")
        return L
    rd = lambda h: [f"ds_read_b128 {R(160+16*h+4*i)}, v9 offset:{2176*i + 128*h}" for i in range(4)]
    st = lambda h, i: f"buffer_store_dwordx4 {R(160+16*h+4*i)}, v21, s[52:55], {'s29' if i&1 else '0'} offen offset:{2048*(i>>1) + 128*h} {C.OUT_AUX}"
    for p in range(4):
        S = [([f"s_waitcnt vmcnt({6 - 2*p + (0 if att else 2*max(p-1, 0))})"], 3, 4)]
        if p == 0: S.append((["s_waitcnt lgkmcnt(0)"], 7, 8))
        if att and p == 3: S.append((rd(0), 0, 2))
        if p: S.append((post(p - 1), 2, 8))
        emit(A, place(reg[4*p:4*p+4] + ids(p, 128), S))
    if att:
        A("s_waitcnt lgkmcnt(4)"); emit(A, [st(0, 0), st(0, 1)])
        emit(A, post(3) + rd(1) + [st(0, 2), st(0, 3)])
        for i in range(4): A(f"s_waitcnt lgkmcnt({3-i})\n" + st(1, i))
    else:
        emit(A, post(3))
        A(ts("xs")); A("s_waitcnt vmcnt(0)\n" + flag(3))
    stamp_out(A)
    A(f"{P}_fin:\ns_endpgm")
    for s in slow: A("s_nop 7\n" + s)
    A(f"{P}_end:")

def build(path, **kw):
    for k, v in kw.items(): setattr(C, k, v)
    A = Asm(); name = NAME + "_kernel"
    A(f".text\n.globl {name}\n.p2align 8\n.type {name},@function\n{name}:")
    A("s_cmp_ge_u32 s2, 256\ns_cbranch_scc0 L_go\ns_endpgm\nL_go:")
    for r, o in ((60, 0), (8, 8), (68, 32), (16, 80), (40, 16), (44, 48), (72, 40), (48, 72)): A(f"s_load_dwordx2 s[{r}:{r+1}], s[0:1], {o}")
    C.names = []
    if C.FINE == 1: A("s_memtime s[98:99]")
    A(ts("RTstart"))
    A("v_lshrrev_b32 v3, 6, v0\nv_and_b32 v2, 63, v0\nv_readfirstlane_b32 s20, v3\nv_and_b32 v4, 15, v2\nv_lshrrev_b32 v3, 4, v2")
    A("s_lshr_b32 s29, s2, 3\ns_xor_b32 s29, s29, s2\ns_and_b32 s35, s29, 1\ns_cselect_b32 s30, 7, 11")
    A("s_getpc_b64 s[76:77]\nL_pc:\ns_mul_i32 s29, s35, Lg_base-La_base\ns_add_u32 s29, s29, La_base-L_pc\n" + add64(76, "s29") + "\ns_mov_b32 s78, Lg_end-Lg_base\ns_mov_b32 s79, 0x20000")
    if C.PAD: A("s_lshl_b32 s29, s20, 7\nv_lshl_add_u32 v24, v3, 9, s29\nbuffer_load_dword a141, v24, s[76:79], 0 offen\nv_lshl_add_u32 v25, v4, 12, s29\nbuffer_load_dword a141, v25, s[76:79], 0 offen")
    A("v_lshrrev_b32 v24, 3, v2\nv_and_b32 v25, 7, v2")
    A("s_bfe_u32 s23, s2, 0x20004\ns_bfe_u32 s3, s2, 0x10001\ns_lshl_b32 s29, s3, 2\ns_add_u32 s23, s23, s29" + ("\ns_mov_b32 s3, 0" if C.NOROT else ""))
    A("v_and_b32 v26, 6, v24\nv_xor_b32 v26, v25, v26\nv_lshlrev_b32 v17, 12, v24\nv_lshl_add_u32 v17, v26, 4, v17\ns_lshl_b32 s29, s20, 17\ns_add_u32 s29, s29, 32768\nv_add_u32 v16, s29, v17")
    A("s_lshr_b32 s38, s2, 6\ns_lshl_b32 s80, s38, 15\ns_and_b32 s39, s38, 2\ns_add_u32 s38, s38, s39\ns_lshl_b32 s39, s20, 3\ns_add_u32 s38, s38, s39\ns_lshl_b32 s84, s38, 10")
    A("s_lshl_b32 s64, s23, 19\ns_lshl_b32 s39, s3, 10\ns_add_u32 s64, s64, s39\n" + srd(4, 18 * 32768))
    for i in range(1, 4): A(f"s_xor_b32 s{80+i}, s80, {i<<15}\ns_xor_b32 s{84+i}, s84, {((i&1) + 4*(i>>1)) << 10}")
    A("s_lshr_b32 s24, s2, 6\ns_and_b32 s29, s2, 1\ns_lshl_b32 s29, s29, 2\ns_add_u32 s24, s24, s29\ns_and_b32 s29, s2, 4\ns_lshl_b32 s29, s29, 1\ns_add_u32 s24, s24, s29")
    A("s_lshl_b32 s29, s35, 10\ns_add_u32 s36, s29, 6144\ns_lshl_b32 s29, s35, 8\ns_add_u32 s31, s29, 128")
    A("v_and_b32 v26, 2, v24\nv_xor_b32 v25, v25, v26\ns_and_b32 s39, s23, 1\ns_lshl_b32 s29, s39, 2\nv_xor_b32 v25, s29, v25")
    A("s_lshl_b32 s29, s20, 1\ns_add_u32 s29, s29, s39\ns_lshl_b32 s29, s29, 3\nv_add_u32 v26, s29, v24\nv_mul_u32_u24 v26, s36, v26\nv_lshl_add_u32 v18, v25, 4, v26")
    A("s_xor_b32 s29, s29, 8\nv_add_u32 v26, s29, v24\nv_mul_u32_u24 v26, s36, v26\nv_xor_b32 v25, 4, v25\nv_lshl_add_u32 v19, v25, 4, v26")
    A("s_mul_i32 s65, s3, s36\ns_lshl_b32 s65, s65, 9\ns_mul_i32 s31, s31, s24\ns_add_u32 s65, s65, s31")
    A(f"s_lshl_b32 s10, s36, 8\ns_mov_b32 s11, 0x20000\ns_mul_i32 s27, s20, 7168\ns_add_u32 s27, s27, {WB}\ns_mul_i32 s39, s39, 3072\ns_and_b32 s38, s23, 2")
    for k in range(3):
        A(f"s_cmp_eq_u32 s38, 0\ns_cselect_b32 s29, {k}, {(k+2)%3}\ns_lshl_b32 s{94+k}, s29, s30\ns_lshl_b32 s29, s29, 10\ns_add_u32 s29, s29, s27")
        A(f"s_add_u32 s{88+k}, s29, s39\ns_sub_u32 s29, s29, s39\ns_add_u32 s{91+k}, s29, 3072")
    if C.PRE:
        A("s_lshr_b32 s29, s2, 6\ns_lshl_b32 s29, s29, 1\ns_bfe_u32 s39, s2, 0x10003\ns_add_u32 s29, s29, s39\ns_lshl_b32 s29, s29, 2\ns_add_u32 s29, s29, s20\ns_lshl_b32 s29, s29, 14\ns_add_u32 s29, s29, 32896")
        A(f"v_and_b32 v41, 7, v2\nv_lshl_add_u32 v40, v41, 11, s29\nv_min_u32 v41, {C.PRE-1}, v24\nv_lshl_add_u32 v40, v41, 7, v40")
        A(f"s_lshl_b32 s10, s36, 8\ns_and_b32 s29, s23, 3\ns_lshl_b32 s29, s29, 2\ns_add_u32 s29, s29, s20\ns_lshl_b32 s29, s29, 2\ns_add_u32 s29, s29, 64\nv_and_b32 v41, 3, v2\nv_min_u32 v42, {C.PRE-1}, v3\nv_lshl_add_u32 v41, v42, 6, v41\nv_add_u32 v43, s29, v41")
        A("v_mul_u32_u24 v41, s36, v43\nv_bfe_u32 v42, v2, 2, 2\nv_min_u32 v42, 2, v42\nv_lshlrev_b32 v42, s30, v42\nv_add_u32 v41, v41, v42\nv_mul_u32_u24 v43, 7168, v43")
    if C.FINE == 1: A("s_memtime s[66:67]")
    A("s_mov_b32 m0, s84\ns_waitcnt lgkmcnt(0)")
    if C.FINE == 1:
        A("v_writelane_b32 v1, s100, 0\nv_writelane_b32 v1, s98, 1\ns_mov_b32 s100, s66"); C.names += ["t0", "pre"]
    A(ts("karg"))
    A("s_add_u32 s4, s60, s64\ns_addc_u32 s5, s61, 0\n" + sub64(4, 32768))
    xd = lambda i: f"buffer_load_dwordx4 v16, s[4:7], s{80+i} offen lds\nbuffer_load_dwordx4 v16, s[4:7], s{80+i} offen offset:2048 lds"
    A(xd(0))
    A("s_mov_b32 m0, s88\ns_cmp_eq_u32 s35, 0\ns_cselect_b32 s8, s8, s68\ns_cselect_b32 s9, s9, s69\n" + add64(8, "s65"))
    for k in range(3):
        A((f"s_mov_b32 m0, s{88+k}\n" if k else "") + f"buffer_load_dwordx4 v18, s[8:11], s{94+k} offen lds")
        if k == 1 and C.PRE: A("buffer_load_dword a140, v40, s[4:7], 0 offen\nbuffer_load_dword a140, v41, s[8:11], 0 offen")
    A("s_mov_b32 m0, s85\n" + xd(1))
    A("s_lshr_b32 s21, s20, 1\ns_and_b32 s22, s20, 1\ns_mov_b32 s33, 0x3f803f80")
    A("s_bfe_u32 s25, s2, 0x20003\ns_and_b32 s29, s2, 4\ns_add_u32 s25, s25, s29\ns_lshl_b32 s25, s25, 1\ns_add_u32 s25, s25, s3\ns_lshr_b32 s26, s2, 5".replace("s_add_u32 s25, s25, s3", "s_bfe_u32 s29, s2, 0x10001\ns_add_u32 s25, s25, s29"))
    C.common = C.names
    A("s_cmp_eq_u32 s35, 0\ns_cbranch_scc0 Lg_base\ns_branch La_base")
    role(A, True)
    role(A, False)
    A.lines = resolve_ds(resolve_vm(A.lines))
    if C.EXP:
        reg = None; L = []; nb = 0
        for l in A.lines:
            if l.endswith("_ret1:"): reg = "g1"
            if l.endswith("_epi:"): reg = "epi"
            if l.endswith("_g2:"): reg = "g2"
            if l.endswith("_fin:"): reg = None
            k = False
            if reg == "g2" and C.EXP & 4 and l.startswith("ds_read_b64_tr"): k = True
            if reg == "g2" and C.EXP & 8 and l.startswith("buffer_load_dwordx4") and ("v16" in l or "v19" in l): k = True
            if reg == "g1" and C.EXP & 16 and l.startswith("ds_read") and " a[" in l: k = True
            if reg == "g1" and C.EXP & 32 and l.endswith("lds") and "s31" not in l: k = True
            if reg == "epi" and C.EXP & 64 and l.startswith(("v_exp", "v_rcp", "v_pk_")): continue
            if reg == "g2" and C.EXP & 128 and l.startswith("v_mfma"): l = "s_nop 3"
            if reg == "g1" and C.EXP & 256 and l.startswith("v_mfma"): l = "s_nop 3"
            L.append("s_nop 0" if k else l)
        A.lines = L
    body = A.finish()
    hdr = "; @launch grid=(256,1,1) block=(256,1,1) lds=163840\n" + (f"; FINE0 {' '.join(C.allnames[True])}\n; FINE1 {' '.join(C.allnames[False])}\n" if C.FINE else "") + '.amdgcn_target "amdgcn-amd-amdhsa--gfx950"\n'
    if C.PAD: body, C.npads = add_pads(hdr, body, [("La_base", "La_fin", "La", "La_ret"), ("Lg_base", "Lg_fin", "Lg", "Lg_ret")])
    open(path, "w").write(hdr + body + '.section .rodata,"a"\n.p2align 6\n' + kdesc(name))
    return A.npad

if __name__ == "__main__":
    print("pads", build("v6.s"))
    build("v6_fine.s", FINE=True)
    print({k: len(v) for k, v in C.allnames.items()}, C.npads, C.marg)
```

```python
import sys, math
from asmlib import *
NAME = "parallel_sum__sliding_local_dilated__dense_activation_gelu__prompt"
MB = 1 << 20
WS_A2 = 8 * MB; WS_XCH = 32 * MB; WS_ST = 48 * MB
O_ST, O_CS, O_FL, O_XF = 0, 16384, 262144, 524288
A2S = 144 * 1024
class C:
    FINE = False; PROBE = None; names = []; allnames = {}
    NFL = -2; A_AUX = "sc1"; ST_AUX = "sc1"; OUT_AUX = "sc1"; PF = True; CPF = True; CPH = False; PAD = True; ROT = True; PRE = 0; STJ = (1, 1); PF0 = (8, 6); NOROT = False
    SPIN = 1 << 16; DA = 4; NW = (14, 14); BM = 0; marg = {}; CAPW = 7; SWF = 5; GLAST = True; XU = 2; YCHK = 3; CAPN = 3; NPRE = 7; NA0 = (2, 2); RP = None; XCHK = 2; XSL = 1; XD = 4; YD = 4; KB = 2; KBW = 2; GRID = 3; RE = 6; SFX = (0, 9, 9, 9); CAP0 = 6; UC = 14; SWM = 1; CJS = (12, 12, 13); CJB = (); CG = (); SPL = (0, 0.4, 0.7, 1); HF = 2; OE = 2; HP = 30; CJ = 5; AD = 3; CF = True; HC = 2; S0E = (8, 20); WS = True; MJ = 0; MRG = "xX:04 wW:016 xX:123|wW:2345"; SEQ = (("w0:345 x0:23 w1:01 x1:0123", "w1:2345 w2:012345"), ("w0:6345 x0:23 x1:0123 w1:601", "w1:2345 w2:601", "x2:0123 w2:2345|w3:6012345")); IDLE = None; XJ = (8, 8, 9, 9, 10, 10, 11, 11); PFL = ((), tuple(range(10, 18)) + tuple(range(10))); PFN = 3; D0 = 1; QS = 12; B0 = -2.0; EXP = 0; XR = 1; SM = 6.0
XS = lambda s: s * 34816
WB = 69632
TB = 155648
T_CS, T_B1, T_B2 = TB + 2560, TB + 3584, TB + 4608
NB = 9
BS = lambda j: ((j + 6) % NB) * 16384
R = lambda d: f"v[{d}:{d+3}]"
aR = lambda d: f"a[{d}:{d+3}]"
Pn = lambda r: f"v[{r}:{r+1}]"
MF = "v_mfma_f32_16x16x32_bf16"
cvt = lambda d, s: f"v_cvt_pk_bf16_f32 v{d}, v{s}, v{s+1}"
srd = lambda r, n: f"s_mov_b32 s{r+2}, {n}\ns_mov_b32 s{r+3}, 0x20000"
add64 = lambda r, x: f"s_add_u32 s{r}, s{r}, {x}\ns_addc_u32 s{r+1}, s{r+1}, 0"
sub64 = lambda r, x: f"s_sub_u32 s{r}, s{r}, {x}\ns_subb_u32 s{r+1}, s{r+1}, 0"

HEADER = """; out = x + attn(LN(x)) @ wo + gelu(LN(x) @ w1 + b1) @ w2 + b2      (S=2048, D=1024, F=3584, 32 heads, window 8, dilation 2)
;    epilogue: rstd*(acc - mean*colsum(W)) with row statistics and column sums computed in the loop and handed over in ws.
"""

def ts(name):
    if not C.FINE or (C.FINE == 2 and name not in ("RTstart", "RTend", "x")) or (C.FINE == 3 and name[:2] != "RT" and name != "x"): return ""
    i = len(C.names); C.names.append(name)
    t = f"s_waitcnt lgkmcnt(0)\nv_writelane_b32 v1, s100, {i-1}\n" if i else ""
    return t + ("s_memrealtime s[100:101]" if name.startswith("RT") else "s_memtime s[100:101]")
def stamp_out(A):
    if not C.FINE: return
    A(ts("st")); A("s_waitcnt vmcnt(0)"); A(ts("end")); A(ts("RTend")); A(ts("x")); C.names.pop()
    if C.PROBE:
        a, b, wg = C.PROBE; C.uid = getattr(C, "uid", 0) + 1; u = C.uid
        if a in C.names and b in C.names:
            A(f"s_waitcnt lgkmcnt(0)\ns_cmp_lg_u32 s37, {wg*4}\ns_cbranch_scc1 Lpr{u}e\nv_readlane_b32 s4, v1, {C.names.index(b)}\nv_readlane_b32 s5, v1, {C.names.index(a)}\ns_memrealtime s[8:9]\ns_sub_u32 s4, s4, s5\n{'s_lshl_b32 s4, s4, 2' if a.startswith('RT') else 's_lshr_b32 s4, s4, 2'}\ns_add_u32 s4, s4, 1000\ns_min_u32 s4, s4, 100000")
            A(f"Lpr{u}:\ns_memrealtime s[6:7]\ns_waitcnt lgkmcnt(0)\ns_sub_u32 s6, s6, s8\ns_cmp_lt_u32 s6, s4\ns_cbranch_scc1 Lpr{u}\nLpr{u}e:")
        return
    A("s_load_dwordx2 s[4:5], s[0:1], 80\ns_waitcnt lgkmcnt(0)\n" + add64(4, WS_ST + 0x40000))
    A("s_lshl_b32 s6, s2, 2\ns_add_u32 s6, s6, s20\ns_lshl_b32 s6, s6, 8\nv_lshl_add_u32 v0, v2, 2, s6\nglobal_store_dword v0, v1, s[4:5]")
def emit(A, L):
    for d in L:
        if isinstance(d, str): A(d)
        else:
            for x in d:
                if x: A(x)
def lines(s): return [l for l in s.split("\n") if l.strip()]

def spin(slow, name, loads, test):
    slow.append(f"{name}_slow:\ns_mov_b32 s39, {C.SPIN}\n{name}_spin:\ns_sleep 8\n{loads}\ns_waitcnt vmcnt(0)\n{test}\ns_cbranch_vccz {name}_back\n"
                f"s_sub_u32 s39, s39, 1\ns_cmp_lg_u32 s39, 0\ns_cbranch_scc1 {name}_spin\ns_branch {name}_back")
    return f"{test}\ns_cbranch_vccnz {name}_slow\n{name}_back:"

def g2_steps(att):
    f = abs(C.NFL) // 2; no = C.NW[att] - 12
    pair = lambda i, lo, hi: int((i ^ 1) in range(lo, hi))
    wide = [("h", 3 * i + l, (3, 93, 12), 1 + l, i & 1, True) for l in range(3) for i in range(4)]
    wide += [("o", i, (pair(i, 0, no), 93, 4), 0, i & 1, True) for i in range(no)]
    nar = [("o", 8 * b + i, (pair(i, no, 4), 92, 4), 0, i & 1, False) for b in range(2) for i in range(no, 4)]
    nar += [("h", 48 + u, (pair(u, f, 4), 92, 4), 0, u & 1, False) for u in range(f, 4)]
    if f and att == (C.NFL < 0): nar += [("h", 48 + u + 4 * b, None, 0, 0, False) for u in range(f) for b in range(2)]
    return wide + nar

def role(A0_, att):
    A = A0_
    P = "La" if att else "Lg"
    slow = []
    stride = 6144 if att else 7168
    nblk = 7 if att else 6
    A("VMRESET")
    C.names = list(C.common); C.allnames[att] = C.names
    A("VMFAKE x0 4\nVMFAKE w0 3")
    SEQ = C.SEQ[att]
    base = {"x": 0, "w": 0, "h": 0}; left = {}
    def adv(k, j, n, reg, inc, wrap):
        left[(k, j)] = left.get((k, j), n) - 1; t = []
        while left.get((k, base[k])) == 0:
            t.append(add64(reg, inc) + ("\n" + sub64(reg, wrap) if base[k] == 7 else "")); base[k] += 1
        return "\n".join(t) or None
    def px(j, i):
        d = 128 * (j - base["x"]); assert d == 0 or j < 8
        if i == 4: return [(f"s_add_u32 m0, s28, {XS(j%2) - d}", f"buffer_load_dwordx4 v17, s[4:7], 0 offen offset:{d} lds ; @x{j}", adv("x", j, 4, 4, 128, "s64"))]
        assert XS(j % 2) >= d
        return [(f"s_add_u32 m0, s{84+i}, {XS(j%2) - d}", f"buffer_load_dwordx4 v16, s[4:7], s{80+i} offen offset:{d} lds ; @x{j}"),
                (None, f"buffer_load_dwordx4 v16, s[4:7], s{80+i} offen offset:{d+2048} lds ; @x{j}", adv("x", j, 4, 4, 128, "s64"))]
    def pw(j, k):
        if k == 6:
            d = (j - base["h"]) * 64 * 7168
            return [(f"s_add_u32 m0, s27, {(j%3)*28672 + 6144}" + (f"\ns_mov_b32 s31, {d}" if d else ""), f"buffer_load_dwordx4 v20, s[68:71], {'s31' if d else '0'} offen lds ; @w{j}", adv("h", j, 1, 68, 64 * 7168, "s97"))]
        d = (j - base["w"]) * 64 * stride; assert d == 0 or j < 8
        return [(f"s_add_u32 m0, s{88+k}, {(j%3)*28672}" + (f"\ns_add_u32 s31, s{94+k%3}, {d}" if d else ""), f"buffer_load_dwordx4 v{18+k//3}, s[8:11], s{31 if d else 94+k%3} offen lds ; @w{j}", adv("w", j, 6, 8, 64 * stride, "s65"))]
    def seq(spec):
        L = []
        for t in spec.replace(".", ":").split():
            k, j, ps = t[0], int(t[1:t.index(":")]), t[t.index(":") + 1:]
            if j > 15: continue
            for p in map(int, ps):
                if p < (4 if k == "x" else 6 + att): L += (px if k == "x" else pw)(j, p)
        return L
    seq("x0:01 w0:012")
    A(f".p2align 12\n{P}_base:\ns_load_dwordx2 s[52:53], s[0:1], {64 if att else 56}")
    A("v_lshrrev_b32 v5, 5, v2\nv_and_b32 v6, 3, v2")
    for i in range(4): A(f"v_accvgpr_write_b32 a{136+i}, s33")
    if att:
        A("v_lshrrev_b32 v24, 2, v2\nv_xor_b32 v25, v5, v6\ns_lshl_b32 s29, s20, 4\nv_add_u32 v24, s29, v24\nv_mul_u32_u24 v24, 7168, v24\nv_lshl_add_u32 v20, v25, 4, v24")
        A(f"s_mul_i32 s39, s3, {512*7168}\ns_lshl_b32 s38, s24, 6\ns_add_u32 s39, s39, s38\ns_add_u32 s39, s39, 6144\n" + add64(68, "s39") + "\n" + srd(68, 63 * 7168 + 64))
    A(f"s_mov_b32 s78, {P}_end-{P}_base")
    A("s_lshr_b32 s29, s2, 4\ns_lshl_b32 s29, s29, 2\ns_add_u32 s29, s29, s20\ns_lshl_b32 s29, s29, 10\nv_and_b32 v24, 7, v2\nv_lshl_add_u32 v23, v24, 7, s29")
    if C.CPF: A("buffer_load_dword a141, v23, s[76:79], 0 offen")
    A(f"s_lshl_b32 s64, s3, 11\ns_mul_i32 s65, s3, {1024*stride}\ns_mul_i32 s97, s3, {1024*7168}")
    S0 = seq(SEQ[0]); n0 = 7 + att
    A_, U = A, []
    def A(t):
        for l in lines(t):
            if U and l.startswith(("s_addc", "s_subb", "s_cselect")): U[-1] += "\n" + l
            else: U.append(l)
    A("v_and_b32 v27, 6, v4\nv_xor_b32 v27, v27, v3\nv_lshlrev_b32 v27, 4, v27\nv_lshl_add_u32 v28, v4, 7, v27")
    A("s_lshl_b32 s29, s21, 14\nv_add_u32 v8, s29, v28\nv_xor_b32 v9, 64, v8")
    xo_base = "s_lshl_b32 s29, s25, 2\ns_add_u32 s29, s29, s20\ns_lshl_b32 s29, s29, 16\ns_lshl_b32 s39, s26, 8\ns_add_u32 s29, s29, s39"
    if not att: A(xo_base + "\nv_lshl_add_u32 v21, v4, 12, s29\nv_lshl_add_u32 v21, v3, 4, v21")
    A("v_bfe_u32 v27, v2, 2, 2\nv_and_b32 v28, 1, v3")
    A(f"v_mul_u32_u24 v29, 7168, v5\nv_add_u32 v29, {WB}, v29")
    A("v_mul_u32_u24 v23, 3072, v28\nv_add_u32 v23, v29, v23\nv_lshl_add_u32 v23, v27, 7, v23\nv_lshl_add_u32 v23, v6, 3, v23")
    A("v_lshrrev_b32 v24, 1, v27\nv_lshl_or_b32 v24, v28, 1, v24\ns_lshl_b32 s29, s22, 1\nv_xor_b32 v24, s29, v24")
    A("v_lshl_add_u32 v10, v24, 5, v23\nv_xor_b32 v11, 32, v10\nv_add_u32 v13, 57344, v10\nv_add_u32 v14, 57344, v11")
    A("s_and_b32 s38, s23, 3\ns_lshl_b32 s38, s38, 1\ns_add_u32 s38, s38, s21")
    A("s_min_u32 s39, s38, 5\ns_and_b32 s29, s39, 1\ns_lshl_b32 s29, s29, 5\nv_xor_b32 v23, s29, v10\ns_lshr_b32 s29, s39, 1\ns_lshl_b32 s29, s29, 10\nv_add_u32 v23, s29, v23\nv_add_u32 v24, 512, v23")
    A("s_and_b32 s29, s39, 6\ns_add_u32 s29, s29, s22\ns_lshl_b32 s29, s29, 1\ns_and_b32 s39, s39, 1\ns_add_u32 s29, s29, s39\ns_lshl_b32 s29, s29, 4\nv_add_u32 v31, s29, v4")
    if att:
        A("v_lshl_add_u32 v25, v28, 3, v27\nv_lshl_add_u32 v25, v25, 6, v29\nv_add_u32 v25, 6144, v25")
        A("v_and_b32 v26, 2, v6\nv_add_u32 v26, s22, v26\nv_xor_b32 v26, v26, v28\nv_lshl_add_u32 v25, v26, 4, v25")
        A("v_and_b32 v26, 1, v6\nv_lshl_add_u32 v12, v26, 3, v25\nv_add_u32 v15, 57344, v12\nv_add_u32 v25, 256, v12")
        A("v_and_b32 v26, 8, v4\nv_add_u32 v26, v26, v4\ns_lshl_b32 s29, s22, 3\ns_add_u32 s29, s29, 192\nv_add_u32 v26, s29, v26")
        A("s_cmp_ge_u32 s38, 6\ns_cselect_b64 vcc, -1, 0\nv_cndmask_b32 v23, v23, v12, vcc\nv_cndmask_b32 v24, v24, v25, vcc\nv_cndmask_b32 v31, v31, v26, vcc")
    A("v_add_u32 v25, 57344, v23\nv_add_u32 v26, 57344, v24")
    A(f"s_lshl_b32 s66, s24, 12\ns_add_u32 s66, s66, {O_CS + (0 if att else 65536)}\ns_lshr_b32 s29, s23, 2\ns_lshl_b32 s29, s29, 11\ns_add_u32 s29, s29, s66\nv_lshl_add_u32 v31, v31, 3, s29")
    A(f"s_cmp_lt_u32 s38, {nblk}\ns_cselect_b32 s38, 0xffff, 0")
    A("s_lshl_b32 s29, s23, 1\ns_add_u32 s29, s29, s21\ns_lshl_b32 s29, s29, 8\ns_lshl_b32 s39, s24, 1\ns_add_u32 s39, s39, s22\ns_lshl_b32 s39, s39, 2\ns_add_u32 s29, s29, s39")
    A(f"s_lshr_b32 s67, s2, 1\ns_lshl_b32 s67, s67, 2\ns_add_u32 s67, s67, s20\ns_lshl_b32 s67, s67, 7\ns_add_u32 s67, s67, {O_XF}")
    if att: A(f"s_add_u32 s29, s29, {O_FL}\nv_mov_b32 v29, s29")
    else: A(f"s_add_u32 s29, s29, {O_FL + 4096}\nv_lshl_add_u32 v29, v6, 12, s29\nv_writelane_b32 v29, s67, 3")
    A(f"s_lshl_b32 s99, s2, 2\ns_add_u32 s99, s99, s20\ns_lshl_b32 s99, s99, 7\ns_add_u32 s99, s99, {O_XF + 131072}\nv_writelane_b32 v29, s99, {1 if att else 4}")
    if att:
        A(f"s_lshl_b32 s29, s23, 1\ns_add_u32 s29, s29, s21\ns_lshl_b32 s29, s29, 4\ns_add_u32 s29, s29, s24\ns_lshl_b32 s29, s29, 1\ns_add_u32 s33, s29, s22\ns_lshl_b32 s32, s33, 12\ns_add_u32 s32, s32, {MB}")
        for i in range(4): A(f"v_mov_b32 v{48+i}, -1")
    A("s_mov_b32 s12, s16\ns_mov_b32 s13, s17\ns_mov_b32 s56, s16\ns_mov_b32 s57, s17")
    for r, n in ((16, 4 * MB), (40, 2 * MB), (44, 7 * MB), (48, 256), (52, 4 * MB if att else 2048), (60, 4 * MB), (72, 7168), (56, 16 * MB)): A(srd(r, n))
    A(add64(56, WS_XCH))
    A("s_lshl_b32 s29, s2, 2\ns_add_u32 s37, s29, s20\ns_lshl_b32 s29, s37, 1\nv_lshrrev_b32 v30, 3, v4\nv_add_u32 v30, s29, v30\nv_and_b32 v27, 7, v2\nv_lshl_add_u32 v27, v3, 3, v27\nv_lshlrev_b32 v27, 4, v27\nv_lshl_add_u32 v27, v30, 11, v27")
    A("v_lshlrev_b32 v7, 4, v2\nv_mov_b32 v35, 1\nv_mov_b32 v34, 0\nv_mov_b32 v32, 0\nv_mov_b32 v33, 0\nv_lshlrev_b32 v30, 3, v30\ns_lshl_b32 s29, s20, 4\nv_add_lshl_u32 v6, s29, v4, 7")
    A("s_lshr_b32 s29, s2, 1\ns_lshl_b32 s29, s29, 2\ns_add_u32 s29, s29, s20\ns_lshl_b32 s35, s29, 10\ns_lshr_b32 s29, s29, 7\ns_mul_i32 s29, s29, 1441792\ns_add_u32 s36, s35, s29")
    A("s_waitcnt lgkmcnt(0)")
    A = A_; nu = len(U) - 1; one = lambda L: ["\n".join(x for x in d if x) for d in L]
    emit(A, place(U, [(one(S0[:n0]), int(nu * C.SPL[0]), int(nu * C.SPL[1])), (one(S0[n0:]), int(nu * C.SPL[2]), int(nu * C.SPL[3]))]))
    def pads(c):
        if not C.PAD: return
        k0 = [1, 5, 13][c]
        A("s_mov_b64 exec, 0")
        for w in range(3): A(f"s_cmp_eq_u32 s20, {w}\ns_cbranch_scc1 {P}_pad{k0+w}")
        A(f"s_branch {P + '_ws' if c == 2 and C.WS else P + '_pad' + str(k0 + 3)}\n{P}_ret{c}:\ns_mov_b64 exec, -1")
    stl = [(None, f"buffer_load_dwordx4 {aR(144+4*i)}, v27, s[60:63], 0 offen offset:{512*i} ; @st") for i in range(4)]
    A(ts("issued")); pads(0)

    acc = lambda m, n: 64 + 4 * (6 * m + n)
    xf = lambda h, i, kk: 32 * h + 8 * i + 4 * kk
    wf = lambda n, kk: 64 + 8 * n + 4 * kk
    def wofs(j):
        u = j % 3; return (u == 2), (0 if u == 2 else u * 28672)
    def rd_w(j, n):
        hiw, wo = wofs(j); wreg = 13 if hiw else 10; L = []
        for kk in range(2):
            for h in range(2):
                b = wf(n, kk) + 2 * h
                L.append(f"ds_read_b64_tr_b16 a[{b}:{b+1}], v{wreg+(n&1)} offset:{wo + kk*14336 + h*512 + (n>>1)*1024} ; @W{j}_{n}" if n < 6 else
                         f"ds_read_b64_tr_b16 a[{b}:{b+1}], v{wreg+2} offset:{wo + kk*14336 + h*256} ; @W{j}_{n}")
        return L
    rd_x = lambda j, h: [f"ds_read_b128 {aR(xf(h,i,kk))}, v{8+kk} offset:{XS(j%2) + (4*h+i)*2048} ; @X{j}_{h}" for i in range(4) for kk in range(2)]
    def rd_e(j):
        hiw, wo = wofs(j); L = []
        if j < 8: L += [f"ds_read_b64_tr_b16 a[{128+4*kk+2*h}:{129+4*kk+2*h}], v{(25 if hiw else 23)+h} offset:{wo + kk*14336}" for kk in range(2) for h in range(2)]
        return L
    def mfmas(j, h):
        L = []; end = []; t = [0]
        def chain(d, fa, fb):
            ks = (0, 1) if t[0] % 2 == 0 else (1, 0); t[0] += 1
            for q, kk in enumerate(ks): L.append(f"{MF} {d}, {aR(fa(kk))}, {aR(fb(kk))}, {'0' if j == 0 and q == 0 else d}")
        for n in range(nblk):
            W = lambda kk: wf(n, kk)
            rows = [0, 1, 2, 3]
            for i in (rows if n % 2 == 0 else rows[::-1]):
                m = 4 * h + i
                d = R(48 + 4 * (n - 2)) if i == 4 else (R(acc(m, n)) if n < 6 else aR(176 + 4 * m))
                X = (lambda kk: 120 + 4 * kk) if i == 4 else (lambda kk: xf(h, i, kk))
                if att and n in (4, 5): chain(d, X, W)
                else: chain(d, W, X)
            end.append(len(L))
        if j < 8 and h == 1: chain("v[36:39]", lambda kk: 136, lambda kk: 128 + 4 * kk)
        return L, end
    def rs_a(j, end):
        S = [(rd_x(j, 0)[:4], 0, 8, 2), (rd_x(j, 0)[4:], 3, 19, 4)]
        for n in range(nblk - 1): S.append((rd_w(j, n), end[n], end[n] + 8, 2))
        return S
    def rs_b(j, end, n):
        L = (rd_w(j, nblk - 1) if j else []) + rd_x(j, 1) + rd_e(j)
        S = [(L, 0, min(2 * len(L), n - C.RE), 2)]
        for b in range(1, nblk): S.append(([f"WAITDS W{j}_{b}"], end[b - 1] - 1, end[b - 1]))
        return S
    def pf(i):
        L = C.PFL[att]
        if not C.PF or i >= len(L): return []
        g = L[i]
        if g >= 10: return [(f"s_add_u32 s29, s36, {(3*((g-10)&3)+((g-10)>>2))*131072}", "buffer_load_dwordx4 a[140:143], v7, s[44:47], s29 offen")]
        if g < 4: return [(f"s_add_u32 s29, s36, {(3*g+2)*131072}", "buffer_load_dwordx4 a[140:143], v7, s[44:47], s29 offen")]
        if g < 8: return [(f"s_add_u32 s29, s35, {(g-4)*524288}", "buffer_load_dwordx4 a[140:143], v7, s[40:43], s29 offen")]
        return [(f"s_add_u32 s29, s35, {48*131072 + (g-8)*524288}", "buffer_load_dwordx4 a[140:143], v7, s[44:47], s29 offen")]
    cpf = lambda lab, k=0, dst="a141": [(f"s_mov_b32 s29, {lab}-{P}_base+{8192*k}", f"buffer_load_dword {dst}, v6, s[76:79], s29 offen")] if C.CPF else []
    stm = []
    stm += [f"{MF} v[40:43], a[136:139], {aR(144+4*i)}, {'v[40:43]' if i else '0'}" for i in range(4)]
    stm += [f"{MF} v[44:47], {aR(144+4*i)}, {aR(144+4*i)}, {'v[44:47]' if i else '0'}" for i in range(4)]
    dpp = lambda v, m: f"v_add_f32_dpp v{v}, v{v}, v{v} {m} row_mask:0xf bank_mask:0xf"
    rnd = lambda v: [f"v_cvt_pk_bf16_f32 v{v}, v{v}, v{v}", f"v_and_b32 v{v}, 0xffff0000, v{v}"]
    st1 = ["v_lshlrev_b32 v41, 2, v3", "v_sub_u32 v41, v4, v41"]
    for q in range(4): st1 += [f"v_cmp_eq_u32 vcc, {q}, v41", dpp(40, ["quad_perm:[1,0,3,2]", "quad_perm:[2,3,0,1]", "row_half_mirror"][q]) if q < 3 else f"v_mul_f32 v40, {f32(1/1024)}, v40",
                               f"v_cndmask_b32 v42, {'v42' if q else '0'}, v{44+q}, vcc"]
    st1 += [dpp(42, "quad_perm:[1,0,3,2]"), "v_mul_f32 v41, v40, v40", dpp(42, "quad_perm:[2,3,0,1]"), rnd(40)[0], dpp(42, "row_half_mirror"), rnd(40)[1]]
    for sw in (16, 32): st1 += ["v_mov_b32 v43, v42", f"v_permlane{sw}_swap_b32 v42, v43", "v_add_f32 v42, v42, v43"]
    st2 = [f"v_mov_b32 v43, {f32(1/1024)}", "v_fma_f32 v44, v42, v43, -v41", "v_max_f32 v44, 0, v44"] + rnd(44) + [f"v_add_f32 v44, {f32(1e-5)}, v44"] + rnd(44) + ["v_sqrt_f32 v44, v44"] + rnd(44) + ["v_rcp_f32 v44, v44", "v_mul_f32 v45, v44, v40"]
    cph = lambda dst="a141": [("v_lshl_add_u32 v33, v4, 12, s99", f"buffer_load_dword {dst}, v33, s[76:79], 0 offen")] if C.CPH else []

    steps = g2_steps(att); NK = len(steps); DA = C.DA
    cls = {}
    def off(reg, tab, unit, j, imm):
        dc, sl = steps[j][2], steps[j][4]
        if dc is None: return f"s_mov_b32 s{reg}, {imm}"
        t = ""
        if cls.get((tab, sl)) != dc:
            cls[(tab, sl)] = dc
            t = f"s_mul_i32 s{tab+sl}, s{88+sl}, {dc[0]*unit}\ns_mul_i32 s{reg}, s{dc[1]}, {dc[2]*unit}\ns_add_u32 s{tab+sl}, s{tab+sl}, s{reg}\n"
        return t + f"s_add_u32 s{reg}, s{tab+sl}, {imm}"
    NW = C.NW[att]
    areg = lambda j, kk, i: 64 + 32 * (j % 4) + 16 * kk + 4 * i if j < NW else 64 + 16 * ((NW + j) % 8) + 8 * kk + 4 * i
    aprev = lambda j: j - 4 if j < NW else (NW - 4 + (j - NW) // 2 if j < NW + 8 else j - 8)
    def lda(j):
        kind, q = steps[j][:2]; ks = 2 * q + (0 if kind == "o" else 32); L = []
        for b in range(2):
            so = off(30, 80, 2048, j, ks * 1024 + b * A2S)
            for o in range(2 if steps[j][5] else 1):
                for kk in range(2):
                    L.append((so if kk + o == 0 else None, f"buffer_load_dwordx4 {aR(areg(j, kk, 2*o+b))}, v{7 if o else 16}, s[4:7], s30 offen offset:{kk*1024} {C.A_AUX} ; @a{j}"))
        return L
    def dma_b(j):
        kind, q = steps[j][:2]; L = []; sr = "s[40:43]" if kind == "o" else "s[44:47]"
        for hi in range(2):
            so = off(31, 68, 131072, j, q * 131072 + hi * 16384)
            for ln in range(2):
                L.append((f"s_add_u32 m0, s98, {BS(j) + hi*2048 + ln*896}" + ("\n" + so if ln == 0 else ""),
                          f"buffer_load_dwordx4 v19, {sr}, s31 offen offset:{128*ln} lds ; @b{j}"))
        return L
    setup_b = ["s_lshl_b32 s98, s20, 12", "v_lshrrev_b32 v18, 3, v2", "v_and_b32 v19, 7, v2", "v_and_b32 v20, 6, v18", "v_xor_b32 v19, v19, v20",
               "s_lshl_b32 s29, s20, 4\nv_add_u32 v18, s29, v18", "s_lshl_b32 s29, s26, 8\nv_lshl_add_u32 v18, v18, 11, s29", "v_lshl_add_u32 v19, v19, 4, v18",
               f"s_and_b32 s29, s25, 14\ns_lshl_b32 s29, s29, 8\ns_add_u32 s29, s29, {O_FL}", "v_and_b32 v20, 31, v2", "v_lshl_add_u32 v20, v20, 2, s29", "v_lshl_add_u32 v20, v5, 8, v20"]
    setup_d = ["s_and_b32 s92, s2, 1\ns_bfe_u32 s29, s2, 0x10004\ns_xor_b32 s29, s29, s26", f"s_and_b32 s88, s29, {C.XR}\ns_sub_u32 s89, 0, s88\ns_and_b32 s93, s2, 3"]
    setup_a = ["s_and_b32 s29, s25, 1\ns_lshl_b32 s29, s29, 2\ns_add_u32 s29, s29, s20", f"s_mul_i32 s39, s29, {2*A2S}\nv_lshl_add_u32 v16, v2, 4, s39",
               f"s_xor_b32 s29, s29, 4\ns_mul_i32 s39, s29, {2*A2S}\nv_lshl_add_u32 v7, v2, 4, s39",
               f"s_lshr_b32 s29, s25, 1\ns_mul_i32 s29, s29, {16*A2S}\ns_add_u32 s29, s29, {WS_A2}", f"s_add_u32 s4, s12, s29\ns_addc_u32 s5, s13, 0\ns_mov_b32 s6, {16*A2S}",
               f"s_lshl_b32 s29, s23, 1\ns_add_u32 s29, s29, s21\ns_mul_i32 s29, s29, {8*A2S}", f"s_add_u32 s29, s29, {WS_A2}\n" + add64(12, "s29"), srd(12, 8 * A2S),
               "s_movk_i32 s34, 0x1000\ns_movk_i32 s32, 0x2000\ns_movk_i32 s28, 0x3000"]
    c0 = -2 * math.sqrt(2 / math.pi) * math.log2(math.e); c1 = c0 * 0.044715
    sc = 32 ** -0.5 * math.log2(math.e)
    rowp = lambda dst, a, off: f"ds_read_b32 v{dst}, v{a} offset:{off}\nds_read_b32 v{dst+1}, v{a} offset:{off+1280}"
    colreads = lambda ln: [f"ds_read_b128 {R(56+4*c)}, v31 offset:{256*ln+64*c}\nds_read_b128 {R(8+4*c)}, v31 offset:{1024+256*ln+64*c}" for c in range(2)]
    epi = [f"s_lshl_b32 s29, s21, 9\ns_add_u32 s29, s29, {TB}\nv_lshl_add_u32 v30, v4, 2, s29", f"s_mov_b32 s64, {f32(c1)}\ns_mov_b32 s65, {f32(c1)}\nv_mov_b32 v0, {f32(c0)}"]
    if not att:
        epi += [rowp(40 + 2 * m, 30, 64 * m) for m in range(8)]
        epi += [f"s_lshl_b32 s29, s22, 7\ns_add_u32 s29, s29, {T_CS}\nv_lshl_add_u32 v31, v3, 4, s29"] + colreads(0)
        epi += ["s_mul_i32 s29, s24, 6\ns_add_u32 s29, s29, s22\ns_add_u32 s29, s29, 32", "s_lshl_b32 s29, s29, 10\nv_lshl_add_u32 v18, v2, 4, s29"]
    else:
        epi += ["v_lshl_add_u32 v31, v3, 4, s29", f"s_lshl_b32 s29, s22, 7\ns_add_u32 s29, s29, {T_CS}\nv_lshl_add_u32 v26, v3, 4, s29", "v_lshl_add_u32 v27, v4, 2, s29"]
        epi += [f"ds_read_b128 {R([8,12,40,44][n])}, v26 offset:{256*(n>>1)+64*(n&1)}" for n in range(4)]
        r4 = lambda m: f"ds_read_b128 {R(48+8*(m&1))}, v31 offset:{64*m}\nds_read_b128 {R(52+8*(m&1))}, v31 offset:{64*m+1280}"
        epi += ["ds_read_b32 v36, v27 offset:512\nds_read_b32 v37, v27 offset:576", rowp(24, 30, 448), r4(7)]
        epi += ["v_and_b32 v32, 1, v3", "v_lshlrev_b32 v21, 4, v32", "v_lshlrev_b32 v28, 4, v2", "v_lshlrev_b32 v32, 3, v2"]
        epi += [f"s_lshl_b32 s90, s33, 12\ns_add_u32 s90, s90, {MB}\ns_sub_u32 s91, s90, 131072", "s_cmp_lt_u32 s33, 32\ns_cselect_b32 s91, 0x40000000, s91"]
        epi += ["v_lshl_add_u32 v21, v5, 6, v21", f"s_lshl_b32 s29, s22, 5\ns_add_u32 s29, s29, {T_CS+768}\nv_add_u32 v21, s29, v21"]
        epi += ["s_lshl_b32 s29, s24, 1\ns_add_u32 s29, s29, s22\ns_lshl_b32 s29, s29, 10", "v_lshl_add_u32 v18, v2, 4, s29"]
        epi += [f"v_mul_u32_u24 v17, {A2S}, v5", "v_and_b32 v34, 31, v2", "v_lshl_add_u32 v17, v34, 4, v17",
                "s_lshl_b32 s29, s24, 1\ns_add_u32 s29, s29, s22\ns_add_u32 s29, s29, 256", "s_lshl_b32 s29, s29, 9\nv_add_u32 v17, s29, v17"]
        epi += [f"s_mov_b32 s86, {f32(sc)}\ns_mov_b32 s87, {f32(sc)}"]

    A("WAITVM x0 w0\ns_barrier"); A(ts("RTl0") if C.FINE == 3 else ts("land0"))
    emit(A, rd_w(0, 0) + rd_x(0, 0) + sum((rd_w(0, n) for n in range(1, nblk)), []))
    A("WAITDS W0_0 X0_0")
    M, end = mfmas(0, 0); n = len(M)
    DS = lambda L, n, a: (L, 0, n - 3, 4) if C.GRID & 2 and 4 * len(L) <= n and a == 0 else (L, a, n - 6)
    emit(A, place(M, rs_b(0, end, n) + [(seq(SEQ[1]), 0, n - C.S0E[att])]))
    pf0 = C.PF0[att]; STJ = C.STJ[att]; SJ = STJ + 2; AJ = SJ + C.AD; assert C.CJ < 7 and AJ <= 7
    c0load = "buffer_load_dword v33, v34, s[48:51], 0 offen sc1"
    tbl = ["buffer_load_dwordx2 v[40:41], v30, s[16:19], s66 offen sc1", "buffer_load_dwordx2 v[42:43], v30, s[16:19], s66 offen offset:2048 sc1"]
    for j in range(16):
        if j < 2: pads(j + 1)
        if j < 15: A(f"WAITVM x{j+1} w{j+1}" + {SJ: " st", AJ: " clr", 12: " c0", 13: " tb"}.get(j, "") + (" hc" if att and j == 7 else "") + " | lgkmcnt(0)\ns_barrier")
        else: A("s_waitcnt lgkmcnt(0)\ns_barrier")
        A(ts(f"p{j}"))
        if j == 3 and C.FINE == 3: A(ts("RTp3"))
        if C.IDLE and 3 <= j: A(C.IDLE)
        M, end = mfmas(j, 1); n = len(M); S = []; D = []
        if j < 15: S += rs_a(j + 1, end)
        if j == SJ: M = M + stm
        if j == SJ + 1: S.append((st2, 2, 40))
        if j == 11:
            D.append((None, c0load + " ; @c0"))
            sd = [f"v_min_u32 v30, {nblk*32-1}, v0", "v_and_b32 v27, 0xe0, v0", "v_lshl_add_u32 v27, v4, 1, v27", "v_and_b32 v28, 1, v3", "v_add_u32 v27, v27, v28",
                  "s_lshl_b32 s29, s23, 8\nv_add_lshl_u32 v27, v27, s29, 3"]
            if att: sd += ["v_and_b32 v31, 31, v0", "s_lshl_b32 s29, s24, 5\ns_add_u32 s29, s29, 3072\nv_add_lshl_u32 v31, v31, s29, 1"]
            else: sd += ["s_mul_i32 s29, s24, 192\nv_add_lshl_u32 v31, v30, s29, 1", "v_and_b32 v28, 127, v0", "s_lshl_b32 s29, s26, 7\nv_add_lshl_u32 v28, v28, s29, 1"]
            sd += ["v_lshlrev_b32 v30, 3, v30", "v_lshlrev_b32 v32, 2, v0"]
            S.append((sd, 4, 40))
        if j == 12:
            S.append(([spin(slow, P + "_c0", c0load, "v_cmp_gt_u32 vcc, 0x100, v33")], 0, 1))
            D += [(None, t + " ; @tb") for t in tbl]
            D.append((None, "buffer_load_dwordx2 v[44:45], v27, s[16:19], 0 offen sc1 ; @tb"))
            if not att: D.append((None, "buffer_load_ushort v46, v28, s[52:55], 0 offen ; @tb"))
            D.append((None, "buffer_load_ushort v36, v31, s[72:75], 0 offen ; @tb"))
        if j == 13:
            sd = [spin(slow, P + "_cs", "\n".join(tbl), "v_and_b32 v33, v41, v43\nv_cmp_ne_u32 vcc, 1, v33"), "v_add_f32 v40, v40, v42", f"v_add_u32 v32, {TB}, v32",
                  "ds_write2st64_b32 v32, v44, v45 offset0:0 offset1:5", "v_lshlrev_b32 v36, 16, v36", "ds_write2st64_b32 v32, v40, v36 offset0:10 offset1:14"]
            if not att: sd += ["v_lshlrev_b32 v46, 16, v46", f"ds_write_b32 v32, v46 offset:{T_B2-TB}"]
            S.append((sd + setup_b, 1, n - 2))
        if att and j in (9, 10):
            sd = [f"v_mov_b32 v27, {f32(-1e30)}", "v_lshlrev_b32 v28, 2, v3", "v_sub_u32 v28, v28, v4",
                  "s_or_b32 s29, s23, s21\ns_cmp_lg_u32 s29, 0\ns_cselect_b64 s[64:65], -1, 0"]
            for q in range(2 * (j - 9), 2 * (j - 9) + 2):
                sel = lambda k: ["v_cndmask_b32 v33, v27, 0, vcc", f"v_accvgpr_write_b32 a{160+4*k+q}, v33"]
                sd += [f"v_add_u32 v32, {7+q}, v28", "v_cmp_gt_u32 vcc, 8, v32"] + sel(0) + ["v_cmp_lt_i32 vcc, 15, v32"] + sel(1)
                sd += ["s_and_b64 vcc, vcc, s[64:65]"] + sel(2)
            S.append((sd, 2, n - 4))
        sq = SEQ[2 + j] if 2 + j < len(SEQ) else (C.MRG if j < C.MJ else "xX:01234|wW:0123456").replace("X", str(j + 2)).replace("W", str(j + 3))
        D += seq(sq.split("|")[0])
        if j == 14: S.append((setup_a, 2, n - 4)); D += dma_b(1) + dma_b(2)
        if j == 15: S.append((epi, 0, n - 6)); D += dma_b(5) + dma_b(6) + (dma_b(7) if C.NPRE > 7 else [])
        S.append(DS(D, n, int(j == 12)))
        emit(A, place(M, S))
        if j < 15:
            A(f"WAITDS W{j+1}_0 X{j+1}_0")
            M, end = mfmas(j + 1, 0); n = len(M); S = rs_b(j + 1, end, n); D = []
            D += seq(sq.split("|")[1])
            if j == STJ: D += stl
            if j == SJ + 1:
                D = [(f"s_mov_b32 exec_lo, s38\ns_mov_b32 exec_hi, 0\ns_cbranch_execz {P}_ncl\nbuffer_store_dwordx2 v[32:33], v31, s[16:19], 0 offen sc1 ; @cond\n{P}_ncl:\ns_mov_b64 exec, -1", None),
                     (f"s_mov_b64 exec, {3 if att else 31}\nbuffer_store_dword v32, v29, s[16:19], 0 offen sc1 ; @clr\ns_mov_b64 exec, -1", None),
                     ("s_mov_b64 exec, 0x101\nbuffer_store_dwordx2 v[44:45], v30, s[16:19], 0 offen sc1 ; @clr\ns_mov_b64 exec, -1", None)] + D
            if att and j == C.CJ:
                D = [(None, f"buffer_store_dwordx4 v[48:51], v7, s[16:19], s32 offen offset:{1024*i} sc1 ; @hc") for i in range(4)] + D
            if j == SJ: S.append((st1, 4, n - 1))
            if j in (2, 4, 6, 8, 10): D += cph()
            if not att: D += [(None, f"buffer_load_dwordx4 {aR(208+4*i)}, v21, s[60:63], 0 offen offset:{2048*(i>>2)+64*(i&3)}") for i in range(8) if C.XJ[i] == j]
            if j in (AJ, AJ + 1):
                D.append((f"s_bfe_u32 s29, s2, 0x10004\ns_lshl_b32 s39, s20, 1\ns_add_u32 s29, s29, s39\ns_cmp_eq_u32 s29, {j-AJ}\ns_cbranch_scc0 {P}_na{j}\ns_mov_b64 exec, 1\n"
                          f"buffer_atomic_add v35, v34, s[48:51], 0 offen sc1 ; @cond\ns_mov_b64 exec, -1\n{P}_na{j}:", None))
            if j >= pf0: D += sum((pf(C.PFN * (j - pf0) + k) for k in range(C.PFN)), [])
            if j == 7: D.append((f"v_mov_b32 v37, 1\ns_mov_b32 exec_lo, s38\ns_mov_b32 exec_hi, 0\ns_cbranch_execz {P}_ncs\nbuffer_store_dwordx2 v[36:37], v31, s[16:19], 0 offen sc1 ; @cond\n{P}_ncs:\ns_mov_b64 exec, -1", None))
            if j == 13: D += [tuple(setup_d)] + dma_b(0)
            D += sum((cpf(P + "_epi", k) for k, jj in enumerate(C.CJS) if jj == j), [])
            D += sum((cpf(P + "_base", k + 1) for k, jj in enumerate(C.CJB) if jj == j), [])
            if j == 14: D += dma_b(3) + dma_b(4)
            S.append(DS(D, n, 0))
            emit(A, place(M, S))
    A(ts("g1end")); A(ts("RTg1")); A(ts("e0"))
    A(f"{P}_epi:")
    flag = lambda lane: f"s_mov_b64 exec, {1<<lane}\nbuffer_store_dword v35, v29, s[16:19], 0 offen sc1\ns_mov_b64 exec, -1"
    poll = lambda kind: f"buffer_load_dword v33, v20, s[16:19], {['0','s34','s32','s28'][kind]} offen sc1"
    ptest = "v_cmp_eq_u32 vcc, 0, v33"
    acc2 = lambda m, n: 64 + 32 * m + 4 * n
    G2A = 236 if att else 232; GT = 252 if att else 244
    g2_addr = lines(f"v_bfe_u32 v{GT}, v2, 2, 3\nv_and_b32 v{GT+1}, 3, v2\nv_lshlrev_b32 v{GT+2}, 11, v5\nv_lshl_add_u32 v{GT+2}, v{GT}, 7, v{GT+2}\nv_lshl_add_u32 v{GT+2}, v{GT+1}, 3, v{GT+2}\n"
                    f"v_lshrrev_b32 v{GT}, 1, v{GT}\nv_lshl_add_u32 v{G2A}, v{GT}, 5, v{GT+2}\nv_add_u32 v{G2A+4}, 0x10000, v{G2A}") + [f"v_xor_b32 v{G2A+4+c}, {32*c}, v{G2A+4}" for c in (1, 2, 3)]
    g2_addr2 = [f"v_add_u32 v{G2A+8+c}, 0x10000, v{G2A+4+c}" for c in range(4)] + [f"v_xor_b32 v{G2A+c}, {32*c}, v{G2A}" for c in (1, 2, 3)]
    def reads2(j, p):
        st = BS(j); w = G2A + 4 * (st >> 16); st &= 0xffff
        fr = [(f >> 1, p, f & 1) if j < NK - 1 else (f & 3, f >> 2, p) for f in range(8)]
        return [f"ds_read_b64_tr_b16 a[{32*p+4*f+2*h}:{32*p+4*f+2*h+1}], v{w+c} offset:{st + (2*kk+h)*4096 + ln*1024}" for f, (c, ln, kk) in enumerate(fr) for h in range(2)]
    def gelu8(t, rs, cs, b1):
        u = [22, 24, 26, 38]; L = []
        for i in range(4): L.append(f"v_pk_fma_f32 {Pn(u[i])}, {Pn(cs[i])}, {Pn(rs[i])}, {Pn(b1[i])} op_sel:[0,1,0] op_sel_hi:[1,1,1] neg_lo:[0,1,0] neg_hi:[0,1,0]")
        for i in range(4): L.append(f"v_pk_fma_f32 {Pn(t[i])}, {Pn(t[i])}, {Pn(rs[i])}, {Pn(u[i])} op_sel_hi:[1,0,1]")
        for i in range(4): L.append(f"v_pk_mul_f32 {Pn(u[i])}, {Pn(t[i])}, {Pn(t[i])}")
        for i in range(4): L.append(f"v_pk_fma_f32 {Pn(u[i])}, {Pn(u[i])}, s[64:65], v[0:1] op_sel_hi:[1,1,0]")
        for i in range(4): L.append(f"v_pk_mul_f32 {Pn(u[i])}, {Pn(u[i])}, {Pn(t[i])}")
        for i in range(8): L.append(f"v_exp_f32 v{u[i>>1]+(i&1)}, v{u[i>>1]+(i&1)}")
        for i in range(4): L.append(f"v_pk_add_f32 {Pn(u[i])}, {Pn(u[i])}, 1.0 op_sel_hi:[1,0]")
        for i in range(8): L.append(f"v_rcp_f32 v{u[i>>1]+(i&1)}, v{u[i>>1]+(i&1)}")
        for i in range(4): L.append(f"v_pk_mul_f32 {Pn(u[i])}, {Pn(u[i])}, {Pn(t[i])}")
        for i in range(4): L.append(cvt(t[0] + i, u[i]))
        return L
    start2 = ["WAITVM b0 b1\ns_barrier"] + reads2(0, 0)
    A0 = lda(0)
    if not att:
        for ln in range(3):
            A("s_waitcnt lgkmcnt(0)")
            for m in range(8):
                if m in (0, 4): A(ts(f"L{ln}m{m}"))
                d = acc(m, 2 * ln)
                G = gelu8([d, d + 2, d + 4, d + 6], [40 + 2 * m] * 4, [56, 58, 60, 62], [8, 10, 12, 14]); S = []
                if m == 7 and ln < 2: S.append((colreads(ln + 1), 6, 8))
                if ln == 0 and m == 2 and C.NPRE > 8: S.append((dma_b(8), 2, 40))
                if ln == 1 and m == 3: S.append((["WAITVM h0\n" + flag(0)], 2, 3))
                if ln == 2:
                    if m == 0: emit(A, g2_addr)
                    if m == 2: S.append(([poll(1) + " ; @p1"], 2, 3))
                    if m == 4: S.append((["WAITVM p1 h1\n" + flag(1) + "\n" + spin(slow, P + "_f1", poll(1), ptest)] + A0[:4], 30, 44))
                    if m == 5: S.append((A0[4:], 2, 44))
                    if m == 6: S.append(([f"s_mov_b32 s29, {T_B2}\nv_lshl_add_u32 v32, v3, 4, s29"] + [f"ds_read_b128 {R(acc2(1,n))}, v32 offset:{64*n}" for n in range(8)], 2, 30))
                    if m == 7: S.append((start2, 2, 40))
                emit(A, place(G, S))
                A(f"s_mov_b32 s29, {m*A2S + ln*2048}\nbuffer_store_dwordx4 {R(d)}, v18, s[12:15], s29 offen {C.ST_AUX} ; @h{ln}")
    else:
        hx = lambda op, so, base, tag: ([f"buffer_{op}_dwordx4 {R(base[b])}, v28, s[16:19], {so} offen offset:{1024*b} sc1 ; @{tag}" for b in range(2)]
                                        + [f"buffer_{op}_dwordx2 {Pn(base[2+i])}, v32, s[16:19], {so} offen offset:{2048+512*i} sc1 ; @{tag}" for i in range(4)])
        EXP_ = hx("store", "s90", [acc(6, 1), acc(7, 1)] + [acc(6 + b, 2 + db) + 2 for b in range(2) for db in range(2)], "hx")
        IMP_ = hx("load", "s91", [48, 52] + [acc(b, 2 + db) for b in range(2) for db in range(2)], "hi")
        hpoll = "buffer_load_dword v6, v34, s[16:19], 0 offen sc1"
        for m in range(7, -1, -1):
            A("s_waitcnt lgkmcnt(0)")
            if m: A(rowp(22 + 2 * ((m - 1) & 1), 30, 64 * (m - 1))); A(r4(m - 1))
            rs = Pn(22 + 2 * (m & 1)); G = []
            for part in (0, 1):
                src = acc(m, 0) + 8 * part; dst = acc(m, 0) + 4 * part; cs = [8, 40][part]
                for i in range(4): G.append(f"v_pk_mul_f32 {Pn(src+2*i)}, {Pn(src+2*i)}, {rs} op_sel_hi:[1,0]")
                for i in range(4): G.append(f"v_pk_fma_f32 {Pn(src+2*i)}, {Pn(cs+2*i)}, {rs}, {Pn(src+2*i)} op_sel:[0,1,0] op_sel_hi:[1,1,1] neg_lo:[0,1,0] neg_hi:[0,1,0]")
                for i in range(4): G.append(cvt(dst + i, src + 2 * i))
            r, mr = 48 + 8 * (m & 1), 52 + 8 * (m & 1); src = acc(m, 4)
            for i in range(4): G.append(f"v_pk_mul_f32 {Pn(src+2*i)}, {Pn(src+2*i)}, {Pn(r+2*(i&1))}")
            for i in range(4): G.append(f"v_pk_fma_f32 {Pn(src+2*i)}, {Pn(mr+2*(i&1))}, v[36:37], {Pn(src+2*i)} op_sel:[0,{i>>1},0] op_sel_hi:[1,{i>>1},1] neg_lo:[0,1,0] neg_hi:[0,1,0]")
            for i in range(4):
                db, h = i >> 1, i & 1
                for d in [acc(m, 2 + db) + 2 + h] + ([acc(m + 2, 2 + db) + h] if m < 6 else []): G.append(cvt(d, src + 2 * i))
            S = []
            if m == 4: A(ts("e4"))
            if m == 6: S.append(([EXP_[1], EXP_[4], EXP_[5]], 1, 36))
            if m == 5: S.append(([EXP_[0], EXP_[2], EXP_[3]], 1, 36))
            emit(A, place(G, S))
        A(ts("s"))
        mk = [8, 12, 40]
        mrd = lambda k: [f"v_accvgpr_read_b32 v{mk[k]+q}, a{160+4*k+q}" for q in range(4)]
        def smf(m): return [f"{MF} {R(acc(m,4))}, {R(48 + 4*m if m < 2 else acc(m-2,1))}, {R(acc(m,0))}, {R(mk[2] if m < 2 else mk[1])}",
                            f"{MF} {R(acc(m,5))}, {R(acc(m,1))}, {R(acc(m,0))}, {R(mk[0])}"]
        def smax(m):
            s = acc(m, 4); mx = 22 + 2 * (m & 1); q = acc(m, 0)
            L = [f"v_max3_f32 v{mx}, v{s}, v{s+1}, v{s+2}", f"v_max3_f32 v{mx+1}, v{s+3}, v{s+4}, v{s+5}", f"v_max3_f32 v{mx}, v{mx}, v{s+6}, v{s+7}", f"v_max_f32 v{mx}, v{mx}, v{mx+1}"]
            for sw in (16, 32): L += [f"v_mov_b32 v{mx+1}, v{mx}", f"v_permlane{sw}_swap_b32 v{mx}, v{mx+1}", f"v_max_f32 v{mx}, v{mx}, v{mx+1}"]
            L.append(f"v_mul_f32 v{mx}, s86, v{mx}")
            for i in range(4): L.append(f"v_pk_fma_f32 {Pn(s+2*i)}, {Pn(s+2*i)}, s[86:87], {Pn(mx)} op_sel_hi:[1,1,0] neg_lo:[0,0,1] neg_hi:[0,0,1]")
            for i in range(8): L.append(f"v_exp_f32 v{s+i}, v{s+i}")
            for i in range(4): L.append(cvt(q + i, s + 2 * i))
            return L
        def pvf(m):
            q = acc(m, 0)
            return [f"{MF} {R(acc(m,4))}, {R(acc(m,2))}, {R(q)}, 0", f"{MF} {R(acc(m,5))}, {R(acc(m,3))}, {R(q)}, 0", f"{MF} {R(acc(m,2))}, a[136:139], {R(q)}, 0"]
        def fin(m):
            s = acc(m, 4); l = acc(m, 2); q = acc(m, 0)
            L = [f"v_rcp_f32 v{l}, v{l}"]
            for i in range(4): L.append(f"v_pk_mul_f32 {Pn(s+2*i)}, {Pn(s+2*i)}, {Pn(l)} op_sel_hi:[1,0]")
            for i in range(4): L.append(cvt(q + i, s + 2 * i))
            L.append(f"s_mov_b32 s29, {m*A2S}\nbuffer_store_dwordx4 {R(q)}, v18, s[12:15], s29 offen {C.ST_AUX} ; @o")
            return L
        zp = lambda a, b: [x for p in zip(a, b) for x in p]
        two = lambda f, a: f(a) + f(a + 1)
        sm2 = lambda a: zp(smax(a), smax(a + 1))
        fin2 = lambda a: zp(fin(a)[:-1], fin(a + 1)[:-1])
        ost = lambda *ms: [fin(m)[-1] for m in ms]
        def half(mp, S):
            d = [164, 172, 188, 196][mp]
            G = [f"v_accvgpr_read_b32 v{d+i}, a{176+8*mp+i}" for i in range(8)] + gelu8([d, d + 2, d + 4, d + 6], [212 + 4 * mp] * 2 + [214 + 4 * mp] * 2, [228, 230, 228, 230], [248, 250, 248, 250])
            emit(A, place(G, S))
            A(f"v_permlane32_swap_b32 v{d}, v{d+2}\nv_permlane32_swap_b32 v{d+1}, v{d+3}")
            A(f"s_mov_b32 s29, {2*mp*A2S}\nbuffer_store_dwordx4 {R(d)}, v17, s[12:15], s29 offen {C.ST_AUX} ; @h2")
        ir = list(range(48, 56)) + [acc(b, 2 + db) + h for b in range(2) for db in range(2) for h in range(2)]
        itest = "\n".join([f"v_max3_u32 v6, v{ir[0]}, v{ir[1]}, v{ir[2]}", f"v_max3_u32 v34, v{ir[3]}, v{ir[4]}, v{ir[5]}"]
                          + [f"v_max3_u32 v{[6,34][k&1]}, v{[6,34][k&1]}, v{ir[6+2*k]}, v{ir[7+2*k]}" for k in range(5)] + ["v_max_u32 v6, v6, v34", "v_cmp_eq_u32 vcc, -1, v6"])
        emit(A, mrd(0) + mrd(1) + two(smf, 6) + mrd(2))
        emit(A, place(sm2(6), [(two(smf, 4), 22, 38)]))
        A(ts("s4")); emit(A, place(sm2(4) + fin2(6), [(two(pvf, 6), 1, 19), (two(smf, 2), 22, 38)]))
        emit(A, place(sm2(2) + fin2(4) + g2_addr, [(two(pvf, 4), 1, 19), ([rowp(212 + 2 * m, 30, 64 * m) for m in range(8)] + ["ds_read_b128 v[228:231], v21\nds_read_b128 v[248:251], v21 offset:1024"], 22, 50),
                                                  ([poll(1) + " ; @p1"] + IMP_, C.HP, 80)]))
        A(ts("h")); A("s_waitcnt lgkmcnt(0)")
        half(0, [(two(pvf, 2), 9, 27), (ost(6, 7, 4), 2, 46)])
        A(ts("h1")); emit(A, fin2(2))
        half(1, [(["WAITVM p1\n" + spin(slow, P + "_f1", poll(1), ptest)] + A0[:4], 0, 50)]); A(ts("h2"))
        half(2, [(A0[4:], 6, 50), (["WAITVM hi\n" + spin(slow, P + "_hx", "\n".join(x.split(";")[0] for x in IMP_), itest)] + two(smf, 0), 36, 48)])
        rest = [None] * 5 + ost(5, 2, 3)
        A(ts("h3"))
        emit(A, place(sm2(0), [(rest[5:], 8, 52)]))
        A(ts("h4")); half(3, [(two(pvf, 0), 9, 27), (start2, 12, 52)])
        emit(A, fin2(0) + ost(0, 1))

    def mfmas2(j, p):
        L = []; ms = list(range(4 if steps[j][5] else 2)); t = 0
        if j == NK - 1:
            return [f"{MF} {R(acc2(m,n))}, {aR(32*p+4*n)}, {aR(areg(j, p, m))}, {R(acc2(m,n))}" for n in range(8) for m in (ms if n % 2 == 0 else ms[::-1])]
        for c in range(4):
            n = 4 * p + c
            for m in (ms if n % 2 == 0 or j == 0 else ms[::-1]):
                d = R(acc2(m, n)); t += 1
                for q, kk in enumerate((0, 1) if t % 2 else (1, 0)):
                    cc = d if j or q else ("0" if att or m > 1 else R(acc2(1, n)))
                    L.append(f"{MF} {d}, {aR(32*p+8*c+4*kk)}, {aR(areg(j, kk, m))}, {cc}")
        return L
    def sub2(M, Rd, S, D):
        n = len(M); S = [(Rd, 0, n)] + S
        if D: S.append((D, 0, n, 4) if C.GRID & 1 and n >= 4 * len(D) else (D, 1, n + 1) if n >= 3 * len(D) else (D, 0, n - 1))
        S.append((["s_waitcnt lgkmcnt(8)"], n // 2 - 1, n // 2))
        emit(A, place(M, S))
    A("WAITVM a0 | lgkmcnt(0)"); A(ts("g2go")); A(ts("RTg2")); A(ts("g2go2"))
    A(f"{P}_g2:")
    first_need = {}
    for s, st in enumerate(steps): first_need.setdefault(st[3], s)
    bars = [j for j in range(NK - 1) if (j < NW and j % C.KBW == 0) or (j >= NW and (j - NW) % C.KB == 0)]
    checks = {first_need[k] - 4: k for k in first_need if k != 1}
    T = [0]
    for u in range(2 * NK): T.append(T[-1] + (32 if steps[u // 2][5] else 16))
    fixed = {2 * NW - 2 + i: x for i, x in enumerate(C.SFX)}
    UX = 2 * NK - 1 - C.XU; UY = UX - 2
    for u in range(UY if att else UX, 2 * NK): fixed[u] = 9
    ok = {k: 2 * (j + 1) + 1 for j, k in checks.items()}; ok[1] = 0
    QA = [(max(2 * aprev(x) + 2, ok[steps[x][3]]), T[2 * x], x) for x in range(1, NK) for _ in range(8 if steps[x][5] else 4)]
    QB = [(2 * next(b for b in bars if b >= x - NB + 1) + 1 if x >= NB else 0, T[2 * max(b for b in bars if b < x) + 1] - C.BM, x) for x in range(C.NPRE, NK) for _ in range(4)]
    plan = []; marg = 999
    for u in range(2 * NK - 1):
        cap = (8 if u == 0 else (C.CAP0 if u < C.UC else C.CAPW) if steps[u // 2][5] else C.CAPN) - fixed.get(u, 0); P_ = []
        while len(P_) < cap:
            c = [q for q in (QA, QB) if q and q[0][0] <= u]
            if not c: break
            q = min(c, key=lambda q: q[0][1]); it = q.pop(0); P_.append(("a" if q is QA else "b", it[2]))
            marg = min(marg, it[1] + (C.BM if q is QB else 0) - T[u + 1])
        plan.append(P_)
    assert not QA and not QB and marg >= 0, marg
    C.marg[att] = marg
    qa = []; qb = []
    def take(u):
        out = []
        for k, x in plan[u]:
            q = qa if k == "a" else qb
            if not q: q.extend(lda(x) if k == "a" else dma_b(x))
            out.append(q.pop(0))
        return out
    busy = {BS(x) for x in range(bars[-1], NK)}
    STG = next(r * 16384 for r in range(NB - 2) if not busy & {(r + x) * 16384 for x in range(3)})
    sub2(mfmas2(0, 0), reads2(0, 1), [(g2_addr2, 3, 28)], take(0))
    xpoll = "buffer_load_dword v33, v34, s[16:19], 0 offen sc1"
    ypoll = "buffer_load_dword v25, v26, s[16:19], 0 offen sc1"
    xl = lambda base, a, tag: [f"buffer_load_dwordx4 {R(base+4*i)}, v{a}, s[56:59], {'s34' if i>=4 else '0'} offen offset:{1024*(i&3)} sc1 ; @{tag}" for i in (0, 4, 1, 5, 2, 6, 3, 7)]
    gl = att and C.GLAST; XL = xl(128, 18 if gl else 13, "xl"); YL = xl(160, 13 if gl else 18, "yl")
    gate = lambda v, sr: f"v_cmp_eq_u32 vcc, 0, v{v}\ns_cmp_eq_u64 vcc, 0\ns_cselect_b32 s58, {16*MB}, 0\ns_mov_b32 s{sr}, s58"
    def extra(u, S, D):
        w = ""
        if u == UX - C.XD: S.append(([xpoll + " ; @px"], 0, 1))
        if u == UX: w += " px"; S.append(([gate(33, 64)], 0, 1))
        if u in (UX, UX + 1): D += [(None, x) for x in XL[4*(u-UX):4*(u-UX)+4]]
        if att:
            if u == UY - C.YD: S.append(([ypoll + " ; @py"], 0, 1))
            if u == UY: w += " py"; S.append(([gate(25, 65)], 0, 1))
            if u in (UY, UY + 1): D += [(None, x) for x in YL[4*(u-UY):4*(u-UY)+4]]
        if u in C.CG: S.append(([f"s_lshl_b32 s29, s20, 4\nv_add_lshl_u32 v{GT}, s29, v4, 7", f"s_mov_b32 s29, {P}_g2-{P}_base+{8192*(1+C.CG.index(u))}\nbuffer_load_dword v{GT+1}, v{GT}, s[76:79], s29 offen"], 26, 30))
        if u == 2 * NW + C.SWF: w += " sw"; S.append(([flag(1 if att else 4)], 0, 1))
        return w
    blocks = lambda p: [(0, 2 * p), (1, 2 * p), (1, 2 * p + 1), (0, 2 * p + 1)]
    ids = lambda p, base: [f"{MF} {R(acc2(m,n))}, {R(194-2*(n&1))}, {R(base+16*m+4*p)}, {R(acc2(m,n))}" for m, n in blocks(p)]
    def swp(p):
        V = []; D = []
        for m in range(2):
            d = acc2(2 + m, 2 * p); V += [cvt(d + q, d + 2 * q) for q in range(4)]
            D.append(f"buffer_store_dwordx4 {R(d)}, v12, s[56:59], {'s34' if m else '0'} offen offset:{1024*p} sc1 ; @sw")
        return V[:4] + [D[0]] + V[4:] + [D[1]]
    for j in range(NK - 1):
        S = []; bar = j in bars
        nxt = next((b for b in bars if b > j), NK - 1)
        w = "WAITVM" + (f" b{nxt}" if bar else "")
        if j - 1 in checks: w += f" p{checks[j-1]}"
        if j == 1: w += " h2 o" if att else " h2"
        D = take(2 * j + 1); w += extra(2 * j + 1, S, D)
        A((w + " | lgkmcnt(8)" if w != "WAITVM" else "s_waitcnt lgkmcnt(8)") + ("\ns_barrier" if bar else ""))
        if j in (0, 7) or j >= NW - 2: A(ts(f"q{j}"))
        M = mfmas2(j, 1)
        if j - 1 in checks: S.append(([spin(slow, f"{P}_g{checks[j-1]}", poll(checks[j-1]), ptest)], 0, 1))
        if j == 1: S.append(([flag(0 if att else 2)], 0, 1))
        if j in checks: S.append(([poll(checks[j]) + f" ; @p{checks[j]}"], 0, 1))
        if j == 2:
            sd = [f"s_lshl_b32 s29, s37, 13\ns_add_u32 s29, s29, {8*MB}\nv_lshl_add_u32 v12, v2, 4, s29", "v_xor_b32 v13, 0x10000, v12",
                  "s_lshr_b32 s29, s2, 1\ns_lshl_b32 s29, s29, 2\ns_add_u32 s29, s29, s20", "s_lshl_b32 s29, s29, 13\nv_lshl_add_u32 v18, v2, 4, s29",
                  f"s_xor_b32 s29, s99, 1024\nv_mov_b32 v{26 if gl else 34}, s29"]
            if att: sd += [f"v_mov_b32 v{34 if gl else 26}, s67"] + lines(xo_base) + ["v_lshrrev_b32 v10, 3, v2", "v_and_b32 v11, 7, v2", "v_lshl_add_u32 v21, v10, 12, s29", "v_lshl_add_u32 v21, v11, 4, v21"]
            S.append((sd, 2, 30))
        if j == 5:
            sd = ["v_and_b32 v22, 1, v4", "v_lshlrev_b32 v22, 4, v22", "v_mov_b32 v23, 0x3f80", "v_lshlrev_b32 v22, v22, v23", "v_lshrrev_b32 v23, 1, v4", "v_lshlrev_b32 v24, 1, v3", "v_sub_u32 v23, v23, v24",
                  "v_cmp_eq_u32 vcc, 0, v23", "v_mov_b32 v192, 0", "v_cndmask_b32 v194, 0, v22, vcc", "v_cmp_eq_u32 vcc, 1, v23", "v_mov_b32 v193, 0", "v_cndmask_b32 v195, 0, v22, vcc", "v_mov_b32 v196, 0", "v_mov_b32 v197, 0"]
            S.append((sd, 2, 32))
        if j == 6:
            if att: sd = ["v_mul_u32_u24 v8, 272, v4", "v_lshl_add_u32 v8, v3, 3, v8", f"s_mul_i32 s29, s20, 8704\ns_add_u32 s29, s29, {STG}\nv_add_u32 v8, s29, v8",
                          "v_mul_u32_u24 v9, 272, v10", "v_lshl_add_u32 v9, v11, 4, v9", "v_add_u32 v9, s29, v9"]
            else: sd = ["v_sub_u32 v23, v23, v24"] + [x for d in range(8) for x in (f"v_cmp_eq_i32 vcc, {(d&3) - 8*(d>>2)}, v23", f"v_cndmask_b32 v{200+d}, 0, v22, vcc")]
            S.append((sd, 2, 32))
        if j == NW - 1: S.append((swp(1), 4, 16) if C.SWM == 0 else (swp(0) + swp(1), 0, 20)); S.append((swp(2), 20, 32))
        sub2(M, reads2(j + 1, 0), S, D)
        M = mfmas2(j + 1, 0); S = []
        D = take(2 * j + 2); w = extra(2 * j + 2, S, D)
        A(f"WAITVM a{j+1}{w} | lgkmcnt(8)")
        if j == NW - 2 and C.SWM == 0: S.append((swp(0), 20, 32))
        if j == NW - 1: S.append((swp(3), 4, 16))
        sub2(M, reads2(j + 1, 1), S, D)
        if not att and j == 8:
            for n in range(8):
                for m in range(2): A(f"{MF} {R(acc2(m,n))}, {R(200+4*(n&1))}, {aR(208+16*m+4*(n>>1))}, {R(acc2(m,n))}")
    assert not (qa or qb)
    A(ts("RTg2e")); A(ts("g2end"))
    def late(nm, sr, pl, v, L, tail):
        A(f"s_cmp_eq_u32 s{sr}, 0\ns_cbranch_scc1 {P}_{nm}_slow\n{P}_{nm}done:")
        slow.append(f"{P}_{nm}_slow:\ns_mov_b32 s39, {C.SPIN}\ns_mov_b32 s58, {16*MB}\n{P}_{nm}_spin:\n{pl}\ns_waitcnt vmcnt(0)\nv_cmp_eq_u32 vcc, 0, v{v}\ns_cbranch_vccz {P}_{nm}_ok\ns_sleep {C.XSL}\n"
                    f"s_sub_u32 s39, s39, 1\ns_cmp_lg_u32 s39, 0\ns_cbranch_scc1 {P}_{nm}_spin\n{P}_{nm}_ok:\n" + "\n".join(L) + f"\n{tail}s_branch {P}_{nm}done")
    if att: late("y", 65, ypoll, 25, YL, f"s_cmp_eq_u32 s64, 0\ns_cbranch_scc1 {P}_ydone\ns_waitcnt vmcnt(0)\n")
    late("x", 64, xpoll, 33, XL, "")
    A(ts("xgot"))
    if att:
        A("s_mov_b32 s29, 0x8000\ns_waitcnt vmcnt(8)")
        for p in range(4): emit(A, ids(p, 160))
    A("s_waitcnt lgkmcnt(8)")
    reg = mfmas2(NK - 1, 1)
    def post(p):
        L = []
        for m, n in blocks(p):
            d = acc2(m, n); o = 160 + 16 * m + 4 * p
            if att: L += [cvt(d, d), cvt(d + 1, d + 2), f"ds_write_b64 v8, {Pn(d)} offset:{4352*m + 32*n}"]
            else:
                L += [cvt(o + 2 * (n & 1), d), cvt(o + 2 * (n & 1) + 1, d + 2)]
                if n & 1: L.append(f"buffer_store_dwordx4 {R(o)}, v18, s[56:59], {'s34' if m else '0'} offen offset:{1024*p} sc1")
        return L
    rd = lambda h: [f"ds_read_b128 {R(160+16*h+4*i)}, v9 offset:{2176*i + 128*h}" for i in range(4)]
    st = lambda h, i: f"buffer_store_dwordx4 {R(160+16*h+4*i)}, v21, s[52:55], {'s29' if i&1 else '0'} offen offset:{2048*(i>>1) + 128*h} {C.OUT_AUX}"
    for p in range(4):
        S = [([f"s_waitcnt vmcnt({6 - 2*p + (0 if att else 2*max(p-1, 0))})"], 3, 4)]
        if p == 0: S.append((["s_waitcnt lgkmcnt(0)"], 7, 8))
        if att and p == 3: S.append((rd(0), 0, 2))
        if p: S.append((post(p - 1), 2, 8))
        emit(A, place(reg[4*p:4*p+4] + ids(p, 128), S))
    if att:
        A("s_waitcnt lgkmcnt(4)"); emit(A, [st(0, 0), st(0, 1)])
        emit(A, post(3) + rd(1) + [st(0, 2), st(0, 3)])
        for i in range(4): A(f"s_waitcnt lgkmcnt({3-i})\n" + st(1, i))
    else:
        emit(A, post(3))
        A(ts("xs")); A("s_waitcnt vmcnt(0)\n" + flag(3))
    stamp_out(A)
    A(f"{P}_fin:\ns_endpgm")
    nl = 1 + att
    if C.PAD: A(f".p2align 6\n{P}_ws:\ns_branch {P}_ret2")
    for s in slow[-nl:][::-1] + slow[:-nl]: A("s_nop 7\n" + s)
    A(f"{P}_end:")

def build(path, **kw):
    for k, v in kw.items(): setattr(C, k, v)
    A = Asm(); name = NAME + "_kernel"
    A(f".text\n.globl {name}\n.p2align 8\n.type {name},@function\n{name}:")
    A("s_cmp_ge_u32 s2, 256\ns_cbranch_scc0 L_go\ns_endpgm\nL_go:")
    for r, o in ((60, 0), (8, 8), (68, 32), (16, 80), (40, 16), (44, 48), (72, 40), (48, 72)): A(f"s_load_dwordx2 s[{r}:{r+1}], s[0:1], {o}")
    C.names = []
    if C.FINE == 1: A("s_memtime s[98:99]")
    A(ts("RTstart"))
    A("v_lshrrev_b32 v3, 6, v0\nv_and_b32 v2, 63, v0\nv_readfirstlane_b32 s20, v3\nv_and_b32 v4, 15, v2\nv_lshrrev_b32 v3, 4, v2")
    A("s_lshr_b32 s29, s2, 3\ns_xor_b32 s29, s29, s2\ns_and_b32 s35, s29, 1\ns_cselect_b32 s30, 7, 11")
    A("s_getpc_b64 s[76:77]\nL_pc:\ns_mul_i32 s29, s35, Lg_base-La_base\ns_add_u32 s29, s29, La_base-L_pc\n" + add64(76, "s29") + "\ns_mov_b32 s78, Lg_end-Lg_base\ns_mov_b32 s79, 0x20000")
    if C.PAD: A("s_lshl_b32 s29, s20, 7\nv_lshl_add_u32 v24, v3, 9, s29\nbuffer_load_dword a141, v24, s[76:79], 0 offen\nv_lshl_add_u32 v25, v4, 12, s29\nbuffer_load_dword a141, v25, s[76:79], 0 offen")
    A("v_lshrrev_b32 v24, 3, v2\nv_and_b32 v25, 7, v2")
    A("s_bfe_u32 s23, s2, 0x20004\ns_bfe_u32 s3, s2, 0x10001\ns_lshl_b32 s29, s3, 2\ns_add_u32 s23, s23, s29" + ("\ns_mov_b32 s3, 0" if C.NOROT else ""))
    A("v_and_b32 v26, 6, v24\nv_xor_b32 v26, v25, v26\nv_lshlrev_b32 v17, 12, v24\nv_lshl_add_u32 v17, v26, 4, v17\ns_lshl_b32 s29, s20, 17\nv_add_u32 v16, s29, v17")
    A("s_lshr_b32 s38, s2, 6\ns_lshl_b32 s80, s38, 15\ns_and_b32 s39, s38, 2\ns_add_u32 s38, s38, s39\ns_lshl_b32 s39, s20, 3\ns_add_u32 s38, s38, s39\ns_lshl_b32 s84, s38, 10")
    A("s_lshl_b32 s64, s23, 19\ns_lshl_b32 s39, s3, 10\ns_add_u32 s64, s64, s39\n" + srd(4, 255 * 2048 + 128))
    for i in range(1, 4): A(f"s_xor_b32 s{80+i}, s80, {i<<15}\ns_xor_b32 s{84+i}, s84, {((i&1) + 4*(i>>1)) << 10}")
    A("s_lshr_b32 s24, s2, 6\ns_and_b32 s29, s2, 1\ns_lshl_b32 s29, s29, 2\ns_add_u32 s24, s24, s29\ns_and_b32 s29, s2, 4\ns_lshl_b32 s29, s29, 1\ns_add_u32 s24, s24, s29")
    A("s_lshl_b32 s29, s35, 10\ns_add_u32 s36, s29, 6144\ns_lshl_b32 s29, s35, 8\ns_add_u32 s31, s29, 128")
    A("v_and_b32 v26, 2, v24\nv_xor_b32 v25, v25, v26\ns_and_b32 s39, s23, 1\ns_lshl_b32 s29, s39, 2\nv_xor_b32 v25, s29, v25")
    A("s_lshl_b32 s29, s20, 1\ns_add_u32 s29, s29, s39\ns_lshl_b32 s29, s29, 3\nv_add_u32 v26, s29, v24\nv_mul_u32_u24 v26, s36, v26\nv_lshl_add_u32 v18, v25, 4, v26")
    A("s_xor_b32 s29, s29, 8\nv_add_u32 v26, s29, v24\nv_mul_u32_u24 v26, s36, v26\nv_xor_b32 v25, 4, v25\nv_lshl_add_u32 v19, v25, 4, v26")
    A("s_mul_i32 s65, s3, s36\ns_lshl_b32 s65, s65, 9\ns_mul_i32 s31, s31, s24\ns_add_u32 s65, s65, s31")
    A(f"s_mul_i32 s10, s36, 63\ns_lshl_b32 s29, 2, s30\ns_add_u32 s10, s10, s29\ns_add_u32 s10, s10, 128\ns_mov_b32 s11, 0x20000\ns_mul_i32 s27, s20, 7168\ns_add_u32 s27, s27, {WB}\ns_mul_i32 s39, s39, 3072\ns_and_b32 s38, s23, 2")
    for k in range(3):
        A(f"s_cmp_eq_u32 s38, 0\ns_cselect_b32 s29, {k}, {(k+2)%3}\ns_lshl_b32 s{94+k}, s29, s30\ns_lshl_b32 s29, s29, 10\ns_add_u32 s29, s29, s27")
        A(f"s_add_u32 s{88+k}, s29, s39\ns_sub_u32 s29, s29, s39\ns_add_u32 s{91+k}, s29, 3072")
    if C.FINE == 1: A("s_memtime s[66:67]")
    A("s_mov_b32 m0, s84\ns_waitcnt lgkmcnt(0)")
    if C.FINE == 1:
        A("v_writelane_b32 v1, s100, 0\nv_writelane_b32 v1, s98, 1\ns_mov_b32 s100, s66"); C.names += ["t0", "pre"]
    A(ts("karg"))
    A("s_add_u32 s4, s60, s64\ns_addc_u32 s5, s61, 0")
    xd = lambda i: f"buffer_load_dwordx4 v16, s[4:7], s{80+i} offen lds\nbuffer_load_dwordx4 v16, s[4:7], s{80+i} offen offset:2048 lds"
    A(xd(0))
    A("s_mov_b32 m0, s88\ns_cmp_eq_u32 s35, 0\ns_cselect_b32 s8, s8, s68\ns_cselect_b32 s9, s9, s69\n" + add64(8, "s65"))
    for k in range(3):
        A((f"s_mov_b32 m0, s{88+k}\n" if k else "") + f"buffer_load_dwordx4 v18, s[8:11], s{94+k} offen lds")
    A("s_mov_b32 m0, s85\n" + xd(1))
    A("s_lshr_b32 s21, s20, 1\ns_and_b32 s22, s20, 1\ns_mov_b32 s33, 0x3f803f80")
    A("s_bfe_u32 s25, s2, 0x20003\ns_and_b32 s29, s2, 4\ns_add_u32 s25, s25, s29\ns_lshl_b32 s25, s25, 1\ns_add_u32 s25, s25, s3\ns_lshr_b32 s26, s2, 5".replace("s_add_u32 s25, s25, s3", "s_bfe_u32 s29, s2, 0x10001\ns_add_u32 s25, s25, s29"))
    C.common = C.names
    A("s_cmp_eq_u32 s35, 0\ns_cbranch_scc0 Lg_base\ns_branch La_base")
    role(A, True)
    role(A, False)
    A.lines = resolve_ds(resolve_vm(A.lines))
    if C.EXP:
        reg = None; L = []; nb = 0
        for l in A.lines:
            if l.endswith("_ret1:"): reg = "g1"
            if l.endswith("_epi:"): reg = "epi"
            if l.endswith("_g2:"): reg = "g2"
            if l.endswith("_fin:"): reg = None
            k = False
            if reg == "g2" and C.EXP & 4 and l.startswith("ds_read_b64_tr"): k = True
            if reg == "g2" and C.EXP & 8 and l.startswith("buffer_load_dwordx4") and ("v16" in l or "v19" in l): k = True
            if reg == "g1" and C.EXP & 16 and l.startswith("ds_read") and " a[" in l: k = True
            if reg == "g1" and C.EXP & 32 and l.endswith("lds") and "s31" not in l: k = True
            if reg == "epi" and C.EXP & 64 and l.startswith(("v_exp", "v_rcp", "v_pk_")): continue
            if reg == "g2" and C.EXP & 128 and l.startswith("v_mfma"): l = "s_nop 3"
            if reg == "g1" and C.EXP & 256 and l.startswith("v_mfma"): l = "s_nop 3"
            L.append("s_nop 0" if k else l)
        A.lines = L
    body = A.finish()
    hdr = HEADER + "; @launch grid=(256,1,1) block=(256,1,1) lds=163840\n" + (f"; FINE0 {' '.join(C.allnames[True])}\n; FINE1 {' '.join(C.allnames[False])}\n" if C.FINE else "") + '.amdgcn_target "amdgcn-amd-amdhsa--gfx950"\n'
    if C.PAD: body, C.npads = add_pads(hdr, body, [("La_base", "La_fin", "La", "La_ret"), ("Lg_base", "Lg_fin", "Lg", "Lg_ret")])
    open(path, "w").write(hdr + body + '.section .rodata,"a"\n.p2align 6\n' + kdesc(name))
    return A.npad

if __name__ == "__main__":
    print("pads", build("v6.s"))
    build("v6_fine.s", FINE=True)
    print({k: len(v) for k, v in C.allnames.items()}, C.npads, C.marg)
```

```python
import sys, math
from asmlib import *
NAME = "parallel_sum__sliding_local_dilated__dense_activation_gelu__prompt"
MB = 1 << 20
WS_A2 = 8 * MB; WS_XCH = 32 * MB; WS_ST = 48 * MB
O_ST, O_CS, O_FL, O_XF, O_YF = 0, 16384, 262144, 262144 + 32768, 262144 + 65536
A2S = 144 * 1024
class C:
    FINE = False; PROBE = None; names = []; allnames = {}
    NFL = 0; A_AUX = "sc1"; ST_AUX = "sc1"; OUT_AUX = "sc1"; PF = True; CPF = True; CPH = False; PAD = True; ROT = True; PRE = 0; STJ = (1, 1); PF0 = (8, 6); NOROT = False
    SPIN = 1 << 16; DA = 4; NW = (14, 14); BM = 0; marg = {}; CAPW = 7; SWF = 4; GLAST = True; XU = (4, 3); GF = (0, 3, 6); YCHK = 3; CAPN = 3; NPRE = 7; NA0 = (2, 2); RP = None; XCHK = 2; XSL = 1; XD = (3, 3); YD = 3; KB = 2; KBW = 2; GRID = 3; RE = 6; CSH = (1, 0, 0); XST = 9216; A2P = 512; HS_AUX = 'sc1'; FS = 8; XS_ = 4; YS_ = 5; FCL = False; OWN = True; QP = True; KO = 0; BMIX = None; WX = 0; PF2 = True; XAUX = ''; WAUX = ''; HAUX = ''; PAUX = ''; HXP = 0; C0 = '0'; SFX = (0, 9, 9, 9); CAP0 = 6; UC = 14; SWM = 1; CJS = (12, 12, 13); CJB = (); CG = (); SPL = (0, 0.4, 0.7, 1); HF = 2; OE = 2; HP = 8; CJ = 5; AD = 3; CF = True; HC = 2; S0E = (8, 20); WS = True; MJ = 0; MRG = "xX:04 wW:016 xX:123|wW:2345"; SEQ = (("w0:345 x0:23 w1:01 x1:0123", "w1:2345 w2:012345"), ("w0:6345 x0:23 x1:0123 w1:601", "w1:2345 w2:601", "x2:0123 w2:2345|w3:6012345")); IDLE = None; XJ = (8, 8, 9, 9, 10, 10, 11, 11); PFL = ((), tuple(range(10, 18)) + tuple(range(10))); PFN = 4; D0 = 1; QS = 12; B0 = -2.0; EXP = 0; XR = 1; SM = 6.0
XS = lambda s: s * 34816
WB = 69632
TB = 155648
T_CS, T_B1, T_B2 = TB + 2560, TB + 3584, TB + 4608
NB = 9
BS = lambda j: ((j + 6) % NB) * 16384
R = lambda d: f"v[{d}:{d+3}]"
aR = lambda d: f"a[{d}:{d+3}]"
Pn = lambda r: f"v[{r}:{r+1}]"
MF = "v_mfma_f32_16x16x32_bf16"
cvt = lambda d, s: f"v_cvt_pk_bf16_f32 v{d}, v{s}, v{s+1}"
srd = lambda r, n: f"s_mov_b32 s{r+2}, {n}\ns_mov_b32 s{r+3}, 0x20000"
add64 = lambda r, x: f"s_add_u32 s{r}, s{r}, {x}\ns_addc_u32 s{r+1}, s{r+1}, 0"
sub64 = lambda r, x: f"s_sub_u32 s{r}, s{r}, {x}\ns_subb_u32 s{r+1}, s{r+1}, 0"

HEADER = """; out = x + attn(LN(x)) @ wo + gelu(LN(x) @ w1 + b1) @ w2 + b2      (S=2048, D=1024, F=3584, 32 heads, window 8, dilation 2)
;    epilogue: rstd*(acc - mean*colsum(W)) with row statistics and column sums computed in the loop and handed over in ws.
"""

def ts(name):
    if not C.FINE or (C.FINE == 2 and name not in ("RTstart", "RTend", "x")) or (C.FINE == 3 and name[:2] != "RT" and name != "x"): return ""
    i = len(C.names); C.names.append(name)
    t = f"s_waitcnt lgkmcnt(0)\nv_writelane_b32 v1, s100, {i-1}\n" if i else ""
    return t + ("s_memrealtime s[100:101]" if name.startswith("RT") else "s_memtime s[100:101]")
def stamp_out(A):
    if not C.FINE: return
    A(ts("st")); A("s_waitcnt vmcnt(0)"); A(ts("end")); A(ts("RTend")); A(ts("x")); C.names.pop()
    if C.PROBE:
        a, b, wg = C.PROBE; C.uid = getattr(C, "uid", 0) + 1; u = C.uid
        if a in C.names and b in C.names:
            A(f"s_waitcnt lgkmcnt(0)\ns_cmp_lg_u32 s37, {wg*4}\ns_cbranch_scc1 Lpr{u}e\nv_readlane_b32 s4, v1, {C.names.index(b)}\nv_readlane_b32 s5, v1, {C.names.index(a)}\ns_memrealtime s[8:9]\ns_sub_u32 s4, s4, s5\n{'s_lshl_b32 s4, s4, 2' if a.startswith('RT') else 's_lshr_b32 s4, s4, 2'}\ns_add_u32 s4, s4, 1000\ns_min_u32 s4, s4, 100000")
            A(f"Lpr{u}:\ns_memrealtime s[6:7]\ns_waitcnt lgkmcnt(0)\ns_sub_u32 s6, s6, s8\ns_cmp_lt_u32 s6, s4\ns_cbranch_scc1 Lpr{u}\nLpr{u}e:")
        return
    A("s_load_dwordx2 s[4:5], s[0:1], 80\ns_waitcnt lgkmcnt(0)\n" + add64(4, WS_ST + 0x40000))
    A("s_lshl_b32 s6, s2, 2\ns_add_u32 s6, s6, s20\ns_lshl_b32 s6, s6, 8\nv_lshl_add_u32 v0, v2, 2, s6\nglobal_store_dword v0, v1, s[4:5]")
def emit(A, L):
    for d in L:
        if isinstance(d, str): A(d)
        else:
            for x in d:
                if x: A(x)
def lines(s): return [l for l in s.split("\n") if l.strip()]

def spin(slow, name, loads, test):
    slow.append(f"{name}_slow:\ns_mov_b32 s39, {C.SPIN}\n{name}_spin:\ns_sleep 8\n{loads}\ns_waitcnt vmcnt(0)\n{test}\ns_cbranch_vccz {name}_back\n"
                f"s_sub_u32 s39, s39, 1\ns_cmp_lg_u32 s39, 0\ns_cbranch_scc1 {name}_spin\ns_branch {name}_back")
    return f"{test}\ns_cbranch_vccnz {name}_slow\n{name}_back:"

def g2_steps(att):
    f = abs(C.NFL) // 2; no = C.NW[att] - 12
    pair = lambda i, lo, hi: int((i ^ 1) in range(lo, hi))
    wide = [("h", 3 * i + l, (3, 93, 12), 1 + l, i & 1, True) for l in range(3) for i in range(4)]
    wide += [("o", i, (pair(i, 0, no), 93, 4), 0, i & 1, True) for i in range(no)]
    nar = [("o", 8 * b + i, (pair(i, no, 4), 92, 4), 0, i & 1, False) for b in range(2) for i in range(no, 4)]
    nar += [("h", 48 + u, (pair(u, f, 4), 92, 4), 0, u & 1, False) for u in range(f, 4)]
    if f and att == (C.NFL < 0): nar += [("h", 48 + u + 4 * b, None, 0, 0, False) for u in range(f) for b in range(2)]
    return wide + nar

def role(A0_, att):
    A = A0_
    P = "La" if att else "Lg"
    slow = []
    stride = 6144 if att else 7168
    nblk = 7 if att else 6
    A("VMRESET")
    C.names = list(C.common); C.allnames[att] = C.names
    A("VMFAKE x0 4\nVMFAKE w0 3")
    SEQ = C.SEQ[att]
    base = {"x": 0, "w": 0, "h": 0}; left = {}
    def adv(k, j, n, reg, inc, wrap):
        left[(k, j)] = left.get((k, j), n) - 1; t = []
        while left.get((k, base[k])) == 0:
            t.append(add64(reg, inc) + ("\n" + sub64(reg, wrap) if base[k] in (7 - C.KO, 15 - C.KO) and base[k] < 15 else "")
                     + (f"\ns_sub_u32 {wrap}, {16*inc}, {wrap}" if base[k] == 7 - C.KO else "")); base[k] += 1
        return "\n".join(t) or None
    def px(j, i):
        d = 128 * (j - base["x"]); assert d == 0
        if i == 4: return [(f"s_add_u32 m0, s28, {XS(j%2) - d}", f"buffer_load_dwordx4 v17, s[4:7], 0 offen offset:{d} {C.XAUX} lds ; @x{j}", adv("x", j, 4, 4, 128, "s64"))]
        assert XS(j % 2) >= d
        return [(f"s_add_u32 m0, s{84+i}, {XS(j%2) - d}", f"buffer_load_dwordx4 v16, s[4:7], s{80+i} offen offset:{d} {C.XAUX} lds ; @x{j}"),
                (None, f"buffer_load_dwordx4 v16, s[4:7], s{80+i} offen offset:{d+2048} {C.XAUX} lds ; @x{j}", adv("x", j, 4, 4, 128, "s64"))]
    def pw(j, k):
        if k == 6:
            d = (j - base["h"]) * 64 * 7168
            return [(f"s_add_u32 m0, s27, {(j%3)*28672 + 6144}" + (f"\ns_mov_b32 s31, {d}" if d else ""), f"buffer_load_dwordx4 v20, s[68:71], {'s31' if d else '0'} offen {C.HAUX} lds ; @w{j}", adv("h", j, 1, 68, 64 * 7168, "s97"))]
        d = (j - base["w"]) * 64 * stride; assert d == 0
        return [(f"s_add_u32 m0, s{88+k}, {(j%3)*28672}" + (f"\ns_add_u32 s31, s{94+k%3}, {d}" if d else ""), f"buffer_load_dwordx4 v{18+k//3}, s[8:11], s{31 if d else 94+k%3} offen {C.WAUX} lds ; @w{j}", adv("w", j, 6, 8, 64 * stride, "s65"))]
    def seq(spec):
        L = []
        for t in spec.replace(".", ":").split():
            k, j, ps = t[0], int(t[1:t.index(":")]), t[t.index(":") + 1:]
            if j > 15: continue
            for p in map(int, ps):
                if p < (4 if k == "x" else 6 + att): L += (px if k == "x" else pw)(j, p)
        return L
    seq("x0:01 w0:012")
    A(f".p2align 12\n{P}_base:\ns_load_dwordx2 s[52:53], s[0:1], {64 if att else 56}")
    A("v_lshrrev_b32 v5, 5, v2\nv_and_b32 v6, 3, v2")
    for i in range(4): A(f"v_accvgpr_write_b32 a{136+i}, s33")
    if att:
        A("v_lshrrev_b32 v24, 2, v2\nv_xor_b32 v25, v5, v6\ns_lshl_b32 s29, s20, 4\nv_add_u32 v24, s29, v24\nv_mul_u32_u24 v24, 7168, v24\nv_lshl_add_u32 v20, v25, 4, v24")
        A(f"s_mul_i32 s39, s3, {512*7168}\ns_xor_b32 s38, s24, {C.HXP}\ns_lshl_b32 s38, s38, 6\ns_add_u32 s39, s39, s38\ns_add_u32 s39, s39, {6144 + C.KO*64*7168}\n" + add64(68, "s39") + "\n" + srd(68, 63 * 7168 + 64))
    A(f"s_mov_b32 s78, {P}_end-{P}_base")
    A("s_lshr_b32 s29, s2, 4\ns_lshl_b32 s29, s29, 2\ns_add_u32 s29, s29, s20\ns_lshl_b32 s29, s29, 10\nv_and_b32 v24, 7, v2\nv_lshl_add_u32 v23, v24, 7, s29")
    if C.CPF: A("buffer_load_dword a141, v23, s[76:79], 0 offen")
    A(f"s_lshl_b32 s64, s3, 11\ns_mul_i32 s65, s3, {1024*stride}\ns_mul_i32 s97, s3, {1024*7168}")
    S0 = seq(SEQ[0]); n0 = 7 + att
    A_, U = A, []
    def A(t):
        for l in lines(t):
            if U and l.startswith(("s_addc", "s_subb", "s_cselect")): U[-1] += "\n" + l
            else: U.append(l)
    A("v_and_b32 v27, 6, v4\nv_xor_b32 v27, v27, v3\nv_lshlrev_b32 v27, 4, v27\nv_lshl_add_u32 v28, v4, 7, v27")
    A("s_lshl_b32 s29, s21, 14\nv_add_u32 v8, s29, v28\nv_xor_b32 v9, 64, v8")
    xo_base = "s_lshl_b32 s29, s25, 2\ns_add_u32 s29, s29, s20\ns_lshl_b32 s29, s29, 16\ns_lshl_b32 s39, s26, 8\ns_add_u32 s29, s29, s39"
    if not att: A(xo_base + "\nv_lshl_add_u32 v21, v4, 12, s29\nv_lshl_add_u32 v21, v3, 4, v21")
    A("v_bfe_u32 v27, v2, 2, 2\nv_and_b32 v28, 1, v3")
    A(f"v_mul_u32_u24 v29, 7168, v5\nv_add_u32 v29, {WB}, v29")
    A("v_mul_u32_u24 v23, 3072, v28\nv_add_u32 v23, v29, v23\nv_lshl_add_u32 v23, v27, 7, v23\nv_lshl_add_u32 v23, v6, 3, v23")
    A("v_lshrrev_b32 v24, 1, v27\nv_lshl_or_b32 v24, v28, 1, v24\ns_lshl_b32 s29, s22, 1\nv_xor_b32 v24, s29, v24")
    A("v_lshl_add_u32 v10, v24, 5, v23\nv_xor_b32 v11, 32, v10\nv_add_u32 v13, 57344, v10\nv_add_u32 v14, 57344, v11")
    A("s_and_b32 s38, s23, 3\ns_lshl_b32 s38, s38, 1\ns_add_u32 s38, s38, s21")
    A("s_min_u32 s39, s38, 5\ns_and_b32 s29, s39, 1\ns_lshl_b32 s29, s29, 5\nv_xor_b32 v23, s29, v10\ns_lshr_b32 s29, s39, 1\ns_lshl_b32 s29, s29, 10\nv_add_u32 v23, s29, v23\nv_add_u32 v24, 512, v23")
    A("s_and_b32 s29, s39, 6\ns_add_u32 s29, s29, s22\ns_lshl_b32 s29, s29, 1\ns_and_b32 s39, s39, 1\ns_add_u32 s29, s29, s39\ns_lshl_b32 s29, s29, 4\nv_add_u32 v31, s29, v4")
    if att:
        A("v_lshl_add_u32 v25, v28, 3, v27\nv_lshl_add_u32 v25, v25, 6, v29\nv_add_u32 v25, 6144, v25")
        A("v_and_b32 v26, 2, v6\nv_add_u32 v26, s22, v26\nv_xor_b32 v26, v26, v28\nv_lshl_add_u32 v25, v26, 4, v25")
        A("v_and_b32 v26, 1, v6\nv_lshl_add_u32 v12, v26, 3, v25\nv_add_u32 v15, 57344, v12\nv_add_u32 v25, 256, v12")
        A("v_and_b32 v26, 8, v4\nv_add_u32 v26, v26, v4\ns_lshl_b32 s29, s22, 3\ns_add_u32 s29, s29, 192\nv_add_u32 v26, s29, v26")
        A("s_cmp_ge_u32 s38, 6\ns_cselect_b64 vcc, -1, 0\nv_cndmask_b32 v23, v23, v12, vcc\nv_cndmask_b32 v24, v24, v25, vcc\nv_cndmask_b32 v31, v31, v26, vcc")
    A("v_add_u32 v25, 57344, v23\nv_add_u32 v26, 57344, v24")
    A(f"s_lshl_b32 s66, s24, 12\ns_add_u32 s66, s66, {O_CS + (0 if att else 65536)}\ns_lshr_b32 s29, s23, 2\ns_lshl_b32 s29, s29, 11\ns_add_u32 s29, s29, s66\nv_lshl_add_u32 v31, v31, 3, s29")
    A(f"s_cmp_lt_u32 s38, {nblk}\ns_cselect_b32 s38, 0xffff, 0")
    KS = 32 << C.FS; assert C.FS <= 8 and C.XS_ <= 6 and C.YS_ <= 6
    A(f"s_lshl_b32 s29, s23, 2\ns_lshr_b32 s39, s24, 2\ns_add_u32 s29, s29, s39\ns_lshl_b32 s29, s29, 2\ns_and_b32 s39, s24, 3\ns_add_u32 s29, s29, s39\ns_lshl_b32 s29, s29, 2\ns_add_u32 s29, s29, s20\ns_lshl_b32 s29, s29, {C.FS-4}")
    A(f"s_lshr_b32 s67, s2, 1\ns_lshl_b32 s67, s67, 2\ns_add_u32 s67, s67, s20\ns_lshl_b32 s67, s67, {C.XS_}\ns_add_u32 s67, s67, {O_XF}")
    if att: A(f"s_add_u32 s29, s29, {O_FL}\nv_mov_b32 v29, s29")
    else: A(f"s_add_u32 s29, s29, {O_FL + KS}\nv_lshl_add_u32 v29, v6, {C.FS+5}, s29\nv_writelane_b32 v29, s67, 3")
    A(f"s_lshl_b32 s99, s2, 2\ns_add_u32 s99, s99, s20\ns_lshl_b32 s99, s99, {C.YS_}\ns_add_u32 s99, s99, {O_YF}\nv_writelane_b32 v29, s99, {1 if att else 4}")
    if att:
        A(f"s_lshl_b32 s29, s23, 1\ns_add_u32 s29, s29, s21\ns_lshl_b32 s29, s29, 4\ns_add_u32 s29, s29, s24\ns_lshl_b32 s29, s29, 1\ns_add_u32 s33, s29, s22\ns_lshl_b32 s32, s33, 12\ns_add_u32 s32, s32, {MB}")
        for i in range(4): A(f"v_mov_b32 v{48+i}, -1")
    A("s_mov_b32 s12, s16\ns_mov_b32 s13, s17\ns_mov_b32 s56, s16\ns_mov_b32 s57, s17")
    for r, n in ((16, 4 * MB), (40, 2 * MB), (44, 7 * MB), (48, 256), (52, 4 * MB if att else 2048), (60, 4 * MB), (72, 7168), (56, 16 * MB)): A(srd(r, n))
    A(add64(56, WS_XCH))
    A("s_lshl_b32 s29, s2, 2\ns_add_u32 s37, s29, s20\ns_lshl_b32 s29, s37, 1\nv_lshrrev_b32 v30, 3, v4\nv_add_u32 v30, s29, v30\nv_and_b32 v27, 7, v2\nv_lshl_add_u32 v27, v3, 3, v27\nv_lshlrev_b32 v27, 4, v27\nv_lshl_add_u32 v27, v30, 11, v27")
    A(f"v_lshlrev_b32 v7, 4, v2\nv_mov_b32 v35, 1\nv_and_b32 v34, {C.CSH[0]-1}, v2\nv_lshlrev_b32 v34, {C.CSH[1]}, v34\nv_mov_b32 v32, 0\nv_mov_b32 v33, 0\nv_lshlrev_b32 v30, 3, v30\ns_lshl_b32 s29, s20, 4\nv_add_lshl_u32 v6, s29, v4, 7")
    A("s_lshr_b32 s29, s2, 1\ns_lshl_b32 s29, s29, 2\ns_add_u32 s29, s29, s20\ns_lshl_b32 s35, s29, 10\ns_lshr_b32 s29, s29, 7\ns_mul_i32 s29, s29, 1441792\ns_add_u32 s36, s35, s29")
    if C.PF2 and att:
        A("s_lshr_b32 s29, s35, 15\ns_sub_u32 s29, s29, 11\ns_max_i32 s29, s29, 0\ns_lshl_b32 s29, s29, 14\ns_sub_u32 s35, s35, s29\ns_and_b32 s29, s24, 7\ns_cmp_eq_u32 s29, 3\ns_cselect_b32 s35, 0x40000000, s35")
    A("s_waitcnt lgkmcnt(0)")
    A = A_; nu = len(U) - 1; one = lambda L: ["\n".join(x for x in d if x) for d in L]
    emit(A, place(U, [(one(S0[:n0]), int(nu * C.SPL[0]), int(nu * C.SPL[1])), (one(S0[n0:]), int(nu * C.SPL[2]), int(nu * C.SPL[3]))]))
    def pads(c):
        if not C.PAD: return
        k0 = [1, 5, 13][c]
        A("s_mov_b64 exec, 0")
        for w in range(3): A(f"s_cmp_eq_u32 s20, {w}\ns_cbranch_scc1 {P}_pad{k0+w}")
        A(f"s_branch {P + '_ws' if c == 2 and C.WS else P + '_pad' + str(k0 + 3)}\n{P}_ret{c}:\ns_mov_b64 exec, -1")
    stl = [(None, f"buffer_load_dwordx4 {aR(144+4*i)}, v27, s[60:63], 0 offen offset:{512*i} ; @st") for i in range(4)]
    A(ts("issued")); pads(0)

    acc = lambda m, n: 64 + 4 * (6 * m + n)
    xf = lambda h, i, kk: 32 * h + 8 * i + 4 * kk
    wf = lambda n, kk: 64 + 8 * n + 4 * kk
    def wofs(j):
        u = j % 3; return (u == 2), (0 if u == 2 else u * 28672)
    def rd_w(j, n):
        hiw, wo = wofs(j); wreg = 13 if hiw else 10; L = []
        for kk in range(2):
            for h in range(2):
                b = wf(n, kk) + 2 * h
                L.append(f"ds_read_b64_tr_b16 a[{b}:{b+1}], v{wreg+(n&1)} offset:{wo + kk*14336 + h*512 + (n>>1)*1024} ; @W{j}_{n}" if n < 6 else
                         f"ds_read_b64_tr_b16 a[{b}:{b+1}], v{wreg+2} offset:{wo + kk*14336 + h*256} ; @W{j}_{n}")
        return L
    rd_x = lambda j, h: [f"ds_read_b128 {aR(xf(h,i,kk))}, v{8+kk} offset:{XS(j%2) + (4*h+i)*2048} ; @X{j}_{h}" for i in range(4) for kk in range(2)]
    def rd_e(j):
        hiw, wo = wofs(j); L = []
        if j < 8: L += [f"ds_read_b64_tr_b16 a[{128+4*kk+2*h}:{129+4*kk+2*h}], v{(25 if hiw else 23)+h} offset:{wo + kk*14336}" for kk in range(2) for h in range(2)]
        return L
    def mfmas(j, h):
        L = []; end = []; t = [0]
        def chain(d, fa, fb):
            ks = (0, 1) if t[0] % 2 == 0 else (1, 0); t[0] += 1
            for q, kk in enumerate(ks): L.append(f"{MF} {d}, {aR(fa(kk))}, {aR(fb(kk))}, {(C.C0 if d != 'v[36:39]' else '0') if j == 0 and q == 0 else d}")
        for n in range(nblk):
            W = lambda kk: wf(n, kk)
            rows = [0, 1, 2, 3]
            for i in (rows if n % 2 == 0 else rows[::-1]):
                m = 4 * h + i
                d = R(48 + 4 * (n - 2)) if i == 4 else (R(acc(m, n)) if n < 6 else aR(176 + 4 * m))
                X = (lambda kk: 120 + 4 * kk) if i == 4 else (lambda kk: xf(h, i, kk))
                if att and n in (4, 5): chain(d, X, W)
                else: chain(d, W, X)
            end.append(len(L))
        if j < 8 and h == 1: chain("v[36:39]", lambda kk: 136, lambda kk: 128 + 4 * kk)
        return L, end
    def rs_a(j, end):
        S = [(rd_x(j, 0)[:4], 0, 8, 2), (rd_x(j, 0)[4:], 3, 19, 4)]
        for n in range(nblk - 1): S.append((rd_w(j, n), end[n], end[n] + 8, 2))
        return S
    def rs_b(j, end, n):
        L = (rd_w(j, nblk - 1) if j else []) + rd_x(j, 1) + rd_e(j)
        S = [(L, 0, min(2 * len(L), n - C.RE), 2)]
        for b in range(1, nblk): S.append(([f"WAITDS W{j}_{b}"], end[b - 1] - 1, end[b - 1]))
        return S
    def pf(i):
        if C.PF2:
            if not att or i > 20: return []
            if i < 16: return [(f"s_add_u32 s29, s35, {i*448*1024}", "buffer_load_dwordx4 a[140:143], v7, s[44:47], s29 offen")]
            return [(f"s_add_u32 s29, s35, {(i-16)*448*1024}", "buffer_load_dwordx4 a[140:143], v7, s[40:43], s29 offen")]
        L = C.PFL[att]
        if not C.PF or i >= len(L): return []
        g = L[i]
        if g >= 10: return [(f"s_add_u32 s29, s36, {(3*((g-10)&3)+((g-10)>>2))*131072}", "buffer_load_dwordx4 a[140:143], v7, s[44:47], s29 offen " + C.PAUX)]
        if g < 4: return [(f"s_add_u32 s29, s36, {(3*g+2)*131072}", "buffer_load_dwordx4 a[140:143], v7, s[44:47], s29 offen " + C.PAUX)]
        if g < 8: return [(f"s_add_u32 s29, s35, {(g-4)*524288}", "buffer_load_dwordx4 a[140:143], v7, s[40:43], s29 offen " + C.PAUX)]
        return [(f"s_add_u32 s29, s35, {48*131072 + (g-8)*524288}", "buffer_load_dwordx4 a[140:143], v7, s[44:47], s29 offen " + C.PAUX)]
    cpf = lambda lab, k=0, dst="a141": [(f"s_mov_b32 s29, {lab}-{P}_base+{8192*k}", f"buffer_load_dword {dst}, v6, s[76:79], s29 offen")] if C.CPF else []
    stm = []
    stm += [f"{MF} v[40:43], a[136:139], {aR(144+4*i)}, {'v[40:43]' if i else '0'}" for i in range(4)]
    stm += [f"{MF} v[44:47], {aR(144+4*i)}, {aR(144+4*i)}, {'v[44:47]' if i else '0'}" for i in range(4)]
    dpp = lambda v, m: f"v_add_f32_dpp v{v}, v{v}, v{v} {m} row_mask:0xf bank_mask:0xf"
    rnd = lambda v: [f"v_cvt_pk_bf16_f32 v{v}, v{v}, v{v}", f"v_and_b32 v{v}, 0xffff0000, v{v}"]
    st1 = ["v_lshlrev_b32 v41, 2, v3", "v_sub_u32 v41, v4, v41"]
    for q in range(4): st1 += [f"v_cmp_eq_u32 vcc, {q}, v41", dpp(40, ["quad_perm:[1,0,3,2]", "quad_perm:[2,3,0,1]", "row_half_mirror"][q]) if q < 3 else f"v_mul_f32 v40, {f32(1/1024)}, v40",
                               f"v_cndmask_b32 v42, {'v42' if q else '0'}, v{44+q}, vcc"]
    st1 += [dpp(42, "quad_perm:[1,0,3,2]"), "v_mul_f32 v41, v40, v40", dpp(42, "quad_perm:[2,3,0,1]"), rnd(40)[0], dpp(42, "row_half_mirror"), rnd(40)[1]]
    for sw in (16, 32): st1 += ["v_mov_b32 v43, v42", f"v_permlane{sw}_swap_b32 v42, v43", "v_add_f32 v42, v42, v43"]
    st2 = [f"v_mov_b32 v43, {f32(1/1024)}", "v_fma_f32 v44, v42, v43, -v41", "v_max_f32 v44, 0, v44"] + rnd(44) + [f"v_add_f32 v44, {f32(1e-5)}, v44"] + rnd(44) + ["v_sqrt_f32 v44, v44"] + rnd(44) + ["v_rcp_f32 v44, v44", "v_mul_f32 v45, v44, v40"]
    cph = lambda dst="a141": [("v_lshl_add_u32 v33, v4, 12, s99", f"buffer_load_dword {dst}, v33, s[76:79], 0 offen")] if C.CPH else []

    steps = g2_steps(att); NK = len(steps); DA = C.DA
    cls = {}
    def off(reg, tab, unit, j, imm):
        dc, sl = steps[j][2], steps[j][4]
        if dc is None: return f"s_mov_b32 s{reg}, {imm}"
        t = ""
        if cls.get((tab, sl)) != dc:
            cls[(tab, sl)] = dc
            t = f"s_mul_i32 s{tab+sl}, s{88+sl}, {dc[0]*unit}\ns_mul_i32 s{reg}, s{dc[1]}, {dc[2]*unit}\ns_add_u32 s{tab+sl}, s{tab+sl}, s{reg}\n"
        return t + f"s_add_u32 s{reg}, s{tab+sl}, {imm}"
    NW = C.NW[att]
    areg = lambda j, kk, i: 64 + 32 * (j % 4) + 16 * kk + 4 * i if j < NW else 64 + 16 * ((NW + j) % 8) + 8 * kk + 4 * i
    aprev = lambda j: j - 4 if j < NW else (NW - 4 + (j - NW) // 2 if j < NW + 8 else j - 8)
    def lda(j):
        kind, q = steps[j][:2]; ks = 2 * q + (0 if kind == "o" else 32); L = []
        for b in range(2):
            so = off(30, 80, 2048, j, ks * 1024 + b * A2S)
            for o in range(2 if steps[j][5] else 1):
                for kk in range(2):
                    L.append((so if kk + o == 0 else None, f"buffer_load_dwordx4 {aR(areg(j, kk, 2*o+b))}, v{7 if o else 16}, s[4:7], s30 offen offset:{kk*1024} {C.A_AUX} ; @a{j}"))
        return L
    def dma_b(j):
        kind, q = steps[j][:2]; L = []; sr = "s[40:43]" if kind == "o" else "s[44:47]"
        for hi in range(2):
            so = off(31, 68, 131072, j, q * 131072 + hi * 16384)
            for ln in range(2):
                L.append((f"s_add_u32 m0, s98, {BS(j) + hi*2048 + ln*896}" + ("\n" + so if ln == 0 else ""),
                          f"buffer_load_dwordx4 v19, {sr}, s31 offen offset:{128*ln} lds ; @b{j}"))
        return L
    setup_b = ["s_lshl_b32 s98, s20, 12", "v_lshrrev_b32 v18, 3, v2", "v_and_b32 v19, 7, v2", "v_and_b32 v20, 6, v18", "v_xor_b32 v19, v19, v20",
               "s_lshl_b32 s29, s20, 4\nv_add_u32 v18, s29, v18", "s_lshl_b32 s29, s26, 8\nv_lshl_add_u32 v18, v18, 11, s29", "v_lshl_add_u32 v19, v19, 4, v18",
               f"s_and_b32 s29, s25, 14\ns_lshl_b32 s29, s29, {C.FS+1}\ns_add_u32 s29, s29, {O_FL}", f"v_lshl_add_u32 v20, v4, {C.FS-4}, s29",
               f"s_and_b32 s29, s2, 3\ns_lshl_b32 s29, s29, {C.FS}\nv_add_u32 v20, s29, v20" if C.QP else f"v_lshl_add_u32 v20, v3, {C.FS}, v20"]
    setup_d = ["s_and_b32 s92, s2, 1\ns_bfe_u32 s29, s2, 0x10004\ns_xor_b32 s29, s29, s26", f"s_and_b32 s88, s29, {C.XR}\ns_sub_u32 s89, 0, s88\ns_and_b32 s93, s2, 3"]
    setup_a = ["s_and_b32 s29, s25, 1\ns_lshl_b32 s29, s29, 2\ns_add_u32 s29, s29, s20", f"s_mul_i32 s39, s29, {2*A2S}\nv_lshl_add_u32 v16, v2, 4, s39",
               f"s_xor_b32 s29, s29, 4\ns_mul_i32 s39, s29, {2*A2S}\nv_lshl_add_u32 v7, v2, 4, s39",
               f"s_lshr_b32 s29, s25, 1\ns_mul_i32 s29, s29, {16*A2S}\ns_add_u32 s29, s29, {WS_A2}", f"s_add_u32 s4, s12, s29\ns_addc_u32 s5, s13, 0\ns_mov_b32 s6, {16*A2S}",
               f"s_lshl_b32 s29, s23, 1\ns_add_u32 s29, s29, s21\ns_mul_i32 s29, s29, {8*A2S}", f"s_add_u32 s29, s29, {WS_A2}\n" + add64(12, "s29"), srd(12, 8 * A2S),
               f"s_movk_i32 s34, 0x1000\ns_mov_b32 s94, {KS}", f"s_mov_b32 s32, {2*KS}\ns_mov_b32 s28, {3*KS}"]
    c0 = -2 * math.sqrt(2 / math.pi) * math.log2(math.e); c1 = c0 * 0.044715
    ga = (-c1) ** (1 / 3); gb = -c0 / ga
    sc = 32 ** -0.5 * math.log2(math.e)
    rowp = lambda dst, a, off: f"ds_read_b32 v{dst}, v{a} offset:{off}\nds_read_b32 v{dst+1}, v{a} offset:{off+1280}"
    colreads = lambda ln: [f"ds_read_b128 {R(56+4*c)}, v31 offset:{256*ln+64*c}\nds_read_b128 {R(8+4*c)}, v31 offset:{1024+256*ln+64*c}" for c in range(2)]
    epi = [f"s_lshl_b32 s29, s21, 9\ns_add_u32 s29, s29, {TB}\nv_lshl_add_u32 v30, v4, 2, s29", f"s_mov_b32 s64, {f32(gb)}\ns_mov_b32 s65, {f32(ga)}"]
    if not att:
        epi += [rowp(40 + 2 * m, 30, 64 * m) for m in range(8)]
        epi += [f"s_lshl_b32 s29, s22, 7\ns_add_u32 s29, s29, {T_CS}\nv_lshl_add_u32 v31, v3, 4, s29"] + colreads(0)
        epi += ["s_mul_i32 s29, s24, 6\ns_add_u32 s29, s29, s22\ns_add_u32 s29, s29, 32", "s_lshl_b32 s29, s29, 10\nv_lshl_add_u32 v18, v2, 4, s29"]
    else:
        epi += ["v_lshl_add_u32 v31, v3, 4, s29", f"s_lshl_b32 s29, s22, 7\ns_add_u32 s29, s29, {T_CS}\nv_lshl_add_u32 v26, v3, 4, s29", "v_lshl_add_u32 v27, v4, 2, s29"]
        epi += [f"ds_read_b128 {R([8,12,40,44][n])}, v26 offset:{256*(n>>1)+64*(n&1)}" for n in range(4)]
        r4 = lambda m: f"ds_read_b128 {R(48+8*(m&1))}, v31 offset:{64*m}\nds_read_b128 {R(52+8*(m&1))}, v31 offset:{64*m+1280}"
        epi += ["ds_read_b32 v36, v27 offset:512\nds_read_b32 v37, v27 offset:576", rowp(24, 30, 448), r4(7)]
        epi += ["v_and_b32 v32, 1, v3", "v_lshlrev_b32 v21, 4, v32", "v_lshlrev_b32 v28, 4, v2", "v_lshlrev_b32 v32, 3, v2"]
        epi += [f"s_lshl_b32 s90, s33, 12\ns_add_u32 s90, s90, {MB}\ns_sub_u32 s91, s90, 131072", "s_cmp_lt_u32 s33, 32\ns_cselect_b32 s91, 0x40000000, s91"]
        epi += ["v_lshl_add_u32 v21, v5, 6, v21", f"s_lshl_b32 s29, s22, 5\ns_add_u32 s29, s29, {T_CS+768}\nv_add_u32 v21, s29, v21"]
        epi += ["s_lshl_b32 s29, s24, 1\ns_add_u32 s29, s29, s22\ns_lshl_b32 s29, s29, 10", "v_lshl_add_u32 v18, v2, 4, s29"]
        epi += [f"v_mul_u32_u24 v17, {A2S}, v5", "v_and_b32 v34, 31, v2", "v_lshl_add_u32 v17, v34, 4, v17",
                "s_lshl_b32 s29, s24, 1\ns_add_u32 s29, s29, s22\ns_add_u32 s29, s29, 256", "s_lshl_b32 s29, s29, 9\nv_add_u32 v17, s29, v17"]
        epi += [f"s_mov_b32 s86, {f32(sc)}\ns_mov_b32 s87, {f32(sc)}"]

    A("WAITVM x0 w0\ns_barrier"); A(ts("RTl0") if C.FINE == 3 else ts("land0"))
    emit(A, rd_w(0, 0) + rd_x(0, 0) + sum((rd_w(0, n) for n in range(1, nblk)), []))
    A("WAITDS W0_0 X0_0")
    M, end = mfmas(0, 0); n = len(M)
    DS = lambda L, n, a: (L, 0, n - 3, 4) if C.GRID & 2 and 4 * len(L) <= n and a == 0 else (L, a, n - 6)
    emit(A, place(M, rs_b(0, end, n) + [(seq(SEQ[1]), 0, n - C.S0E[att])]))
    pf0 = C.PF0[att]; STJ = C.STJ[att]; SJ = STJ + 2; AJ = SJ + C.AD; assert C.CJ < 7 and AJ <= 7
    c0load = "buffer_load_dword v33, v34, s[48:51], 0 offen sc1"
    tbl = ["buffer_load_dwordx2 v[40:41], v30, s[16:19], s66 offen sc1", "buffer_load_dwordx2 v[42:43], v30, s[16:19], s66 offen offset:2048 sc1"]
    for j in range(16):
        if j < 2: pads(j + 1)
        if j < 15: A(f"WAITVM x{j+1} w{j+1}" + {SJ: " st", AJ: " clr", 12: " c0", 13: " tb"}.get(j, "") + (" hc" if att and j == 7 else "") + " | lgkmcnt(0)\ns_barrier")
        else: A("s_waitcnt lgkmcnt(0)\ns_barrier")
        A(ts(f"p{j}"))
        if j == 3 and C.FINE == 3: A(ts("RTp3"))
        if C.IDLE and 3 <= j: A(C.IDLE)
        M, end = mfmas(j, 1); n = len(M); S = []; D = []
        if j < 15: S += rs_a(j + 1, end)
        if j == SJ: M = M + stm
        if j == SJ + 1: S.append((st2, 2, 40))
        if j == 11:
            D.append((None, c0load + " ; @c0"))
            sd = [f"v_min_u32 v30, {nblk*32-1}, v0", "v_and_b32 v27, 0xe0, v0", "v_lshl_add_u32 v27, v4, 1, v27", "v_and_b32 v28, 1, v3", "v_add_u32 v27, v27, v28",
                  "s_lshl_b32 s29, s23, 8\nv_add_lshl_u32 v27, v27, s29, 3"]
            if att: sd += ["v_and_b32 v31, 31, v0", "s_lshl_b32 s29, s24, 5\ns_add_u32 s29, s29, 3072\nv_add_lshl_u32 v31, v31, s29, 1"]
            else: sd += ["s_mul_i32 s29, s24, 192\nv_add_lshl_u32 v31, v30, s29, 1", "v_and_b32 v28, 127, v0", "s_lshl_b32 s29, s26, 7\nv_add_lshl_u32 v28, v28, s29, 1"]
            sd += ["v_lshlrev_b32 v30, 3, v30", "v_lshlrev_b32 v32, 2, v0"]
            S.append((sd, 4, 40))
        if j == 12:
            S.append(([spin(slow, P + "_c0", c0load, f"v_cmp_gt_u32 vcc, {256 // C.CSH[0]}, v33")], 0, 1))
            D += [(None, t + " ; @tb") for t in tbl]
            D.append((None, "buffer_load_dwordx2 v[44:45], v27, s[16:19], 0 offen sc1 ; @tb"))
            if not att: D.append((None, "buffer_load_ushort v46, v28, s[52:55], 0 offen ; @tb"))
            D.append((None, "buffer_load_ushort v36, v31, s[72:75], 0 offen ; @tb"))
        if j == 13:
            sd = [spin(slow, P + "_cs", "\n".join(tbl), "v_and_b32 v33, v41, v43\nv_cmp_ne_u32 vcc, 1, v33"), "v_add_f32 v40, v40, v42", f"v_add_u32 v32, {TB}, v32",
                  f"v_mul_f32 v42, {f32(ga)}, v44", f"v_mul_f32 v43, {f32(ga)}, v45", f"ds_write2st64_b32 v32, v42, v43 offset0:{18*att} offset1:{18*att+5}",
                  "v_lshlrev_b32 v36, 16, v36", f"v_mul_f32 v36, {f32(ga)}, v36", "ds_write2st64_b32 v32, v40, v36 offset0:10 offset1:14"]
            if att: sd += ["ds_write2st64_b32 v32, v44, v45 offset0:0 offset1:5"]
            if not att: sd += ["v_lshlrev_b32 v46, 16, v46", f"ds_write_b32 v32, v46 offset:{T_B2-TB}"]
            S.append((sd + setup_b, 1, n - 2))
        if att and j in (9, 10):
            sd = [f"v_mov_b32 v27, {f32(-1e30)}", "v_lshlrev_b32 v28, 2, v3", "v_sub_u32 v28, v28, v4",
                  "s_or_b32 s29, s23, s21\ns_cmp_lg_u32 s29, 0\ns_cselect_b64 s[30:31], -1, 0"]
            for q in range(2 * (j - 9), 2 * (j - 9) + 2):
                sel = lambda k: ["v_cndmask_b32 v33, v27, 0, vcc", f"v_accvgpr_write_b32 a{160+4*k+q}, v33"]
                sd += [f"v_add_u32 v32, {7+q}, v28", "v_cmp_gt_u32 vcc, 8, v32"] + sel(0) + ["v_cmp_lt_i32 vcc, 15, v32"] + sel(1)
                sd += ["s_and_b64 vcc, vcc, s[30:31]"] + sel(2)
            S.append((sd, 2, n - 4))
        sq = SEQ[2 + j] if 2 + j < len(SEQ) else (C.MRG if j < C.MJ else "xX:01234|wW:0123456").replace("X", str(j + 2)).replace("W", str(j + 3))
        D += seq(sq.split("|")[0])
        if j == 14: S.append((setup_a, 2, n - 4)); D += dma_b(1) + dma_b(2)
        if j == 15: S.append((epi, 0, n - 6)); D += dma_b(5) + dma_b(6) + (dma_b(7) if C.NPRE > 7 else [])
        S.append(DS(D, n, int(j == 12)))
        emit(A, place(M, S))
        if j < 15:
            A(f"WAITDS W{j+1}_0 X{j+1}_0")
            M, end = mfmas(j + 1, 0); n = len(M); S = rs_b(j + 1, end, n); D = []
            D += seq(sq.split("|")[1])
            if j == STJ: D += stl
            if j == SJ + 1:
                D = [(f"s_mov_b32 exec_lo, s38\ns_mov_b32 exec_hi, 0\ns_cbranch_execz {P}_ncl\nbuffer_store_dwordx2 v[32:33], v31, s[16:19], 0 offen sc1 ; @cond\n{P}_ncl:\ns_mov_b64 exec, -1", None),
                     (f"s_mov_b64 exec, {3 if att else 31}\nbuffer_store_dword v32, v29, s[16:19], 0 offen sc1 ; @clr\ns_mov_b64 exec, -1", None) if not C.FCL else
                     (f"s_cmp_eq_u32 s20, 3\ns_cbranch_scc0 {P}_nfc\ns_lshl_b32 s29, s2, 9\ns_add_u32 s29, s29, {O_FL}\nv_lshlrev_b32 v28, 3, v2\nbuffer_store_dwordx2 v[32:33], v28, s[16:19], s29 offen sc1 ; @cond\n{P}_nfc:", None),
                     ("s_mov_b64 exec, 0x101\nbuffer_store_dwordx2 v[44:45], v30, s[16:19], 0 offen sc1 ; @clr\ns_mov_b64 exec, -1", None)] + D
            if att and j == C.CJ:
                D = [(None, f"buffer_store_dwordx4 v[48:51], v7, s[16:19], s32 offen offset:{1024*i} sc1 ; @hc") for i in range(4)] + D
            if j == SJ: S.append((st1, 4, n - 1))
            if j in (2, 4, 6, 8, 10): D += cph()
            if not att: D += [(None, f"buffer_load_dwordx4 {aR(208+4*i)}, v21, s[60:63], 0 offen offset:{2048*(i>>2)+64*(i&3)}") for i in range(8) if C.XJ[i] == j]
            if j in (AJ, AJ + 1):
                D.append((f"s_bfe_u32 s29, s2, 0x10004\ns_lshl_b32 s39, s20, 1\ns_add_u32 s29, s29, s39\ns_cmp_eq_u32 s29, {j-AJ}\ns_cbranch_scc0 {P}_na{j}\ns_lshr_b32 s29, s2, {C.CSH[2]}\ns_and_b32 s29, s29, {C.CSH[0]-1}\ns_lshl_b64 exec, 1, s29\n"
                          f"buffer_atomic_add v35, v34, s[48:51], 0 offen sc1 ; @cond\ns_mov_b64 exec, -1\n{P}_na{j}:", None))
            if j >= pf0: D += sum((pf(C.PFN * (j - pf0) + k) for k in range(C.PFN)), [])
            if j == 7: D.append((f"v_mov_b32 v37, 1\ns_mov_b32 exec_lo, s38\ns_mov_b32 exec_hi, 0\ns_cbranch_execz {P}_ncs\nbuffer_store_dwordx2 v[36:37], v31, s[16:19], 0 offen sc1 ; @cond\n{P}_ncs:\ns_mov_b64 exec, -1", None))
            if j == 13: D += [tuple(setup_d)] + dma_b(0)
            D += sum((cpf(P + "_epi", k) for k, jj in enumerate(C.CJS) if jj == j), [])
            D += sum((cpf(P + "_base", k + 1) for k, jj in enumerate(C.CJB) if jj == j), [])
            if j == 14: D += dma_b(3) + dma_b(4)
            S.append(DS(D, n, 0))
            emit(A, place(M, S))
    A(ts("g1end")); A(ts("RTg1")); A(ts("e0"))
    A(f"{P}_epi:")
    flag = lambda lane: f"s_mov_b64 exec, {1<<lane}\nbuffer_store_dword v35, v29, s[16:19], 0 offen sc1\ns_mov_b64 exec, -1"
    poll = lambda kind: f"buffer_load_dword v33, v{20 if kind else 27}, s[16:19], {['0','s94','s32','s28'][kind]} offen sc1"
    ptest = "v_cmp_eq_u32 vcc, 0, v33"
    acc2 = lambda m, n: 64 + 32 * m + 4 * n
    G2A = 236 if att else 232; GT = 252 if att else 244
    g2_addr = lines(f"v_bfe_u32 v{GT}, v2, 2, 3\nv_and_b32 v{GT+1}, 3, v2\nv_lshlrev_b32 v{GT+2}, 11, v5\nv_lshl_add_u32 v{GT+2}, v{GT}, 7, v{GT+2}\nv_lshl_add_u32 v{GT+2}, v{GT+1}, 3, v{GT+2}\n"
                    f"v_lshrrev_b32 v{GT}, 1, v{GT}\nv_lshl_add_u32 v{G2A}, v{GT}, 5, v{GT+2}\nv_add_u32 v{G2A+4}, 0x10000, v{G2A}") + [f"v_xor_b32 v{G2A+4+c}, {32*c}, v{G2A+4}" for c in (1, 2, 3)]
    g2_addr2 = [f"v_add_u32 v{G2A+8+c}, 0x10000, v{G2A+4+c}" for c in range(4)] + [f"v_xor_b32 v{G2A+c}, {32*c}, v{G2A}" for c in (1, 2, 3)]
    def reads2(j, p):
        st = BS(j); w = G2A + 4 * (st >> 16); st &= 0xffff
        fr = [(f >> 1, p, f & 1) if j < NK - 1 else (f & 3, f >> 2, p) for f in range(8)]
        return [f"ds_read_b64_tr_b16 a[{32*p+4*f+2*h}:{32*p+4*f+2*h+1}], v{w+c} offset:{st + (2*kk+h)*4096 + ln*1024}" for f, (c, ln, kk) in enumerate(fr) for h in range(2)]
    def gelu8(t, rs, cs, b1):
        u = [22, 24, 26, 38]; L = []
        for i in range(4): L.append(f"v_pk_fma_f32 {Pn(u[i])}, {Pn(cs[i])}, {Pn(rs[i])}, {Pn(b1[i])} op_sel:[0,1,0] op_sel_hi:[1,1,1] neg_lo:[0,1,0] neg_hi:[0,1,0]")
        for i in range(4): L.append(f"v_pk_fma_f32 {Pn(t[i])}, {Pn(t[i])}, {Pn(rs[i])}, {Pn(u[i])} op_sel_hi:[1,0,1]")
        for i in range(4): L.append(f"v_pk_fma_f32 {Pn(u[i])}, {Pn(t[i])}, {Pn(t[i])}, s[64:65] op_sel_hi:[1,1,0]")
        for i in range(4): L.append(f"v_pk_mul_f32 {Pn(u[i])}, {Pn(u[i])}, {Pn(t[i])} neg_lo:[0,1] neg_hi:[0,1]")
        for i in range(8): L.append(f"v_exp_f32 v{u[i>>1]+(i&1)}, v{u[i>>1]+(i&1)}")
        for i in range(4): L.append(f"v_pk_fma_f32 {Pn(u[i])}, {Pn(u[i])}, s[64:65], s[64:65] op_sel:[0,1,1] op_sel_hi:[1,1,1]")
        for i in range(8): L.append(f"v_rcp_f32 v{u[i>>1]+(i&1)}, v{u[i>>1]+(i&1)}")
        for i in range(4): L.append(f"v_pk_mul_f32 {Pn(u[i])}, {Pn(u[i])}, {Pn(t[i])}")
        for i in range(4): L.append(cvt(t[0] + i, u[i]))
        return L
    start2 = ["WAITVM b0 b1\ns_barrier"] + reads2(0, 0)
    A0 = lda(0)
    if not att:
        for ln in range(3):
            A("s_waitcnt lgkmcnt(0)")
            for m in range(8):
                if m in (0, 4): A(ts(f"L{ln}m{m}"))
                d = acc(m, 2 * ln)
                G = gelu8([d, d + 2, d + 4, d + 6], [40 + 2 * m] * 4, [56, 58, 60, 62], [8, 10, 12, 14]); S = []
                if m == 7 and ln < 2: S.append((colreads(ln + 1), 6, 8))
                if ln == 0 and m == 2 and C.NPRE > 8: S.append((dma_b(8), 2, 40))
                if ln == 1 and m == 3: S.append((["WAITVM h0\n" + flag(0)], 2, 3))
                if ln == 2:
                    if m == 0: emit(A, g2_addr)
                    gp, gc, gl_ = C.GF
                    if m == gp: S.append(([poll(1) + " ; @p1"], 20, 21))
                    if m == gc: S.append((["WAITVM p1 h1\n" + flag(1) + "\n" + spin(slow, P + "_f1", poll(1), ptest)], 4, 5))
                    if gc <= m <= gl_:
                        k0, k1 = (8 * (m - gc)) // (gl_ - gc + 1), (8 * (m - gc + 1)) // (gl_ - gc + 1); S.append((A0[k0:k1], 10, 40))
                    if m == 6: S.append(([f"s_mov_b32 s29, {T_B2}\nv_lshl_add_u32 v32, v3, 4, s29"] + [f"ds_read_b128 {R(acc2(1,n))}, v32 offset:{64*n}" for n in range(8)], 2, 30))
                    if m == 7: S.append((start2, 2, 40))
                emit(A, place(G, S))
                A(f"s_mov_b32 s29, {m*A2S + ln*2048}\nbuffer_store_dwordx4 {R(d)}, v18, s[12:15], s29 offen {C.HS_AUX} ; @h{ln}")
    else:
        hx = lambda op, so, base, tag: ([f"buffer_{op}_dwordx4 {R(base[b])}, v28, s[16:19], {so} offen offset:{1024*b} sc1 ; @{tag}" for b in range(2)]
                                        + [f"buffer_{op}_dwordx2 {Pn(base[2+i])}, v32, s[16:19], {so} offen offset:{2048+512*i} sc1 ; @{tag}" for i in range(4)])
        EXP_ = hx("store", "s90", [acc(6, 1), acc(7, 1)] + [acc(6 + b, 2 + db) + 2 for b in range(2) for db in range(2)], "hx")
        IMP_ = hx("load", "s91", [48, 52] + [acc(b, 2 + db) for b in range(2) for db in range(2)], "hi")
        hpoll = "buffer_load_dword v6, v34, s[16:19], 0 offen sc1"
        for m in range(7, -1, -1):
            A("s_waitcnt lgkmcnt(0)")
            if m: A(rowp(22 + 2 * ((m - 1) & 1), 30, 64 * (m - 1))); A(r4(m - 1))
            rs = Pn(22 + 2 * (m & 1)); G = []
            for part in (0, 1):
                src = acc(m, 0) + 8 * part; dst = acc(m, 0) + 4 * part; cs = [8, 40][part]
                for i in range(4): G.append(f"v_pk_mul_f32 {Pn(src+2*i)}, {Pn(src+2*i)}, {rs} op_sel_hi:[1,0]")
                for i in range(4): G.append(f"v_pk_fma_f32 {Pn(src+2*i)}, {Pn(cs+2*i)}, {rs}, {Pn(src+2*i)} op_sel:[0,1,0] op_sel_hi:[1,1,1] neg_lo:[0,1,0] neg_hi:[0,1,0]")
                for i in range(4): G.append(cvt(dst + i, src + 2 * i))
            r, mr = 48 + 8 * (m & 1), 52 + 8 * (m & 1); src = acc(m, 4)
            for i in range(4): G.append(f"v_pk_mul_f32 {Pn(src+2*i)}, {Pn(src+2*i)}, {Pn(r+2*(i&1))}")
            for i in range(4): G.append(f"v_pk_fma_f32 {Pn(src+2*i)}, {Pn(mr+2*(i&1))}, v[36:37], {Pn(src+2*i)} op_sel:[0,{i>>1},0] op_sel_hi:[1,{i>>1},1] neg_lo:[0,1,0] neg_hi:[0,1,0]")
            for i in range(4):
                db, h = i >> 1, i & 1
                for d in [acc(m, 2 + db) + 2 + h] + ([acc(m + 2, 2 + db) + h] if m < 6 else []): G.append(cvt(d, src + 2 * i))
            S = []
            if m == 4: A(ts("e4"))
            if m == 6: S.append(([EXP_[1], EXP_[4], EXP_[5]], 1, 36))
            if m == 5: S.append(([EXP_[0], EXP_[2], EXP_[3]], 1, 36))
            emit(A, place(G, S))
        A(ts("s"))
        mk = [8, 12, 40]
        mrd = lambda k: [f"v_accvgpr_read_b32 v{mk[k]+q}, a{160+4*k+q}" for q in range(4)]
        def smf(m): return [f"{MF} {R(acc(m,4))}, {R(48 + 4*m if m < 2 else acc(m-2,1))}, {R(acc(m,0))}, {R(mk[2] if m < 2 else mk[1])}",
                            f"{MF} {R(acc(m,5))}, {R(acc(m,1))}, {R(acc(m,0))}, {R(mk[0])}"]
        zp = lambda a, b: [x for p in zip(a, b) for x in p]
        def sm2(a):
            def pre(m):
                s = acc(m, 4); mx = 22 + 2 * (m & 1)
                return [f"v_max_f32 v{s+i}, v{s+i}, v{s+4+i}" for i in range(4)] + [f"v_max3_f32 v{mx}, v{s}, v{s+1}, v{s+2}", f"v_max_f32 v{mx}, v{mx}, v{s+3}"]
            def post(m):
                s = acc(m, 4); mx = 22 + 2 * (m & 1); q = acc(m, 0)
                L = [f"v_pk_fma_f32 {Pn(s+2*i)}, {Pn(s+2*i)}, s[86:87], {Pn(mx)} op_sel_hi:[1,1,0] neg_lo:[0,0,1] neg_hi:[0,0,1]" for i in range(2)]
                L += [f"v_exp_f32 v{s+i}, v{s+i}" for i in range(4)] + [cvt(s + 4 + i, s + 2 * i) for i in range(2)]
                return L + [f"v_and_b32 v{q+i}, v{44+i}, v{s+4+i}" for i in range(2)] + [f"v_bfi_b32 v{q+2+i}, v{44+i}, 0, v{s+4+i}" for i in range(2)]
            mid = lines("v_permlane16_swap_b32 v22, v24\nv_max_f32 v22, v22, v24\nv_mov_b32 v24, v22\nv_permlane32_swap_b32 v22, v24\nv_max_f32 v22, v22, v24\n"
                        "v_mul_f32 v22, s86, v22\nv_mov_b32 v24, v22\nv_permlane16_swap_b32 v22, v24")
            return zp(pre(a), pre(a + 1)) + mid + zp(post(a), post(a + 1))
        fill = lambda L: [(L[2*k:2*k+2], p, p) for k, p in enumerate((11, 14, 18)) if L[2*k:2*k+2]]
        def pvf(m):
            q = acc(m, 0)
            return [f"{MF} {R(acc(m,4))}, {R(acc(m,2))}, {R(q)}, 0", f"{MF} {R(acc(m,5))}, {R(acc(m,3))}, {R(q)}, 0", f"{MF} {R(acc(m,2))}, a[136:139], {R(q)}, 0"]
        def fin(m):
            s = acc(m, 4); l = acc(m, 2); q = acc(m, 0)
            L = [f"v_rcp_f32 v{l}, v{l}"]
            for i in range(4): L.append(f"v_pk_mul_f32 {Pn(s+2*i)}, {Pn(s+2*i)}, {Pn(l)} op_sel_hi:[1,0]")
            for i in range(4): L.append(cvt(q + i, s + 2 * i))
            L.append(f"s_mov_b32 s29, {m*A2S}\nbuffer_store_dwordx4 {R(q)}, v18, s[12:15], s29 offen {C.ST_AUX} ; @o")
            return L
        two = lambda f, a: f(a) + f(a + 1)
        fin2 = lambda a: zp(fin(a)[:-1], fin(a + 1)[:-1])
        ost = lambda *ms: [fin(m)[-1] for m in ms]
        def half(mp, S):
            d = [164, 172, 188, 196][mp]
            G = [f"v_accvgpr_read_b32 v{d+i}, a{176+8*mp+i}" for i in range(8)] + gelu8([d, d + 2, d + 4, d + 6], [212 + 4 * mp] * 2 + [214 + 4 * mp] * 2, [228, 230, 228, 230], [248, 250, 248, 250])
            emit(A, place(G, S))
            A(f"v_permlane32_swap_b32 v{d}, v{d+2}\nv_permlane32_swap_b32 v{d+1}, v{d+3}")
            A(f"s_mov_b32 s29, {2*mp*A2S}\nbuffer_store_dwordx4 {R(d)}, v17, s[12:15], s29 offen {C.ST_AUX} ; @h2")
        ir = list(range(48, 56)) + [acc(b, 2 + db) + h for b in range(2) for db in range(2) for h in range(2)]
        itest = "\n".join([f"v_max3_u32 v6, v{ir[0]}, v{ir[1]}, v{ir[2]}", f"v_max3_u32 v34, v{ir[3]}, v{ir[4]}, v{ir[5]}"]
                          + [f"v_max3_u32 v{[6,34][k&1]}, v{[6,34][k&1]}, v{ir[6+2*k]}, v{ir[7+2*k]}" for k in range(5)] + ["v_max_u32 v6, v6, v34", "v_cmp_eq_u32 vcc, -1, v6"])
        emit(A, mrd(0) + mrd(1) + two(smf, 6) + mrd(2) + [cvt(44, 8), cvt(45, 10), "v_pk_ashrrev_i16 v44, 15, v44 op_sel_hi:[0,1]", "v_pk_ashrrev_i16 v45, 15, v45 op_sel_hi:[0,1]"])
        emit(A, place(sm2(6), fill(two(smf, 4))))
        A(ts("s4")); emit(A, place(sm2(4) + fin2(6), fill(two(pvf, 6)) + [(two(smf, 2), 24, 32)]))
        emit(A, place(sm2(2) + fin2(4) + g2_addr, fill(two(pvf, 4)) + [([rowp(212 + 2 * m, 30, 4608 + 64 * m) for m in range(8)] + ["ds_read_b128 v[228:231], v21\nds_read_b128 v[248:251], v21 offset:1024"], 22, 44),
                                                  ([poll(1) + " ; @p1"] + IMP_, C.HP, 72)]))
        A(ts("h")); A("s_waitcnt lgkmcnt(0)")
        half(0, [(two(pvf, 2), 9, 27), (ost(6, 7, 4), 2, 46)])
        A(ts("h1")); emit(A, fin2(2))
        half(1, [(["WAITVM p1\n" + spin(slow, P + "_f1", poll(1), ptest)] + A0[:4], 0, 50)]); A(ts("h2"))
        half(2, [(A0[4:], 6, 50), (["WAITVM hi\n" + spin(slow, P + "_hx", "\n".join(x.split(";")[0] for x in IMP_), itest)] + two(smf, 0), 32, 44)])
        rest = [None] * 5 + ost(5, 2, 3)
        A(ts("h3"))
        emit(A, place(sm2(0), [(rest[5:6], 11, 12), (rest[6:], 26, 44)]))
        A(ts("h4")); half(3, [(two(pvf, 0), 9, 27), (start2, 12, 50)])
        emit(A, fin2(0) + ost(0, 1))

    def mfmas2(j, p):
        L = []; ms = list(range(4 if steps[j][5] else 2)); t = 0
        if j == NK - 1:
            return [f"{MF} {R(acc2(m,n))}, {aR(32*p+4*n)}, {aR(areg(j, p, m))}, {R(acc2(m,n))}" for n in range(8) for m in (ms if n % 2 == 0 else ms[::-1])]
        for c in range(4):
            n = 4 * p + c
            for m in (ms if n % 2 == 0 or j == 0 else ms[::-1]):
                d = R(acc2(m, n)); t += 1
                for q, kk in enumerate((0, 1) if t % 2 else (1, 0)):
                    cc = d if j or q else ("0" if att or m > 1 else R(acc2(1, n)))
                    L.append(f"{MF} {d}, {aR(32*p+8*c+4*kk)}, {aR(areg(j, kk, m))}, {cc}")
        return L
    def sub2(M, Rd, S, D):
        n = len(M); S = [(Rd, 0, n)] + S
        if D: S.append((D, 0, n, 4) if C.GRID & 1 and n >= 4 * len(D) else (D, 1, n + 1) if n >= 3 * len(D) else (D, 0, n - 1))
        S.append((["s_waitcnt lgkmcnt(8)"], n // 2 - 1, n // 2))
        emit(A, place(M, S))
    A("WAITVM a0 | lgkmcnt(0)"); A(ts("g2go")); A(ts("RTg2")); A(ts("g2go2"))
    A(f"{P}_g2:")
    first_need = {}
    for s, st in enumerate(steps): first_need.setdefault(st[3], s)
    bars = [j for j in range(NK - 1) if (j < NW and j % C.KBW == 0) or (j >= NW and (j - NW) % C.KB == 0)]
    checks = {first_need[k] - 4: k for k in first_need if k != 1}
    T = [0]
    for u in range(2 * NK): T.append(T[-1] + (32 if steps[u // 2][5] else 16))
    fixed = {2 * NW - 2 + i: x for i, x in enumerate(C.SFX)}
    UX = 2 * NK - 1 - C.XU[att]; XD = C.XD[att]; UY = UX - 2
    for u in range(UY if att else UX, 2 * NK): fixed[u] = 9
    ok = {k: 2 * (j + 1) + 1 for j, k in checks.items()}; ok[1] = 0
    QA = [(max(2 * aprev(x) + 2, ok[steps[x][3]]), T[2 * x], x) for x in range(1, NK) for _ in range(8 if steps[x][5] else 4)]
    QB = [(2 * next(b for b in bars if b >= x - NB + 1) + 1 if x >= NB else 0, T[2 * max(b for b in bars if b < x) + 1] - C.BM, x) for x in range(C.NPRE, NK) for _ in range(4)]
    plan = []; marg = 999
    for u in range(2 * NK - 1):
        cap = (8 if u == 0 else (C.CAP0 if u < C.UC else C.CAPW) if steps[u // 2][5] else C.CAPN) - fixed.get(u, 0); P_ = []
        while len(P_) < cap:
            c = [q for q in (QA, QB) if q and q[0][0] <= u]
            if not c: break
            q = min(c, key=lambda q: q[0][1])
            if C.BMIX and u >= C.BMIX[0] and steps[u // 2][5]:
                nb = sum(k == "b" for k, _ in P_)
                if len(c) == 2 and QA[0][1] - T[u + 1] >= C.BMIX[2]: q = QB if len(P_) % 3 == 1 else QA
                if q is QB and nb >= C.BMIX[1]:
                    if len(c) == 1: break
                    q = QA
            it = q.pop(0); P_.append(("a" if q is QA else "b", it[2]))
            marg = min(marg, it[1] + (C.BM if q is QB else 0) - T[u + 1])
        plan.append(P_)
    assert not QA and not QB and marg >= 0, marg
    C.marg[att] = marg
    qa = []; qb = []
    def take(u):
        out = []
        for k, x in plan[u]:
            q = qa if k == "a" else qb
            if not q: q.extend(lda(x) if k == "a" else dma_b(x))
            out.append(q.pop(0))
        return out
    busy = {BS(x) for x in range(bars[-1], NK)}
    STG = next(r * 16384 for r in range(NB - 2) if not busy & {(r + x) * 16384 for x in range(3)})
    sub2(mfmas2(0, 0), reads2(0, 1), [(g2_addr2, 3, 28)], take(0))
    xpoll = "buffer_load_dword v33, v34, s[16:19], 0 offen sc1"
    ypoll = "buffer_load_dword v25, v26, s[16:19], 0 offen sc1"
    xl = lambda base, a, tag: [f"buffer_load_dwordx4 {R(base+4*i)}, v{a}, s[56:59], {'s34' if i>=4 else '0'} offen offset:{1024*(i&3)} sc1 ; @{tag}" for i in (0, 4, 1, 5, 2, 6, 3, 7)]
    gl = att and C.GLAST; XL = xl(128, 18 if gl else 13, "xl"); YL = xl(160, 13 if gl else 18, "yl")
    gate = lambda v, sr: f"v_cmp_eq_u32 vcc, 0, v{v}\ns_cmp_eq_u64 vcc, 0\ns_cselect_b32 s58, {16*MB}, 0\ns_mov_b32 s{sr}, s58"
    def extra(u, S, D):
        w = ""
        if u == UX - XD: S.append(([xpoll + " ; @px"], 0, 1))
        if u == UX: w += " px"; S.append(([gate(33, 64)], 0, 1))
        if u in (UX, UX + 1): D += [(None, x) for x in XL[4*(u-UX):4*(u-UX)+4]]
        if att:
            if u == UY - C.YD: S.append(([ypoll + " ; @py"], 0, 1))
            if u == UY: w += " py"; S.append(([gate(25, 65)], 0, 1))
            if u in (UY, UY + 1): D += [(None, x) for x in YL[4*(u-UY):4*(u-UY)+4]]
        if u in C.CG: S.append(([f"s_lshl_b32 s29, s20, 4\nv_add_lshl_u32 v{GT}, s29, v4, 7", f"s_mov_b32 s29, {P}_g2-{P}_base+{8192*(1+C.CG.index(u))}\nbuffer_load_dword v{GT+1}, v{GT}, s[76:79], s29 offen"], 26, 30))
        if u == 2 * NW + C.SWF: w += " sw"; S.append(([flag(1 if att else 4)], 0, 1))
        return w
    blocks = lambda p: [(0, 2 * p), (1, 2 * p), (1, 2 * p + 1), (0, 2 * p + 1)]
    ids = lambda p, base: [f"{MF} {R(acc2(m,n))}, {R(194-2*(n&1))}, {R(base+16*m+4*p)}, {R(acc2(m,n))}" for m, n in blocks(p)]
    def swp(p):
        V = []; D = []
        for m in range(2):
            d = acc2(2 + m, 2 * p); V += [cvt(d + q, d + 2 * q) for q in range(4)]
            D.append(f"buffer_store_dwordx4 {R(d)}, v12, s[56:59], {'s34' if m else '0'} offen offset:{1024*p} sc1 ; @sw")
        return V[:4] + [D[0]] + V[4:] + [D[1]]
    for j in range(NK - 1):
        S = []; bar = j in bars
        nxt = next((b for b in bars if b > j), NK - 1)
        w = "WAITVM" + (f" b{nxt}" if bar else "")
        if j - 1 in checks: w += f" p{checks[j-1]}"
        if j == 1: w += " h2 o" if att else " h2"
        D = take(2 * j + 1); w += extra(2 * j + 1, S, D)
        A((w + " | lgkmcnt(8)" if w != "WAITVM" else "s_waitcnt lgkmcnt(8)") + ("\ns_barrier" if bar else ""))
        if j in (0, 7) or j >= NW - 2: A(ts(f"q{j}"))
        M = mfmas2(j, 1)
        if j - 1 in checks: S.append(([spin(slow, f"{P}_g{checks[j-1]}", poll(checks[j-1]), ptest)], 0, 1))
        if j == 1: S.append(([flag(0 if att else 2)], 0, 1))
        if j in checks: S.append(([poll(checks[j]) + f" ; @p{checks[j]}"], 0, 1))
        if j == 3: S.append(([f"v_and_b32 v27, {0xffffffff ^ (3 << C.FS)}, v20", f"v_lshl_add_u32 v27, v3, {C.FS}, v27"], 4, 10))
        if j == 2:
            sd = [f"s_mul_i32 s29, s37, {C.XST}\ns_add_u32 s29, s29, {5*MB}\nv_lshl_add_u32 v12, v2, 4, s29", f"s_xor_b32 s29, s37, 8\ns_mul_i32 s29, s29, {C.XST}", f"s_add_u32 s29, s29, {5*MB}\nv_lshl_add_u32 v13, v2, 4, s29",
                  "s_lshr_b32 s29, s2, 1\ns_lshl_b32 s29, s29, 2\ns_add_u32 s29, s29, s20", f"s_mul_i32 s29, s29, {C.XST}\nv_lshl_add_u32 v18, v2, 4, s29",
                  f"s_xor_b32 s29, s99, {8 << C.YS_}\nv_mov_b32 v{26 if gl else 34}, s29"]
            if att: sd += [f"v_mov_b32 v{34 if gl else 26}, s67"] + lines(xo_base) + ["v_lshrrev_b32 v10, 3, v2", "v_and_b32 v11, 7, v2", "v_lshl_add_u32 v21, v10, 12, s29", "v_lshl_add_u32 v21, v11, 4, v21"]
            S.append((sd, 2, 30))
        if j == 5:
            sd = ["v_and_b32 v22, 1, v4", "v_lshlrev_b32 v22, 4, v22", "v_mov_b32 v23, 0x3f80", "v_lshlrev_b32 v22, v22, v23", "v_lshrrev_b32 v23, 1, v4", "v_lshlrev_b32 v24, 1, v3", "v_sub_u32 v23, v23, v24",
                  "v_cmp_eq_u32 vcc, 0, v23", "v_mov_b32 v192, 0", "v_cndmask_b32 v194, 0, v22, vcc", "v_cmp_eq_u32 vcc, 1, v23", "v_mov_b32 v193, 0", "v_cndmask_b32 v195, 0, v22, vcc", "v_mov_b32 v196, 0", "v_mov_b32 v197, 0"]
            S.append((sd, 2, 32))
        if j == 6:
            if att: sd = ["v_mul_u32_u24 v8, 272, v4", "v_lshl_add_u32 v8, v3, 3, v8", f"s_mul_i32 s29, s20, 8704\ns_add_u32 s29, s29, {STG}\nv_add_u32 v8, s29, v8",
                          "v_mul_u32_u24 v9, 272, v10", "v_lshl_add_u32 v9, v11, 4, v9", "v_add_u32 v9, s29, v9"]
            else: sd = ["v_sub_u32 v23, v23, v24"] + [x for d in range(8) for x in (f"v_cmp_eq_i32 vcc, {(d&3) - 8*(d>>2)}, v23", f"v_cndmask_b32 v{200+d}, 0, v22, vcc")]
            S.append((sd, 2, 32))
        if j == NW - 1: S.append((swp(1), 4, 16) if C.SWM == 0 else (swp(0) + swp(1), 0, 20)); S.append((swp(2), 20, 32))
        sub2(M, reads2(j + 1, 0), S, D)
        M = mfmas2(j + 1, 0); S = []
        D = take(2 * j + 2); w = extra(2 * j + 2, S, D)
        A(f"WAITVM a{j+1}{w} | lgkmcnt(8)")
        if j == NW - 2 and C.SWM == 0: S.append((swp(0), 20, 32))
        if j == NW - 1: S.append((swp(3), 4, 16))
        sub2(M, reads2(j + 1, 1), S, D)
        if not att and j == 8:
            for n in range(8):
                for m in range(2): A(f"{MF} {R(acc2(m,n))}, {R(200+4*(n&1))}, {aR(208+16*m+4*(n>>1))}, {R(acc2(m,n))}")
    assert not (qa or qb)
    A(ts("RTg2e")); A(ts("g2end"))
    def late(nm, sr, pl, v, L, tail):
        A(f"s_cmp_eq_u32 s{sr}, 0\ns_cbranch_scc1 {P}_{nm}_slow\n{P}_{nm}done:")
        slow.append(f"{P}_{nm}_slow:\ns_mov_b32 s39, {C.SPIN}\ns_mov_b32 s58, {16*MB}\n{P}_{nm}_spin:\n{pl}\ns_waitcnt vmcnt(0)\nv_cmp_eq_u32 vcc, 0, v{v}\ns_cbranch_vccz {P}_{nm}_ok\ns_sleep {C.XSL}\n"
                    f"s_sub_u32 s39, s39, 1\ns_cmp_lg_u32 s39, 0\ns_cbranch_scc1 {P}_{nm}_spin\n{P}_{nm}_ok:\n" + "\n".join(L) + f"\n{tail}s_branch {P}_{nm}done")
    if att: late("y", 65, ypoll, 25, YL, f"s_cmp_eq_u32 s64, 0\ns_cbranch_scc1 {P}_ydone\ns_waitcnt vmcnt(0)\n")
    late("x", 64, xpoll, 33, XL, "")
    A(ts("xgot"))
    if att:
        A("s_mov_b32 s29, 0x8000\ns_waitcnt vmcnt(8)")
        for p in range(4): emit(A, ids(p, 160))
    A("s_waitcnt lgkmcnt(8)")
    reg = mfmas2(NK - 1, 1)
    def post(p):
        L = []
        for m, n in blocks(p):
            d = acc2(m, n); o = 160 + 16 * m + 4 * p
            if att: L += [cvt(d, d), cvt(d + 1, d + 2), f"ds_write_b64 v8, {Pn(d)} offset:{4352*m + 32*n}"]
            else:
                L += [cvt(o + 2 * (n & 1), d), cvt(o + 2 * (n & 1) + 1, d + 2)]
                if n & 1: L.append(f"buffer_store_dwordx4 {R(o)}, v18, s[56:59], {'s34' if m else '0'} offen offset:{1024*p} sc1")
        return L
    rd = lambda h: [f"ds_read_b128 {R(160+16*h+4*i)}, v9 offset:{2176*i + 128*h}" for i in range(4)]
    st = lambda h, i: f"buffer_store_dwordx4 {R(160+16*h+4*i)}, v21, s[52:55], {'s29' if i&1 else '0'} offen offset:{2048*(i>>1) + 128*h} {C.OUT_AUX}"
    for p in range(4):
        S = [([f"s_waitcnt vmcnt({6 - 2*p + (0 if att else 2*max(p-1, 0))})"], 3, 4)]
        if p == 0: S.append((["s_waitcnt lgkmcnt(0)"], 7, 8))
        if att and p == 3: S.append((rd(0), 0, 2))
        if p: S.append((post(p - 1), 2, 8))
        emit(A, place(reg[4*p:4*p+4] + ids(p, 128), S))
    if att:
        A("s_waitcnt lgkmcnt(4)"); emit(A, [st(0, 0), st(0, 1)])
        emit(A, post(3) + rd(1) + [st(0, 2), st(0, 3)])
        for i in range(4): A(f"s_waitcnt lgkmcnt({3-i})\n" + st(1, i))
    else:
        emit(A, post(3))
        A(ts("xs")); A("s_waitcnt vmcnt(0)\n" + flag(3))
    stamp_out(A)
    A(f"{P}_fin:\ns_endpgm")
    nl = 1 + att
    if C.PAD: A(f".p2align 6\n{P}_ws:\ns_branch {P}_ret2")
    for s in slow[-nl:][::-1] + slow[:-nl]: A("s_nop 7\n" + s)
    A(f"{P}_end:")

def build(path, **kw):
    global A2S
    for k, v in kw.items(): setattr(C, k, v)
    A2S = 144 * 1024 + C.A2P; assert 8192 <= C.XST <= 10240
    A = Asm(); name = NAME + "_kernel"
    A(f".text\n.globl {name}\n.p2align 8\n.type {name},@function\n{name}:")
    A("s_cmp_ge_u32 s2, 256\ns_cbranch_scc0 L_go\ns_endpgm\nL_go:" + (f"\ns_xor_b32 s2, s2, {C.WX}" if C.WX else ""))
    for r, o in ((60, 0), (8, 8), (68, 32), (16, 80), (40, 16), (44, 48), (72, 40), (48, 72)): A(f"s_load_dwordx2 s[{r}:{r+1}], s[0:1], {o}")
    C.names = []
    if C.FINE == 1: A("s_memtime s[98:99]")
    A(ts("RTstart"))
    A("v_lshrrev_b32 v3, 6, v0\nv_and_b32 v2, 63, v0\nv_readfirstlane_b32 s20, v3\nv_and_b32 v4, 15, v2\nv_lshrrev_b32 v3, 4, v2")
    A("s_lshr_b32 s29, s2, 3\ns_xor_b32 s29, s29, s2\ns_and_b32 s35, s29, 1\ns_cselect_b32 s30, 7, 11")
    A("s_getpc_b64 s[76:77]\nL_pc:\ns_mul_i32 s29, s35, Lg_base-La_base\ns_add_u32 s29, s29, La_base-L_pc\n" + add64(76, "s29") + "\ns_mov_b32 s78, Lg_end-Lg_base\ns_mov_b32 s79, 0x20000")
    if C.PAD: A("s_lshl_b32 s29, s20, 7\nv_lshl_add_u32 v24, v3, 9, s29\nbuffer_load_dword a141, v24, s[76:79], 0 offen\nv_lshl_add_u32 v25, v4, 12, s29\nbuffer_load_dword a141, v25, s[76:79], 0 offen")
    A("v_lshrrev_b32 v24, 3, v2\nv_and_b32 v25, 7, v2")
    A(f"s_bfe_u32 s23, s2, 0x20004\ns_bfe_u32 s3, s2, {0x10002 if C.OWN else 0x10001}\ns_lshl_b32 s29, s3, 2\ns_add_u32 s23, s23, s29" + ("\ns_mov_b32 s3, 0" if C.NOROT else ""))
    A("v_and_b32 v26, 6, v24\nv_xor_b32 v26, v25, v26\nv_lshlrev_b32 v17, 12, v24\nv_lshl_add_u32 v17, v26, 4, v17\ns_lshl_b32 s29, s20, 17\nv_add_u32 v16, s29, v17")
    A("s_lshr_b32 s38, s2, 6\ns_lshl_b32 s80, s38, 15\ns_and_b32 s39, s38, 2\ns_add_u32 s38, s38, s39\ns_lshl_b32 s39, s20, 3\ns_add_u32 s38, s38, s39\ns_lshl_b32 s84, s38, 10")
    A(f"s_lshl_b32 s64, s23, 19\ns_lshl_b32 s39, s3, 10\ns_add_u32 s64, s64, s39\ns_add_u32 s64, s64, {128*C.KO}\n" + srd(4, 255 * 2048 + 128))
    for i in range(1, 4): A(f"s_xor_b32 s{80+i}, s80, {i<<15}\ns_xor_b32 s{84+i}, s84, {((i&1) + 4*(i>>1)) << 10}")
    if C.OWN: A("s_lshr_b32 s24, s2, 6\ns_and_b32 s29, s2, 3\ns_lshl_b32 s29, s29, 2\ns_add_u32 s24, s24, s29")
    else: A("s_lshr_b32 s24, s2, 6\ns_and_b32 s29, s2, 1\ns_lshl_b32 s29, s29, 2\ns_add_u32 s24, s24, s29\ns_and_b32 s29, s2, 4\ns_lshl_b32 s29, s29, 1\ns_add_u32 s24, s24, s29")
    A("s_lshl_b32 s29, s35, 10\ns_add_u32 s36, s29, 6144\ns_lshl_b32 s29, s35, 8\ns_add_u32 s31, s29, 128")
    A("v_and_b32 v26, 2, v24\nv_xor_b32 v25, v25, v26\ns_and_b32 s39, s23, 1\ns_lshl_b32 s29, s39, 2\nv_xor_b32 v25, s29, v25")
    A("s_lshl_b32 s29, s20, 1\ns_add_u32 s29, s29, s39\ns_lshl_b32 s29, s29, 3\nv_add_u32 v26, s29, v24\nv_mul_u32_u24 v26, s36, v26\nv_lshl_add_u32 v18, v25, 4, v26")
    A("s_xor_b32 s29, s29, 8\nv_add_u32 v26, s29, v24\nv_mul_u32_u24 v26, s36, v26\nv_xor_b32 v25, 4, v25\nv_lshl_add_u32 v19, v25, 4, v26")
    A(f"s_lshl_b32 s65, s3, 9\ns_add_u32 s65, s65, {64*C.KO}\ns_mul_i32 s65, s65, s36\ns_mul_i32 s31, s31, s24\ns_add_u32 s65, s65, s31")
    A(f"s_mul_i32 s10, s36, 63\ns_lshl_b32 s29, 2, s30\ns_add_u32 s10, s10, s29\ns_add_u32 s10, s10, 128\ns_mov_b32 s11, 0x20000\ns_mul_i32 s27, s20, 7168\ns_add_u32 s27, s27, {WB}\ns_mul_i32 s39, s39, 3072\ns_and_b32 s38, s23, 2")
    for k in range(3):
        A(f"s_cmp_eq_u32 s38, 0\ns_cselect_b32 s29, {k}, {(k+2)%3}\ns_lshl_b32 s{94+k}, s29, s30\ns_lshl_b32 s29, s29, 10\ns_add_u32 s29, s29, s27")
        A(f"s_add_u32 s{88+k}, s29, s39\ns_sub_u32 s29, s29, s39\ns_add_u32 s{91+k}, s29, 3072")
    if C.FINE == 1: A("s_memtime s[66:67]")
    A("s_mov_b32 m0, s84\ns_waitcnt lgkmcnt(0)")
    if C.FINE == 1:
        A("v_writelane_b32 v1, s100, 0\nv_writelane_b32 v1, s98, 1\ns_mov_b32 s100, s66"); C.names += ["t0", "pre"]
    A(ts("karg"))
    A("s_add_u32 s4, s60, s64\ns_addc_u32 s5, s61, 0")
    xd = lambda i: f"buffer_load_dwordx4 v16, s[4:7], s{80+i} offen lds\nbuffer_load_dwordx4 v16, s[4:7], s{80+i} offen offset:2048 lds"
    A(xd(0))
    A("s_mov_b32 m0, s88\ns_cmp_eq_u32 s35, 0\ns_cselect_b32 s8, s8, s68\ns_cselect_b32 s9, s9, s69\n" + add64(8, "s65"))
    for k in range(3):
        A((f"s_mov_b32 m0, s{88+k}\n" if k else "") + f"buffer_load_dwordx4 v18, s[8:11], s{94+k} offen lds")
    A("s_mov_b32 m0, s85\n" + xd(1))
    A("s_lshr_b32 s21, s20, 1\ns_and_b32 s22, s20, 1\ns_mov_b32 s33, 0x3f803f80")
    A("s_bfe_u32 s25, s2, 0x20003\ns_and_b32 s29, s2, 4\ns_add_u32 s25, s25, s29\ns_lshl_b32 s25, s25, 1\ns_add_u32 s25, s25, s3\ns_lshr_b32 s26, s2, 5".replace("s_add_u32 s25, s25, s3", "s_bfe_u32 s29, s2, 0x10001\ns_add_u32 s25, s25, s29"))
    C.common = C.names
    A("s_cmp_eq_u32 s35, 0\ns_cbranch_scc0 Lg_base\ns_branch La_base")
    role(A, True)
    role(A, False)
    A.lines = resolve_ds(resolve_vm(A.lines))
    if C.EXP:
        reg = None; L = []; nb = 0
        for l in A.lines:
            if l.endswith("_ret1:"): reg = "g1"
            if l.endswith("_epi:"): reg = "epi"
            if l.endswith("_g2:"): reg = "g2"
            if l.endswith("_fin:"): reg = None
            k = False
            if reg == "g2" and C.EXP & 4 and l.startswith("ds_read_b64_tr"): k = True
            if reg == "g2" and C.EXP & 8 and l.startswith("buffer_load_dwordx4") and ("v16" in l or "v19" in l): k = True
            if reg == "g1" and C.EXP & 16 and l.startswith("ds_read") and " a[" in l: k = True
            if reg == "g1" and C.EXP & 32 and l.endswith("lds") and "s31" not in l: k = True
            if reg == "epi" and C.EXP & 64 and l.startswith(("v_exp", "v_rcp", "v_pk_")): continue
            if reg == "g2" and C.EXP & 128 and l.startswith("v_mfma"): l = "s_nop 3"
            if reg == "g1" and C.EXP & 256 and l.startswith("v_mfma"): l = "s_nop 3"
            L.append("s_nop 0" if k else l)
        A.lines = L
    body = A.finish()
    hdr = HEADER + "; @launch grid=(256,1,1) block=(256,1,1) lds=163840\n" + (f"; FINE0 {' '.join(C.allnames[True])}\n; FINE1 {' '.join(C.allnames[False])}\n" if C.FINE else "") + '.amdgcn_target "amdgcn-amd-amdhsa--gfx950"\n'
    if C.PAD: body, C.npads = add_pads(hdr, body, [("La_base", "La_fin", "La", "La_ret"), ("Lg_base", "Lg_fin", "Lg", "Lg_ret")])
    open(path, "w").write(hdr + body + '.section .rodata,"a"\n.p2align 6\n' + kdesc(name))
    return A.npad

if __name__ == "__main__":
    print("pads", build("v6.s"))
    build("v6_fine.s", FINE=True)
    print({k: len(v) for k, v in C.allnames.items()}, C.npads, C.marg)
```

```python
import re

TRANS = ("v_exp_", "v_log_", "v_rcp_", "v_rsq_", "v_sqrt_", "v_sin_", "v_cos_")

def regs_of(tok):
    tok = tok.strip()
    tok = tok.lstrip("-")
    if tok.startswith("abs("): tok = tok[4:-1]
    if tok.startswith("|"): tok = tok.strip("|")
    m = re.fullmatch(r"([vas])(\d+)", tok)
    if m: return {(m.group(1), int(m.group(2)))}
    m = re.fullmatch(r"([vas])\[(\d+):(\d+)\]", tok)
    if m: return {(m.group(1), i) for i in range(int(m.group(2)), int(m.group(3)) + 1)}
    if tok == "vcc": return {("s", 106), ("s", 107)}
    if tok == "m0": return {("s", 124)}
    if tok == "exec": return {("s", 126), ("s", 127)}
    return set()

class Ins:
    def __init__(self, text):
        self.text = text
        t = text.split(";")[0].strip()
        self.op = t.split()[0] if t else ""
        rest = t[len(self.op):].strip()
        ops = [o.strip() for o in rest.split(",")] if rest else []
        if ops:
            last = ops[-1].split()
            self.mods = " ".join(last[1:]); ops[-1] = last[0] if last else ""
        else: self.mods = ""
        ops2 = []
        for o in ops:
            o0 = o.split()[0] if o.split() else o
            ops2.append(o0)
        self.ops = ops2
        op = self.op
        self.is_label = t.endswith(":") or op.startswith(".")
        self.mfma = op.startswith("v_mfma")
        self.valu = op.startswith("v_") and not self.mfma
        self.trans = op.startswith(TRANS)
        self.vmem = op.startswith(("buffer_", "global_"))
        self.ds = op.startswith("ds_")
        self.salu = op.startswith("s_")
        self.dma = self.vmem and " lds" in (" " + t)
        R = [regs_of(o) for o in ops2]
        self.w = set(); self.r = set(); self.c = set(); self.ab = set(); self.stdata = set()
        if self.is_label: return
        if self.mfma:
            self.w = R[0]; self.ab = R[1] | R[2]; self.c = R[3]; self.r = self.ab | self.c
        elif self.valu:
            if op.startswith("v_permlane") and "swap" in op:
                self.w = R[0] | R[1]; self.r = R[0] | R[1]
            elif op.startswith("v_cmp"):
                self.w = R[0]; self.r = set().union(*R[1:])
            elif op.startswith(("v_add_co", "v_sub_co", "v_addc_co", "v_subb_co")):
                self.w = R[0] | R[1]; self.r = set().union(*R[2:])
            elif op.startswith("v_nop"): pass
            else:
                self.w = R[0]; self.r = set().union(*R[1:]) if len(R) > 1 else set()
                if op.startswith(("v_fmac", "v_dot2c", "v_pk_fmac")) or "_dpp" in op: self.r |= R[0]
        elif self.vmem:
            if self.dma: self.r = set().union(*R) | {("s", 124)}
            elif "load" in op: self.w = R[0]; self.r = set().union(*R[1:])
            elif "store" in op or "atomic" in op:
                self.r = set().union(*R)
                d = R[0] if op.startswith("buffer_") else R[1]
                if "x3" in op or "x4" in op: self.stdata = d
                if "atomic" in op and "sc0" in t: self.w = R[0]
        elif self.ds:
            if "read" in op or "permute" in op or "swizzle" in op: self.w = R[0]; self.r = set().union(*R[1:])
            else: self.r = set().union(*R)
        elif self.salu:
            if op.startswith(("s_cmp", "s_waitcnt", "s_barrier", "s_nop", "s_cbranch", "s_branch", "s_endpgm", "s_sleep", "s_setprio")):
                self.r = set().union(*R) if R else set()
            else:
                self.w = R[0] if R else set(); self.r = set().union(*R[1:]) if len(R) > 1 else set()
    def states(self):
        if self.is_label: return 0
        if self.op == "s_nop": return int(self.ops[0]) + 1
        return 1

def vg(s): return {x for x in s if x[0] in "va"}
def sg(s): return {x for x in s if x[0] == "s"}

def need(p, c):
    n = 0
    if p.valu:
        if c.mfma and vg(p.w) & c.r: n = max(n, 2)
        if c.valu:
            if p.trans and vg(p.w) & c.r: n = max(n, 1)
            if (c.op.startswith("v_permlane") or "_dpp" in c.op) and vg(p.w) & c.r: n = max(n, 2)
            if c.op.startswith(("v_readlane", "v_readfirstlane")) and vg(p.w) & c.r: n = max(n, 1)
            if sg(p.w) & c.r: n = max(n, 4 if c.op.startswith(("v_readlane", "v_writelane")) else 2)
            if "sdwa" in p.op and vg(p.w) & (c.r | c.w): n = max(n, 1)
        if p.op.startswith("v_dot") and vg(p.w) & (c.r | c.w) and not (c.op == p.op and p.w == c.w): n = max(n, 3)
        if c.vmem and sg(p.w) & c.r: n = max(n, 5)
        if c.salu and sg(p.w) & c.r: n = max(n, 2)
    if p.mfma:
        big = "32x32" in p.op
        if c.mfma:
            if p.w & c.ab: n = max(n, 12 if big else 8)
            if p.w & c.c and p.w != c.c: n = max(n, 10 if big else 6)
            if p.w & c.w and p.w != c.c: n = max(n, 10 if big else 6)
        elif c.valu or c.vmem or c.ds:
            if p.w & (c.r | c.w): n = max(n, 12 if big else 8)
            if c.valu and p.c & c.w: n = max(n, 7 if big else 3)
    if p.stdata and p.stdata & c.w: n = max(n, 2)
    if p.salu and ("s", 124) in p.w and c.dma: n = max(n, 1)
    return n

class Asm:
    def __init__(self): self.lines = []
    def __call__(self, text):
        for l in text.split("\n"):
            l = l.strip()
            if l: self.lines.append(l)
    def finish(self, verbose=False):
        out = []; hist = []; npad = 0
        for l in self.lines:
            if l.startswith(";"): out.append(l); continue
            ins = Ins(l)
            if not ins.is_label:
                dist = 0; pad = 0
                for p in reversed(hist):
                    if dist >= 12: break
                    k = need(p, ins) - dist
                    if k > pad: pad = k
                    dist += p.states()
                if pad > 0:
                    nop = Ins(f"s_nop {pad-1}"); out.append("  " + nop.text); hist.append(nop); npad += pad
                    if verbose: print("pad", pad, "before", l)
                hist.append(ins)
                if len(hist) > 40: hist = hist[-20:]
                out.append("  " + l)
            else: out.append(l)
        self.npad = npad
        return "\n".join(out) + "\n"

def kdesc(name, vgpr=512, acc=256, sgpr=102):
    return f""".amdhsa_kernel {name}
  .amdhsa_next_free_vgpr {vgpr}
  .amdhsa_next_free_sgpr {sgpr}
  .amdhsa_accum_offset {acc}
  .amdhsa_group_segment_fixed_size 0
  .amdhsa_kernarg_size 88
  .amdhsa_user_sgpr_count 2
  .amdhsa_user_sgpr_kernarg_segment_ptr 1
  .amdhsa_system_sgpr_workgroup_id_x 1
  .amdhsa_float_denorm_mode_32 3
.end_amdhsa_kernel
"""

def f32(x):
    import struct
    return "0x%08x" % struct.unpack("<I", struct.pack("<f", x))[0]

def interleave(main, side, start=0, end=None, per_gap=1):
    n = len(main)
    if end is None: end = n
    slots = [[] for _ in range(n)]
    m = len(side)
    for i, s in enumerate(side):
        pos = start + (i * (end - start)) // max(m, 1)
        slots[min(pos, n - 1)].append(s)
    out = []
    for i, x in enumerate(main):
        out.append(x); out.extend(slots[i])
    return out

def resolve_vm(lines):
    out = []; hist = []; done = -1
    for l in lines:
        if l.startswith("VMRESET"): hist = []; done = -1; continue
        if l.startswith("VMSAVE"): saved = (done, len(hist)); continue
        if l.startswith("VMRESTORE"): assert len(hist) == saved[1]; done = saved[0]; continue
        if l.startswith("VMFAKE"):
            _, tg, n = l.split(); hist += [{tg}] * int(n); continue
        if l.startswith("WAITVM"):
            body = l[6:].split("|"); tags = body[0].split(); extra = body[1].strip() if len(body) > 1 else ""
            n = 0; found = set(); best = None
            for ix in range(len(hist) - 1, -1, -1):
                tg = hist[ix]
                hit = [t for t in tags if t in tg]
                if hit and best is None: best = n; bix = ix
                found.update(hit)
                if "cond" not in tg: n += 1
            missing = set(tags) - found
            assert not missing, ("WAITVM tag never issued", missing)
            best = min(best, 63)
            if bix <= done:
                if extra: out.append(f"s_waitcnt {extra}")
                continue
            done = bix
            out.append(f"s_waitcnt vmcnt({best}) {extra}".strip()); continue
        if l.startswith(("buffer_", "global_")):
            tg = set(re.findall(r"@(\S+)", l.split(";", 1)[1])) if ";" in l else set()
            hist.append(tg)
            l = l.split(";")[0].strip()
        out.append(l)
    return out

def place(M, streams):
    n = len(M); slots = [[] for _ in range(n)]
    for items, start, end, *grid in streams:
        for i, it in enumerate(items):
            pos = start + (i * (end - start)) // max(len(items), 1)
            if grid:
                g = grid[0]; ns = (end - start + g - 1) // g; pos = start + g * ((i * ns) // max(len(items), 1))
            if isinstance(it, str): it = (it,)
            for k, x in enumerate(it):
                if x:
                    assert pos + k < n, (pos, k, n)
                    slots[pos + k].append(x)
    out = []
    for i in range(n):
        out.append(M[i]); out.extend(slots[i])
    return out

import subprocess, os, tempfile
def inst_sizes(text):
    d = tempfile.mkdtemp(); s = os.path.join(d, "a.s"); o = os.path.join(d, "a.o")
    open(s, "w").write(text)
    subprocess.run(["clang", "-x", "assembler", "-target", "amdgcn-amd-amdhsa", "-mcpu=gfx950", "-c", s, "-o", o], check=True)
    out = subprocess.run(["llvm-objdump", "-d", "--mcpu=gfx950", o], capture_output=True, text=True, check=True).stdout
    L = []
    for l in out.split("\n"):
        m = re.search(r"//\s*([0-9A-F]{12}):\s*((?:[0-9A-F]{8}\s*)+)", l)
        if m: L.append((int(m.group(1), 16), 4 * len(m.group(2).split())))
    return L

def add_pads(hdr, body, regions, nchain=4, wide=False):
    lines = body.split("\n")
    stub = "\n".join(f"{p}_pad{k}:" for _, _, p, _ in regions for k in range(1, 17))
    noalign = "\n".join(l for l in lines if not l.startswith(".p2align"))
    sz = [s for _, s in inst_sizes(hdr + noalign + "\n" + stub + "\n")]
    out = []; i = 0; cur = None; off = 0; npad = {}; unsafe = False; pend = []
    for l in lines:
        t = l.strip()
        isins = l.startswith("  ") and t
        for r in regions:
            if t == r[0] + ":": cur = r; off = 0; npad[r[2]] = 0
            if t == r[1] + ":": cur = None
        if isins:
            if cur and not unsafe and off >= 4096 * (npad[cur[2]] + 1):
                assert off - 4096 * (npad[cur[2]] + 1) < 56, off
                npad[cur[2]] += 1; out.append(f"{cur[2]}_pad{npad[cur[2]]}:"); out.append(("PAD", cur, npad[cur[2]])); off += 4
                if wide: out.append("  s_nop 0"); off += 4
            if t.startswith(("s_mov_b32 exec_lo, s", "s_mov_b64 exec, 0")) and t != "s_mov_b64 exec, 0x101": unsafe = True
            if t.startswith("s_mov_b64 exec, -1"): unsafe = False
            off += sz[i]; i += 1
        out.append(l)
    assert i == len(sz), (i, len(sz))
    res = []
    for l in out:
        if isinstance(l, tuple):
            _, r, k = l
            res.append(f"  s_cbranch_execz {r[2]+'_pad'+str(k+4) if 5 <= k <= 8 and k + 4 <= npad[r[2]] else r[3] + str(0 if k < 5 else (1 if k < 13 else 2))}")
        else:
            m = re.fullmatch(r"(\s*s_c?branch\S*) (\w+)_pad(\d+)", l)
            if m and int(m.group(3)) > npad[m.group(2)]: l = f"{m.group(1)} {m.group(2)}_ret{2 if int(m.group(3)) > 12 else 1}"
            res.append(l)
    assert all(n <= 15 for n in npad.values()), npad
    return "\n".join(res), npad

def resolve_ds(lines):
    out = []; hist = []; done = -1
    for l in lines:
        if l.startswith("WAITDS"):
            tags = set(l.split()[1:])
            last = {t: max((i for i, tg in enumerate(hist) if t in tg), default=None) for t in tags}
            assert None not in last.values(), l
            ix = max(last.values())
            if ix > done:
                n = min(len(hist) - 1 - ix, 14); out.append(f"s_waitcnt lgkmcnt({n})"); done = len(hist) - 1 - n
            continue
        if l.startswith("ds_"):
            hist.append(set(re.findall(r"@(\S+)", l.split(";", 1)[1])) if ";" in l else set()); l = l.split(";")[0].strip()
        m = re.search(r"s_waitcnt.*lgkmcnt\((\d+)\)", l)
        if m: done = max(done, len(hist) - 1 - int(m.group(1)))
        out.append(l)
    return out

def align8(hdr, body, mode):
    lines = body.split("\n")
    labels = set(re.findall(r"\b(L[ag]_pad\d+)\b", body))
    noalign = "\n".join(l for l in lines if not l.startswith(".p2align"))
    sz = [s for _, s in inst_sizes(hdr + noalign + "\n" + "\n".join(x + ":" for x in labels) + "\n")]
    ins = [k for k, l in enumerate(lines) if l.startswith("  ") and l.strip()]
    size = dict(zip(ins, sz)); out = list(lines); off = 0; want = 4 if mode & 4 else 0; last4 = None; n = 0; dense = False
    for p, k in enumerate(lines):
        if k.startswith(".p2align"): off = 0; last4 = None
        if k.endswith("_epi:") or k.endswith("_xdone:"): dense = True
        if k.endswith("_g2:") or k.endswith("_fin:"): dense = False
        if p not in size: continue
        if size[p] == 8 and off % 8 != want and last4 is not None:
            nxt = [size[q] for q in ins[ins.index(p):ins.index(p) + 3]]
            t = out[last4].strip(); op = t.split()[0]
            if nxt == [8, 8, 8]:
                if op.startswith("v_") and mode & 1 and not op.startswith(("v_readfirstlane", "v_permlane", "v_nop")):
                    out[last4] = "  " + op + "_e64" + t[len(op):]; off += 4; n += 1
                elif mode & 16 and re.fullmatch(r"s_(addc_u32|subb_u32|add_u32|mov_b32|lshl_b32|lshr_b32|and_b32) .*, \d+", t):
                    h, c = t.rsplit(", ", 1); out[last4] = f"  {h}, lit({c})"; off += 4; n += 1
                elif mode & 2 or (mode & 8 and dense): out[last4] += "\n  s_nop 0"; off += 4; n += 1
            last4 = None
        if size[p] == 4: last4 = p
        off += size[p]
    return "\n".join(out), n
```

```python
import sys, math
from asmlib import *
NAME = "parallel_sum__sliding_local_dilated__dense_activation_gelu__prompt"
MB = 1 << 20
WS_A2 = 8 * MB; WS_XCH = 32 * MB; WS_ST = 48 * MB
O_ST, O_CS, O_FL, O_XF, O_YF = 0, 16384, 262144, 262144 + 32768, 262144 + 65536
A2S = 144 * 1024
class C:
    FINE = False; PROBE = None; names = []; allnames = {}
    NFL = 0; A_AUX = "sc1"; ST_AUX = "sc1"; OUT_AUX = "sc1"; PF = True; CPF = True; CPH = False; PAD = True; ROT = True; PRE = 0; STJ = (1, 1); PF0 = (8, 6); NOROT = False
    SPIN = 1 << 16; DA = 4; NW = (14, 14); BM = 0; marg = {}; CAPW = 7; SWF = 4; GLAST = True; XU = (4, 3); GF = (0, 3, 6); YCHK = 3; CAPN = 3; NPRE = 7; NA0 = (2, 2); RP = None; XCHK = 2; XSL = 1; XD = (3, 3); YD = 3; KB = 2; KBW = 2; GRID = 3; RE = 6; AL = 9; NOC0 = False; OT = True; JIT = 0; CSH = (1, 0, 0); XST = 9216; A2P = 512; HS_AUX = 'sc1'; FS = 8; XS_ = 4; YS_ = 5; FCL = False; OWN = True; QP = True; KO = 0; BMIX = None; WX = 0; PF2 = True; XAUX = ''; WAUX = ''; HAUX = ''; PAUX = ''; HXP = 0; C0 = '0'; SFX = (0, 9, 9, 9); CAP0 = 6; UC = 14; SWM = 1; CJS = (12, 12, 13); CJB = (); CG = (); SPL = (0, 0.4, 0.7, 1); HF = 2; OE = 2; HP = 8; CJ = 5; AD = 3; CF = True; HC = 2; S0E = (8, 20); WS = True; MJ = 0; MRG = "xX:04 wW:016 xX:123|wW:2345"; SEQ = (("w0:345 x0:23 w1:01 x1:0123", "w1:2345 w2:012345"), ("w0:6345 x0:23 x1:0123 w1:601", "w1:2345 w2:601", "x2:0123 w2:2345|w3:6012345")); IDLE = None; XJ = (8, 8, 9, 9, 10, 10, 11, 11); PFL = ((), tuple(range(10, 18)) + tuple(range(10))); PFN = 4; D0 = 1; QS = 12; B0 = -2.0; EXP = 0; XR = 1; SM = 6.0
XS = lambda s: s * 34816
WB = 69632
TB = 155648
T_CS, T_B1, T_B2 = TB + 2560, TB + 3584, TB + 4608
NB = 9
BS = lambda j: ((j + 6) % NB) * 16384
R = lambda d: f"v[{d}:{d+3}]"
aR = lambda d: f"a[{d}:{d+3}]"
Pn = lambda r: f"v[{r}:{r+1}]"
MF = "v_mfma_f32_16x16x32_bf16"
cvt = lambda d, s: f"v_cvt_pk_bf16_f32 v{d}, v{s}, v{s+1}"
srd = lambda r, n: f"s_mov_b32 s{r+2}, {n}\ns_mov_b32 s{r+3}, 0x20000"
add64 = lambda r, x: f"s_add_u32 s{r}, s{r}, {x}\ns_addc_u32 s{r+1}, s{r+1}, 0"
sub64 = lambda r, x: f"s_sub_u32 s{r}, s{r}, {x}\ns_subb_u32 s{r+1}, s{r+1}, 0"

HEADER = """; out = x + attn(LN(x)) @ wo + gelu(LN(x) @ w1 + b1) @ w2 + b2      (S=2048, D=1024, F=3584, 32 heads, window 8, dilation 2)
;    epilogue: rstd*(acc - mean*colsum(W)) with row statistics and column sums computed in the loop and handed over in ws.
"""

def ts(name):
    if C.JIT:
        C.uid = getattr(C, "uid", 0) + 1; u = C.uid
        return (f"s_memtime s[100:101]\ns_waitcnt lgkmcnt(0)\ns_mul_i32 s100, s100, 0x9E3779B1\ns_lshr_b32 s101, s100, 29\ns_cmp_lg_u32 s101, 0\ns_cbranch_scc1 Lj{u}e\n"
                f"s_bfe_u32 s101, s100, {(C.JIT << 16) | 12}\nLj{u}:\ns_sleep 4\ns_sub_u32 s101, s101, 1\ns_cmp_gt_i32 s101, 0\ns_cbranch_scc1 Lj{u}\nLj{u}e:")
    if not C.FINE or (C.FINE == 2 and name not in ("RTstart", "RTend", "x")) or (C.FINE == 3 and name[:2] != "RT" and name != "x"): return ""
    i = len(C.names); C.names.append(name)
    t = f"s_waitcnt lgkmcnt(0)\nv_writelane_b32 v1, s100, {i-1}\n" if i else ""
    return t + ("s_memrealtime s[100:101]" if name.startswith("RT") else "s_memtime s[100:101]")
def stamp_out(A):
    if not C.FINE: return
    A(ts("st")); A("s_waitcnt vmcnt(0)"); A(ts("end")); A(ts("RTend")); A(ts("x")); C.names.pop()
    if C.PROBE:
        a, b, wg = C.PROBE; C.uid = getattr(C, "uid", 0) + 1; u = C.uid
        if a in C.names and b in C.names:
            A(f"s_waitcnt lgkmcnt(0)\ns_cmp_lg_u32 s37, {wg*4}\ns_cbranch_scc1 Lpr{u}e\nv_readlane_b32 s4, v1, {C.names.index(b)}\nv_readlane_b32 s5, v1, {C.names.index(a)}\ns_memrealtime s[8:9]\ns_sub_u32 s4, s4, s5\n{'s_lshl_b32 s4, s4, 2' if a.startswith('RT') else 's_lshr_b32 s4, s4, 2'}\ns_add_u32 s4, s4, 1000\ns_min_u32 s4, s4, 100000")
            A(f"Lpr{u}:\ns_memrealtime s[6:7]\ns_waitcnt lgkmcnt(0)\ns_sub_u32 s6, s6, s8\ns_cmp_lt_u32 s6, s4\ns_cbranch_scc1 Lpr{u}\nLpr{u}e:")
        return
    A("s_load_dwordx2 s[4:5], s[0:1], 80\ns_waitcnt lgkmcnt(0)\n" + add64(4, WS_ST + 0x40000))
    A("s_lshl_b32 s6, s2, 2\ns_add_u32 s6, s6, s20\ns_lshl_b32 s6, s6, 8\nv_lshl_add_u32 v0, v2, 2, s6\nglobal_store_dword v0, v1, s[4:5]")
def emit(A, L):
    for d in L:
        if isinstance(d, str): A(d)
        else:
            for x in d:
                if x: A(x)
def lines(s): return [l for l in s.split("\n") if l.strip()]

def spin(slow, name, loads, test):
    slow.append(f"{name}_slow:\ns_mov_b32 s39, {C.SPIN}\n{name}_spin:\ns_sleep 8\n{loads}\ns_waitcnt vmcnt(0)\n{test}\ns_cbranch_vccz {name}_back\n"
                f"s_sub_u32 s39, s39, 1\ns_cmp_lg_u32 s39, 0\ns_cbranch_scc1 {name}_spin\ns_branch {name}_back")
    return f"{test}\ns_cbranch_vccnz {name}_slow\n{name}_back:"

def g2_steps(att):
    f = abs(C.NFL) // 2; no = C.NW[att] - 12
    pair = lambda i, lo, hi: int((i ^ 1) in range(lo, hi))
    wide = [("h", 3 * i + l, (3, 93, 12), 1 + l, i & 1, True) for l in range(3) for i in range(4)]
    wide += [("o", i, (pair(i, 0, no), 93, 4), 0, i & 1, True) for i in range(no)]
    nar = [("o", 8 * b + i, (pair(i, no, 4), 92, 4), 0, i & 1, False) for b in range(2) for i in range(no, 4)]
    nar += [("h", 48 + u, (pair(u, f, 4), 92, 4), 0, u & 1, False) for u in range(f, 4)]
    if f and att == (C.NFL < 0): nar += [("h", 48 + u + 4 * b, None, 0, 0, False) for u in range(f) for b in range(2)]
    return wide + nar

def role(A0_, att):
    A = A0_
    P = "La" if att else "Lg"
    slow = []
    stride = 6144 if att else 7168
    nblk = 7 if att else 6
    A("VMRESET")
    C.names = list(C.common); C.allnames[att] = C.names
    A("VMFAKE x0 4\nVMFAKE w0 3")
    SEQ = C.SEQ[att]
    base = {"x": 0, "w": 0, "h": 0}; left = {}
    def adv(k, j, n, reg, inc, wrap):
        left[(k, j)] = left.get((k, j), n) - 1; t = []
        while left.get((k, base[k])) == 0:
            t.append(add64(reg, inc) + ("\n" + sub64(reg, wrap) if base[k] in (7 - C.KO, 15 - C.KO) and base[k] < 15 else "")
                     + (f"\ns_sub_u32 {wrap}, {16*inc}, {wrap}" if base[k] == 7 - C.KO else "")); base[k] += 1
        return "\n".join(t) or None
    def px(j, i):
        d = 128 * (j - base["x"]); assert d == 0
        if i == 4: return [(f"s_add_u32 m0, s28, {XS(j%2) - d}", f"buffer_load_dwordx4 v17, s[4:7], 0 offen offset:{d} {C.XAUX} lds ; @x{j}", adv("x", j, 4, 4, 128, "s64"))]
        assert XS(j % 2) >= d
        return [(f"s_add_u32 m0, s{84+i}, {XS(j%2) - d}", f"buffer_load_dwordx4 v16, s[4:7], s{80+i} offen offset:{d} {C.XAUX} lds ; @x{j}"),
                (None, f"buffer_load_dwordx4 v16, s[4:7], s{80+i} offen offset:{d+2048} {C.XAUX} lds ; @x{j}", adv("x", j, 4, 4, 128, "s64"))]
    def pw(j, k):
        if k == 6:
            d = (j - base["h"]) * 64 * 7168
            return [(f"s_add_u32 m0, s27, {(j%3)*28672 + 6144}" + (f"\ns_mov_b32 s31, {d}" if d else ""), f"buffer_load_dwordx4 v20, s[68:71], {'s31' if d else '0'} offen {C.HAUX} lds ; @w{j}", adv("h", j, 1, 68, 64 * 7168, "s97"))]
        d = (j - base["w"]) * 64 * stride; assert d == 0
        return [(f"s_add_u32 m0, s{88+k}, {(j%3)*28672}" + (f"\ns_add_u32 s31, s{94+k%3}, {d}" if d else ""), f"buffer_load_dwordx4 v{18+k//3}, s[8:11], s{31 if d else 94+k%3} offen {C.WAUX} lds ; @w{j}", adv("w", j, 6, 8, 64 * stride, "s65"))]
    def seq(spec):
        L = []
        for t in spec.replace(".", ":").split():
            k, j, ps = t[0], int(t[1:t.index(":")]), t[t.index(":") + 1:]
            if j > 15: continue
            for p in map(int, ps):
                if p < (4 if k == "x" else 6 + att): L += (px if k == "x" else pw)(j, p)
        return L
    seq("x0:01 w0:012")
    A(f".p2align 12\n{P}_base:\ns_load_dwordx2 s[52:53], s[0:1], {64 if att else 56}")
    A("v_lshrrev_b32 v5, 5, v2\nv_and_b32 v6, 3, v2")
    for i in range(4): A(f"v_accvgpr_write_b32 a{136+i}, s33")
    if att:
        A("v_lshrrev_b32 v24, 2, v2\nv_xor_b32 v25, v5, v6\ns_lshl_b32 s29, s20, 4\nv_add_u32 v24, s29, v24\nv_mul_u32_u24 v24, 7168, v24\nv_lshl_add_u32 v20, v25, 4, v24")
        A(f"s_mul_i32 s39, s3, {512*7168}\ns_xor_b32 s38, s24, {C.HXP}\ns_lshl_b32 s38, s38, 6\ns_add_u32 s39, s39, s38\ns_add_u32 s39, s39, {6144 + C.KO*64*7168}\n" + add64(68, "s39") + "\n" + srd(68, 63 * 7168 + 64))
    A(f"s_mov_b32 s78, {P}_end-{P}_base")
    A("s_lshr_b32 s29, s2, 4\ns_lshl_b32 s29, s29, 2\ns_add_u32 s29, s29, s20\ns_lshl_b32 s29, s29, 10\nv_and_b32 v24, 7, v2\nv_lshl_add_u32 v23, v24, 7, s29")
    if C.CPF: A("buffer_load_dword a141, v23, s[76:79], 0 offen")
    A(f"s_lshl_b32 s64, s3, 11\ns_mul_i32 s65, s3, {1024*stride}\ns_mul_i32 s97, s3, {1024*7168}")
    S0 = seq(SEQ[0]); n0 = 7 + att
    A_, U = A, []
    def A(t):
        for l in lines(t):
            if U and l.startswith(("s_addc", "s_subb", "s_cselect")): U[-1] += "\n" + l
            else: U.append(l)
    A("v_and_b32 v27, 6, v4\nv_xor_b32 v27, v27, v3\nv_lshlrev_b32 v27, 4, v27\nv_lshl_add_u32 v28, v4, 7, v27")
    A("s_lshl_b32 s29, s21, 14\nv_add_u32 v8, s29, v28\nv_xor_b32 v9, 64, v8")
    xo_base = "s_lshl_b32 s29, s25, 2\ns_add_u32 s29, s29, s20\ns_lshl_b32 s29, s29, 16\ns_lshl_b32 s39, s26, 8\ns_add_u32 s29, s29, s39"
    if not att: A(xo_base + "\nv_lshl_add_u32 v21, v4, 12, s29\nv_lshl_add_u32 v21, v3, 4, v21")
    A("v_bfe_u32 v27, v2, 2, 2\nv_and_b32 v28, 1, v3")
    A(f"v_mul_u32_u24 v29, 7168, v5\nv_add_u32 v29, {WB}, v29")
    A("v_mul_u32_u24 v23, 3072, v28\nv_add_u32 v23, v29, v23\nv_lshl_add_u32 v23, v27, 7, v23\nv_lshl_add_u32 v23, v6, 3, v23")
    A("v_lshrrev_b32 v24, 1, v27\nv_lshl_or_b32 v24, v28, 1, v24\ns_lshl_b32 s29, s22, 1\nv_xor_b32 v24, s29, v24")
    A("v_lshl_add_u32 v10, v24, 5, v23\nv_xor_b32 v11, 32, v10\nv_add_u32 v13, 57344, v10\nv_add_u32 v14, 57344, v11")
    A("s_and_b32 s38, s23, 3\ns_lshl_b32 s38, s38, 1\ns_add_u32 s38, s38, s21")
    A("s_min_u32 s39, s38, 5\ns_and_b32 s29, s39, 1\ns_lshl_b32 s29, s29, 5\nv_xor_b32 v23, s29, v10\ns_lshr_b32 s29, s39, 1\ns_lshl_b32 s29, s29, 10\nv_add_u32 v23, s29, v23\nv_add_u32 v24, 512, v23")
    A("s_and_b32 s29, s39, 6\ns_add_u32 s29, s29, s22\ns_lshl_b32 s29, s29, 1\ns_and_b32 s39, s39, 1\ns_add_u32 s29, s29, s39\ns_lshl_b32 s29, s29, 4\nv_add_u32 v31, s29, v4")
    if att:
        A("v_lshl_add_u32 v25, v28, 3, v27\nv_lshl_add_u32 v25, v25, 6, v29\nv_add_u32 v25, 6144, v25")
        A("v_and_b32 v26, 2, v6\nv_add_u32 v26, s22, v26\nv_xor_b32 v26, v26, v28\nv_lshl_add_u32 v25, v26, 4, v25")
        A("v_and_b32 v26, 1, v6\nv_lshl_add_u32 v12, v26, 3, v25\nv_add_u32 v15, 57344, v12\nv_add_u32 v25, 256, v12")
        A("v_and_b32 v26, 8, v4\nv_add_u32 v26, v26, v4\ns_lshl_b32 s29, s22, 3\ns_add_u32 s29, s29, 192\nv_add_u32 v26, s29, v26")
        A("s_cmp_ge_u32 s38, 6\ns_cselect_b64 vcc, -1, 0\nv_cndmask_b32 v23, v23, v12, vcc\nv_cndmask_b32 v24, v24, v25, vcc\nv_cndmask_b32 v31, v31, v26, vcc")
    A("v_add_u32 v25, 57344, v23\nv_add_u32 v26, 57344, v24")
    A(f"s_lshl_b32 s66, s24, 12\ns_add_u32 s66, s66, {O_CS + (0 if att else 65536)}\ns_lshr_b32 s29, s23, 2\ns_lshl_b32 s29, s29, 11\ns_add_u32 s29, s29, s66\nv_lshl_add_u32 v31, v31, 3, s29")
    A(f"s_cmp_lt_u32 s38, {nblk}\ns_cselect_b32 s38, 0xffff, 0")
    KS = 32 << C.FS; assert C.FS <= 8 and C.XS_ <= 6 and C.YS_ <= 6
    A(f"s_lshl_b32 s29, s23, 2\ns_lshr_b32 s39, s24, 2\ns_add_u32 s29, s29, s39\ns_lshl_b32 s29, s29, 2\ns_and_b32 s39, s24, 3\ns_add_u32 s29, s29, s39\ns_lshl_b32 s29, s29, 2\ns_add_u32 s29, s29, s20\ns_lshl_b32 s29, s29, {C.FS-4}")
    A(f"s_lshr_b32 s67, s2, 1\ns_lshl_b32 s67, s67, 2\ns_add_u32 s67, s67, s20\ns_lshl_b32 s67, s67, {C.XS_}\ns_add_u32 s67, s67, {O_XF}")
    if att: A(f"s_add_u32 s29, s29, {O_FL}\nv_mov_b32 v29, s29")
    else: A(f"s_add_u32 s29, s29, {O_FL + KS}\nv_lshl_add_u32 v29, v6, {C.FS+5}, s29\nv_writelane_b32 v29, s67, 3")
    A(f"s_lshl_b32 s99, s2, 2\ns_add_u32 s99, s99, s20\ns_lshl_b32 s99, s99, {C.YS_}\ns_add_u32 s99, s99, {O_YF}\nv_writelane_b32 v29, s99, {1 if att else 4}")
    if att:
        A(f"s_lshl_b32 s29, s23, 1\ns_add_u32 s29, s29, s21\ns_lshl_b32 s29, s29, 4\ns_add_u32 s29, s29, s24\ns_lshl_b32 s29, s29, 1\ns_add_u32 s33, s29, s22\ns_lshl_b32 s32, s33, 12\ns_add_u32 s32, s32, {MB}")
        for i in range(4): A(f"v_mov_b32 v{48+i}, -1")
    A("s_mov_b32 s12, s16\ns_mov_b32 s13, s17\ns_mov_b32 s56, s16\ns_mov_b32 s57, s17")
    for r, n in ((16, 4 * MB), (40, 2 * MB), (44, 7 * MB), (48, 256), (52, 4 * MB if att else 2048), (60, 4 * MB), (72, 7168), (56, 16 * MB)): A(srd(r, n))
    A(add64(56, WS_XCH))
    A("s_lshl_b32 s29, s2, 2\ns_add_u32 s37, s29, s20\ns_lshl_b32 s29, s37, 1\nv_lshrrev_b32 v30, 3, v4\nv_add_u32 v30, s29, v30\nv_and_b32 v27, 7, v2\nv_lshl_add_u32 v27, v3, 3, v27\nv_lshlrev_b32 v27, 4, v27\nv_lshl_add_u32 v27, v30, 11, v27")
    A(f"v_lshlrev_b32 v7, 4, v2\nv_mov_b32 v35, 1\nv_and_b32 v34, {C.CSH[0]-1}, v2\nv_lshlrev_b32 v34, {C.CSH[1]}, v34\nv_mov_b32 v32, 0\nv_mov_b32 v33, 0\nv_lshlrev_b32 v30, 3, v30\ns_lshl_b32 s29, s20, 4\nv_add_lshl_u32 v6, s29, v4, 7")
    A("s_lshr_b32 s29, s2, 1\ns_lshl_b32 s29, s29, 2\ns_add_u32 s29, s29, s20\ns_lshl_b32 s35, s29, 10\ns_lshr_b32 s29, s29, 7\ns_mul_i32 s29, s29, 1441792\ns_add_u32 s36, s35, s29")
    if C.PF2 and att:
        A("s_lshr_b32 s29, s35, 15\ns_sub_u32 s29, s29, 11\ns_max_i32 s29, s29, 0\ns_lshl_b32 s29, s29, 14\ns_sub_u32 s35, s35, s29\ns_and_b32 s29, s24, 7\ns_cmp_eq_u32 s29, 3\ns_cselect_b32 s35, 0x40000000, s35")
    A("s_waitcnt lgkmcnt(0)")
    A = A_; nu = len(U) - 1; one = lambda L: ["\n".join(x for x in d if x) for d in L]
    emit(A, place(U, [(one(S0[:n0]), int(nu * C.SPL[0]), int(nu * C.SPL[1])), (one(S0[n0:]), int(nu * C.SPL[2]), int(nu * C.SPL[3]))]))
    def pads(c):
        if not C.PAD: return
        k0 = [1, 5, 13][c]
        A("s_mov_b64 exec, 0")
        for w in range(3): A(f"s_cmp_eq_u32 s20, {w}\ns_cbranch_scc1 {P}_pad{k0+w}")
        A(f"s_branch {P + '_ws' if c == 2 and C.WS else P + '_pad' + str(k0 + 3)}\n{P}_ret{c}:\ns_mov_b64 exec, -1")
    stl = [(None, f"buffer_load_dwordx4 {aR(144+4*i)}, v27, s[60:63], 0 offen offset:{512*i} ; @st") for i in range(4)]
    A(ts("issued")); pads(0)

    acc = lambda m, n: 64 + 4 * (6 * m + n)
    xf = lambda h, i, kk: 32 * h + 8 * i + 4 * kk
    wf = lambda n, kk: 64 + 8 * n + 4 * kk
    def wofs(j):
        u = j % 3; return (u == 2), (0 if u == 2 else u * 28672)
    def rd_w(j, n):
        hiw, wo = wofs(j); wreg = 13 if hiw else 10; L = []
        for kk in range(2):
            for h in range(2):
                b = wf(n, kk) + 2 * h
                L.append(f"ds_read_b64_tr_b16 a[{b}:{b+1}], v{wreg+(n&1)} offset:{wo + kk*14336 + h*512 + (n>>1)*1024} ; @W{j}_{n}" if n < 6 else
                         f"ds_read_b64_tr_b16 a[{b}:{b+1}], v{wreg+2} offset:{wo + kk*14336 + h*256} ; @W{j}_{n}")
        return L
    rd_x = lambda j, h: [f"ds_read_b128 {aR(xf(h,i,kk))}, v{8+kk} offset:{XS(j%2) + (4*h+i)*2048} ; @X{j}_{h}" for i in range(4) for kk in range(2)]
    def rd_e(j):
        hiw, wo = wofs(j); L = []
        if j < 8: L += [f"ds_read_b64_tr_b16 a[{128+4*kk+2*h}:{129+4*kk+2*h}], v{(25 if hiw else 23)+h} offset:{wo + kk*14336}" for kk in range(2) for h in range(2)]
        return L
    def mfmas(j, h):
        L = []; end = []; t = [0]
        def chain(d, fa, fb):
            ks = (0, 1) if t[0] % 2 == 0 else (1, 0); t[0] += 1
            for q, kk in enumerate(ks): L.append(f"{MF} {d}, {aR(fa(kk))}, {aR(fb(kk))}, {(C.C0 if d != 'v[36:39]' else '0') if j == 0 and q == 0 else d}")
        for n in range(nblk):
            W = lambda kk: wf(n, kk)
            rows = [0, 1, 2, 3]
            for i in (rows if n % 2 == 0 else rows[::-1]):
                m = 4 * h + i
                d = R(48 + 4 * (n - 2)) if i == 4 else (R(acc(m, n)) if n < 6 else aR(176 + 4 * m))
                X = (lambda kk: 120 + 4 * kk) if i == 4 else (lambda kk: xf(h, i, kk))
                if att and n in (4, 5): chain(d, X, W)
                else: chain(d, W, X)
            end.append(len(L))
        if j < 8 and h == 1: chain("v[36:39]", lambda kk: 136, lambda kk: 128 + 4 * kk)
        return L, end
    def rs_a(j, end):
        S = [(rd_x(j, 0)[:4], 0, 8, 2), (rd_x(j, 0)[4:], 3, 19, 4)]
        for n in range(nblk - 1): S.append((rd_w(j, n), end[n], end[n] + 8, 2))
        return S
    def rs_b(j, end, n):
        L = (rd_w(j, nblk - 1) if j else []) + rd_x(j, 1) + rd_e(j)
        S = [(L, 0, min(2 * len(L), n - C.RE), 2)]
        for b in range(1, nblk): S.append(([f"WAITDS W{j}_{b}"], end[b - 1] - 1, end[b - 1]))
        return S
    def pf(i):
        if C.PF2:
            if not att or i > 20: return []
            if i < 16: return [(f"s_add_u32 s29, s35, {i*448*1024}", "buffer_load_dwordx4 a[140:143], v7, s[44:47], s29 offen")]
            return [(f"s_add_u32 s29, s35, {(i-16)*448*1024}", "buffer_load_dwordx4 a[140:143], v7, s[40:43], s29 offen")]
        L = C.PFL[att]
        if not C.PF or i >= len(L): return []
        g = L[i]
        if g >= 10: return [(f"s_add_u32 s29, s36, {(3*((g-10)&3)+((g-10)>>2))*131072}", "buffer_load_dwordx4 a[140:143], v7, s[44:47], s29 offen " + C.PAUX)]
        if g < 4: return [(f"s_add_u32 s29, s36, {(3*g+2)*131072}", "buffer_load_dwordx4 a[140:143], v7, s[44:47], s29 offen " + C.PAUX)]
        if g < 8: return [(f"s_add_u32 s29, s35, {(g-4)*524288}", "buffer_load_dwordx4 a[140:143], v7, s[40:43], s29 offen " + C.PAUX)]
        return [(f"s_add_u32 s29, s35, {48*131072 + (g-8)*524288}", "buffer_load_dwordx4 a[140:143], v7, s[44:47], s29 offen " + C.PAUX)]
    cpf = lambda lab, k=0, dst="a141": [(f"s_mov_b32 s29, {lab}-{P}_base+{8192*k}", f"buffer_load_dword {dst}, v6, s[76:79], s29 offen")] if C.CPF else []
    stm = []
    stm += [f"{MF} v[40:43], a[136:139], {aR(144+4*i)}, {'v[40:43]' if i else '0'}" for i in range(4)]
    stm += [f"{MF} v[44:47], {aR(144+4*i)}, {aR(144+4*i)}, {'v[44:47]' if i else '0'}" for i in range(4)]
    dpp = lambda v, m: f"v_add_f32_dpp v{v}, v{v}, v{v} {m} row_mask:0xf bank_mask:0xf"
    rnd = lambda v: [f"v_cvt_pk_bf16_f32 v{v}, v{v}, v{v}", f"v_and_b32 v{v}, 0xffff0000, v{v}"]
    st1 = ["v_lshlrev_b32 v41, 2, v3", "v_sub_u32 v41, v4, v41"]
    for q in range(4): st1 += [f"v_cmp_eq_u32 vcc, {q}, v41", dpp(40, ["quad_perm:[1,0,3,2]", "quad_perm:[2,3,0,1]", "row_half_mirror"][q]) if q < 3 else f"v_mul_f32 v40, {f32(1/1024)}, v40",
                               f"v_cndmask_b32 v42, {'v42' if q else '0'}, v{44+q}, vcc"]
    st1 += [dpp(42, "quad_perm:[1,0,3,2]"), "v_mul_f32 v41, v40, v40", dpp(42, "quad_perm:[2,3,0,1]"), rnd(40)[0], dpp(42, "row_half_mirror"), rnd(40)[1]]
    for sw in (16, 32): st1 += ["v_mov_b32 v43, v42", f"v_permlane{sw}_swap_b32 v42, v43", "v_add_f32 v42, v42, v43"]
    st2 = [f"v_mov_b32 v43, {f32(1/1024)}", "v_fma_f32 v44, v42, v43, -v41", "v_max_f32 v44, 0, v44"] + rnd(44) + [f"v_add_f32 v44, {f32(1e-5)}, v44"] + rnd(44) + ["v_sqrt_f32 v44, v44"] + rnd(44) + ["v_rcp_f32 v44, v44", "v_mul_f32 v45, v44, v40"]
    cph = lambda dst="a141": [("v_lshl_add_u32 v33, v4, 12, s99", f"buffer_load_dword {dst}, v33, s[76:79], 0 offen")] if C.CPH else []

    steps = g2_steps(att); NK = len(steps); DA = C.DA
    cls = {}
    def off(reg, tab, unit, j, imm):
        dc, sl = steps[j][2], steps[j][4]
        if dc is None: return f"s_mov_b32 s{reg}, {imm}"
        t = ""
        if cls.get((tab, sl)) != dc:
            cls[(tab, sl)] = dc
            t = f"s_mul_i32 s{tab+sl}, s{88+sl}, {dc[0]*unit}\ns_mul_i32 s{reg}, s{dc[1]}, {dc[2]*unit}\ns_add_u32 s{tab+sl}, s{tab+sl}, s{reg}\n"
        return t + f"s_add_u32 s{reg}, s{tab+sl}, {imm}"
    NW = C.NW[att]
    areg = lambda j, kk, i: 64 + 32 * (j % 4) + 16 * kk + 4 * i if j < NW else 64 + 16 * ((NW + j) % 8) + 8 * kk + 4 * i
    aprev = lambda j: j - 4 if j < NW else (NW - 4 + (j - NW) // 2 if j < NW + 8 else j - 8)
    def lda(j):
        kind, q = steps[j][:2]; ks = 2 * q + (0 if kind == "o" else 32); L = []
        for b in range(2):
            so = off(30, 80, 2048, j, ks * 1024 + b * A2S)
            for o in range(2 if steps[j][5] else 1):
                for kk in range(2):
                    L.append((so if kk + o == 0 else None, f"buffer_load_dwordx4 {aR(areg(j, kk, 2*o+b))}, v{7 if o else 16}, s[4:7], s30 offen offset:{kk*1024} {C.A_AUX} ; @a{j}"))
        return L
    def dma_b(j):
        kind, q = steps[j][:2]; L = []; sr = "s[40:43]" if kind == "o" else "s[44:47]"
        for hi in range(2):
            so = off(31, 68, 131072, j, q * 131072 + hi * 16384)
            for ln in range(2):
                L.append((f"s_add_u32 m0, s98, {BS(j) + hi*2048 + ln*896}" + ("\n" + so if ln == 0 else ""),
                          f"buffer_load_dwordx4 v19, {sr}, s31 offen offset:{128*ln} lds ; @b{j}"))
        return L
    setup_b = ["s_lshl_b32 s98, s20, 12", "v_lshrrev_b32 v18, 3, v2", "v_and_b32 v19, 7, v2", "v_and_b32 v20, 6, v18", "v_xor_b32 v19, v19, v20",
               "s_lshl_b32 s29, s20, 4\nv_add_u32 v18, s29, v18", "s_lshl_b32 s29, s26, 8\nv_lshl_add_u32 v18, v18, 11, s29", "v_lshl_add_u32 v19, v19, 4, v18",
               f"s_and_b32 s29, s25, 14\ns_lshl_b32 s29, s29, {C.FS+1}\ns_add_u32 s29, s29, {O_FL}", f"v_lshl_add_u32 v20, v4, {C.FS-4}, s29",
               f"s_and_b32 s29, s2, 3\ns_lshl_b32 s29, s29, {C.FS}\nv_add_u32 v20, s29, v20" if C.QP else f"v_lshl_add_u32 v20, v3, {C.FS}, v20"]
    setup_d = ["s_and_b32 s92, s2, 1\ns_bfe_u32 s29, s2, 0x10004\ns_xor_b32 s29, s29, s26", f"s_and_b32 s88, s29, {C.XR}\ns_sub_u32 s89, 0, s88\ns_and_b32 s93, s2, 3"]
    setup_a = ["s_and_b32 s29, s25, 1\ns_lshl_b32 s29, s29, 2\ns_add_u32 s29, s29, s20", f"s_mul_i32 s39, s29, {2*A2S}\nv_lshl_add_u32 v16, v2, 4, s39",
               f"s_xor_b32 s29, s29, 4\ns_mul_i32 s39, s29, {2*A2S}\nv_lshl_add_u32 v7, v2, 4, s39",
               f"s_lshr_b32 s29, s25, 1\ns_mul_i32 s29, s29, {16*A2S}\ns_add_u32 s29, s29, {WS_A2}", f"s_add_u32 s4, s12, s29\ns_addc_u32 s5, s13, 0\ns_mov_b32 s6, {16*A2S}",
               f"s_lshl_b32 s29, s23, 1\ns_add_u32 s29, s29, s21\ns_mul_i32 s29, s29, {8*A2S}", f"s_add_u32 s29, s29, {WS_A2}\n" + add64(12, "s29"), srd(12, 8 * A2S),
               f"s_movk_i32 s34, 0x1000\ns_mov_b32 s94, {KS}", f"s_mov_b32 s32, {2*KS}\ns_mov_b32 s28, {3*KS}"]
    c0 = -2 * math.sqrt(2 / math.pi) * math.log2(math.e); c1 = c0 * 0.044715
    ga = (-c1) ** (1 / 3); gb = -c0 / ga
    sc = 32 ** -0.5 * math.log2(math.e)
    rowp = lambda dst, a, off: f"ds_read_b32 v{dst}, v{a} offset:{off}\nds_read_b32 v{dst+1}, v{a} offset:{off+1280}"
    colreads = lambda ln: [f"ds_read_b128 {R(56+4*c)}, v31 offset:{256*ln+64*c}\nds_read_b128 {R(8+4*c)}, v31 offset:{1024+256*ln+64*c}" for c in range(2)]
    epi = [f"s_lshl_b32 s29, s21, 9\ns_add_u32 s29, s29, {TB}\nv_lshl_add_u32 v30, v4, 2, s29", f"s_mov_b32 s64, {f32(gb)}\ns_mov_b32 s65, {f32(ga)}"]
    if not att:
        epi += [rowp(40 + 2 * m, 30, 64 * m) for m in range(8)]
        epi += [f"s_lshl_b32 s29, s22, 7\ns_add_u32 s29, s29, {T_CS}\nv_lshl_add_u32 v31, v3, 4, s29"] + colreads(0)
        epi += ["s_mul_i32 s29, s24, 6\ns_add_u32 s29, s29, s22\ns_add_u32 s29, s29, 32", "s_lshl_b32 s29, s29, 10\nv_lshl_add_u32 v18, v2, 4, s29"]
    else:
        epi += ["v_lshl_add_u32 v31, v3, 4, s29", f"s_lshl_b32 s29, s22, 7\ns_add_u32 s29, s29, {T_CS}\nv_lshl_add_u32 v26, v3, 4, s29", "v_lshl_add_u32 v27, v4, 2, s29"]
        epi += [f"ds_read_b128 {R([8,12,40,44][n])}, v26 offset:{256*(n>>1)+64*(n&1)}" for n in range(4)]
        r4 = lambda m: f"ds_read_b128 {R(48+8*(m&1))}, v31 offset:{64*m}\nds_read_b128 {R(52+8*(m&1))}, v31 offset:{64*m+1280}"
        epi += ["ds_read_b32 v36, v27 offset:512\nds_read_b32 v37, v27 offset:576", rowp(24, 30, 448), r4(7)]
        epi += ["v_and_b32 v32, 1, v3", "v_lshlrev_b32 v21, 4, v32", "v_lshlrev_b32 v28, 4, v2", "v_lshlrev_b32 v32, 3, v2"]
        epi += [f"s_lshl_b32 s90, s33, 12\ns_add_u32 s90, s90, {MB}\ns_sub_u32 s91, s90, 131072", "s_cmp_lt_u32 s33, 32\ns_cselect_b32 s91, 0x40000000, s91"]
        epi += ["v_lshl_add_u32 v21, v5, 6, v21", f"s_lshl_b32 s29, s22, 5\ns_add_u32 s29, s29, {T_CS+768}\nv_add_u32 v21, s29, v21"]
        epi += ["s_lshl_b32 s29, s24, 1\ns_add_u32 s29, s29, s22\ns_lshl_b32 s29, s29, 10", "v_lshl_add_u32 v18, v2, 4, s29"]
        epi += [f"v_mul_u32_u24 v17, {A2S}, v5", "v_and_b32 v34, 31, v2", "v_lshl_add_u32 v17, v34, 4, v17",
                "s_lshl_b32 s29, s24, 1\ns_add_u32 s29, s29, s22\ns_add_u32 s29, s29, 256", "s_lshl_b32 s29, s29, 9\nv_add_u32 v17, s29, v17"]
        epi += [f"s_mov_b32 s86, {f32(sc)}\ns_mov_b32 s87, {f32(sc)}"]

    A("WAITVM x0 w0\ns_barrier"); A(ts("RTl0") if C.FINE == 3 else ts("land0"))
    emit(A, rd_w(0, 0) + rd_x(0, 0) + sum((rd_w(0, n) for n in range(1, nblk)), []))
    A("WAITDS W0_0 X0_0")
    M, end = mfmas(0, 0); n = len(M)
    DS = lambda L, n, a: (L, 0, n - 3, 4) if C.GRID & 2 and 4 * len(L) <= n and a == 0 else (L, a, n - 6)
    emit(A, place(M, rs_b(0, end, n) + [(seq(SEQ[1]), 0, n - C.S0E[att])]))
    pf0 = C.PF0[att]; STJ = C.STJ[att]; SJ = STJ + 2; AJ = SJ + C.AD; assert C.CJ < 7 and AJ <= 7
    c0load = "buffer_load_dword v33, v34, s[48:51], 0 offen sc1"
    tbl = ["buffer_load_dwordx2 v[40:41], v30, s[16:19], s66 offen sc1", "buffer_load_dwordx2 v[42:43], v30, s[16:19], s66 offen offset:2048 sc1"]
    for j in range(16):
        if j < 2: pads(j + 1)
        if j < 15: A(f"WAITVM x{j+1} w{j+1}" + {SJ: " st", AJ: " clr", 12: " c0", 13: " tb"}.get(j, "") + (" hc" if att and j == 7 else "") + " | lgkmcnt(0)\ns_barrier")
        else: A("s_waitcnt lgkmcnt(0)\ns_barrier")
        A(ts(f"p{j}"))
        if j == 3 and C.FINE == 3: A(ts("RTp3"))
        if C.IDLE and 3 <= j: A(C.IDLE)
        M, end = mfmas(j, 1); n = len(M); S = []; D = []
        if j < 15: S += rs_a(j + 1, end)
        if j == SJ: M = M + stm
        if j == SJ + 1: S.append((st2, 2, 40))
        if j == 11:
            D.append((None, c0load + " ; @c0"))
            sd = [f"v_min_u32 v30, {nblk*32-1}, v0", "v_and_b32 v27, 0xe0, v0", "v_lshl_add_u32 v27, v4, 1, v27", "v_and_b32 v28, 1, v3", "v_add_u32 v27, v27, v28",
                  "s_lshl_b32 s29, s23, 8\nv_add_lshl_u32 v27, v27, s29, 3"]
            if att: sd += ["v_and_b32 v31, 31, v0", "s_lshl_b32 s29, s24, 5\ns_add_u32 s29, s29, 3072\nv_add_lshl_u32 v31, v31, s29, 1"]
            else: sd += ["s_mul_i32 s29, s24, 192\nv_add_lshl_u32 v31, v30, s29, 1", "v_and_b32 v28, 127, v0", "s_lshl_b32 s29, s26, 7\nv_add_lshl_u32 v28, v28, s29, 1"]
            sd += ["v_lshlrev_b32 v30, 3, v30", "v_lshlrev_b32 v32, 2, v0"]
            S.append((sd, 4, 40))
        if j == 12:
            S.append(([spin(slow, P + "_c0", c0load, f"v_cmp_gt_u32 vcc, {0 if C.NOC0 else 256 // C.CSH[0]}, v33")], 0, 1))
            D += [(None, t + " ; @tb") for t in tbl]
            D.append((None, "buffer_load_dwordx2 v[44:45], v27, s[16:19], 0 offen sc1 ; @tb"))
            if not att: D.append((None, "buffer_load_ushort v46, v28, s[52:55], 0 offen ; @tb"))
            D.append((None, "buffer_load_ushort v36, v31, s[72:75], 0 offen ; @tb"))
        if j == 13:
            sd = [spin(slow, P + "_cs", "\n".join(tbl), "v_and_b32 v33, v41, v43\nv_cmp_ne_u32 vcc, 1, v33"), "v_add_f32 v40, v40, v42", f"v_add_u32 v32, {TB}, v32",
                  f"v_mul_f32 v42, {f32(ga)}, v44", f"v_mul_f32 v43, {f32(ga)}, v45", f"ds_write2st64_b32 v32, v42, v43 offset0:{18*att} offset1:{18*att+5}",
                  "v_lshlrev_b32 v36, 16, v36", f"v_mul_f32 v36, {f32(ga)}, v36", "ds_write2st64_b32 v32, v40, v36 offset0:10 offset1:14"]
            if att: sd += ["ds_write2st64_b32 v32, v44, v45 offset0:0 offset1:5"]
            if not att: sd += ["v_lshlrev_b32 v46, 16, v46", f"ds_write_b32 v32, v46 offset:{T_B2-TB}"]
            S.append((sd + setup_b, 1, n - 2))
        if att and j in (9, 10):
            sd = [f"v_mov_b32 v27, {f32(-1e30)}", "v_lshlrev_b32 v28, 2, v3", "v_sub_u32 v28, v28, v4",
                  "s_or_b32 s29, s23, s21\ns_cmp_lg_u32 s29, 0\ns_cselect_b64 s[30:31], -1, 0"]
            for q in range(2 * (j - 9), 2 * (j - 9) + 2):
                sel = lambda k: ["v_cndmask_b32 v33, v27, 0, vcc", f"v_accvgpr_write_b32 a{160+4*k+q}, v33"]
                sd += [f"v_add_u32 v32, {7+q}, v28", "v_cmp_gt_u32 vcc, 8, v32"] + sel(0) + ["v_cmp_lt_i32 vcc, 15, v32"] + sel(1)
                sd += ["s_and_b64 vcc, vcc, s[30:31]"] + sel(2)
            S.append((sd, 2, n - 4))
        sq = SEQ[2 + j] if 2 + j < len(SEQ) else (C.MRG if j < C.MJ else "xX:01234|wW:0123456").replace("X", str(j + 2)).replace("W", str(j + 3))
        D += seq(sq.split("|")[0])
        if j == 14: S.append((setup_a, 2, n - 4)); D += dma_b(1) + dma_b(2)
        if j == 15: S.append((epi, 0, n - 6)); D += dma_b(5) + dma_b(6) + (dma_b(7) if C.NPRE > 7 else [])
        S.append(DS(D, n, int(j == 12)))
        emit(A, place(M, S))
        if j < 15:
            A(f"WAITDS W{j+1}_0 X{j+1}_0")
            M, end = mfmas(j + 1, 0); n = len(M); S = rs_b(j + 1, end, n); D = []
            D += seq(sq.split("|")[1])
            if j == STJ: D += stl
            if j == SJ + 1:
                D = [(f"s_mov_b32 exec_lo, s38\ns_mov_b32 exec_hi, 0\ns_cbranch_execz {P}_ncl\nbuffer_store_dwordx2 v[32:33], v31, s[16:19], 0 offen sc1 ; @cond\n{P}_ncl:\ns_mov_b64 exec, -1", None),
                     (f"s_mov_b64 exec, {3 if att else 31}\nbuffer_store_dword v32, v29, s[16:19], 0 offen sc1 ; @clr\ns_mov_b64 exec, -1", None) if not C.FCL else
                     (f"s_cmp_eq_u32 s20, 3\ns_cbranch_scc0 {P}_nfc\ns_lshl_b32 s29, s2, 9\ns_add_u32 s29, s29, {O_FL}\nv_lshlrev_b32 v28, 3, v2\nbuffer_store_dwordx2 v[32:33], v28, s[16:19], s29 offen sc1 ; @cond\n{P}_nfc:", None),
                     ("s_mov_b64 exec, 0x101\nbuffer_store_dwordx2 v[44:45], v30, s[16:19], 0 offen sc1 ; @clr\ns_mov_b64 exec, -1", None)] + D
            if att and j == C.CJ:
                D = [(None, f"buffer_store_dwordx4 v[48:51], v7, s[16:19], s32 offen offset:{1024*i} sc1 ; @hc") for i in range(4)] + D
            if j == SJ: S.append((st1, 4, n - 1))
            if j in (2, 4, 6, 8, 10): D += cph()
            if not att: D += [(None, f"buffer_load_dwordx4 {aR(208+4*i)}, v21, s[60:63], 0 offen offset:{2048*(i>>2)+64*(i&3)}") for i in range(8) if C.XJ[i] == j]
            if j in (AJ, AJ + 1) and not C.NOC0:
                D.append((f"s_bfe_u32 s29, s2, 0x10004\ns_lshl_b32 s39, s20, 1\ns_add_u32 s29, s29, s39\ns_cmp_eq_u32 s29, {j-AJ}\ns_cbranch_scc0 {P}_na{j}\ns_lshr_b32 s29, s2, {C.CSH[2]}\ns_and_b32 s29, s29, {C.CSH[0]-1}\ns_lshl_b64 exec, 1, s29\n"
                          f"buffer_atomic_add v35, v34, s[48:51], 0 offen sc1 ; @cond\ns_mov_b64 exec, -1\n{P}_na{j}:", None))
            if j >= pf0: D += sum((pf(C.PFN * (j - pf0) + k) for k in range(C.PFN)), [])
            if j == 7: D.append((f"v_mov_b32 v37, 1\ns_mov_b32 exec_lo, s38\ns_mov_b32 exec_hi, 0\ns_cbranch_execz {P}_ncs\nbuffer_store_dwordx2 v[36:37], v31, s[16:19], 0 offen sc1 ; @cond\n{P}_ncs:\ns_mov_b64 exec, -1", None))
            if j == 13: D += [tuple(setup_d)] + dma_b(0)
            D += sum((cpf(P + "_epi", k) for k, jj in enumerate(C.CJS) if jj == j), [])
            D += sum((cpf(P + "_base", k + 1) for k, jj in enumerate(C.CJB) if jj == j), [])
            if j == 14: D += dma_b(3) + dma_b(4)
            S.append(DS(D, n, 0))
            emit(A, place(M, S))
    A(ts("g1end")); A(ts("RTg1")); A(ts("e0"))
    A(f"{P}_epi:")
    flag = lambda lane: f"s_mov_b64 exec, {1<<lane}\nbuffer_store_dword v35, v29, s[16:19], 0 offen sc1\ns_mov_b64 exec, -1"
    poll = lambda kind: f"buffer_load_dword v33, v{20 if kind else 27}, s[16:19], {['0','s94','s32','s28'][kind]} offen sc1"
    ptest = "v_cmp_eq_u32 vcc, 0, v33"
    acc2 = lambda m, n: 64 + 32 * m + 4 * n
    G2A = 236 if att else 232; GT = 252 if att else 244
    g2_addr = lines(f"v_bfe_u32 v{GT}, v2, 2, 3\nv_and_b32 v{GT+1}, 3, v2\nv_lshlrev_b32 v{GT+2}, 11, v5\nv_lshl_add_u32 v{GT+2}, v{GT}, 7, v{GT+2}\nv_lshl_add_u32 v{GT+2}, v{GT+1}, 3, v{GT+2}\n"
                    f"v_lshrrev_b32 v{GT}, 1, v{GT}\nv_lshl_add_u32 v{G2A}, v{GT}, 5, v{GT+2}\nv_add_u32 v{G2A+4}, 0x10000, v{G2A}") + [f"v_xor_b32 v{G2A+4+c}, {32*c}, v{G2A+4}" for c in (1, 2, 3)]
    g2_addr2 = [f"v_add_u32 v{G2A+8+c}, 0x10000, v{G2A+4+c}" for c in range(4)] + [f"v_xor_b32 v{G2A+c}, {32*c}, v{G2A}" for c in (1, 2, 3)]
    def reads2(j, p):
        st = BS(j); w = G2A + 4 * (st >> 16); st &= 0xffff
        fr = [(f >> 1, p, f & 1) if j < NK - 1 else (f & 3, f >> 2, p) for f in range(8)]
        return [f"ds_read_b64_tr_b16 a[{32*p+4*f+2*h}:{32*p+4*f+2*h+1}], v{w+c} offset:{st + (2*kk+h)*4096 + ln*1024}" for f, (c, ln, kk) in enumerate(fr) for h in range(2)]
    def gelu8(t, rs, cs, b1):
        u = [22, 24, 26, 38]; L = []
        for i in range(4): L.append(f"v_pk_fma_f32 {Pn(u[i])}, {Pn(cs[i])}, {Pn(rs[i])}, {Pn(b1[i])} op_sel:[0,1,0] op_sel_hi:[1,1,1] neg_lo:[0,1,0] neg_hi:[0,1,0]")
        for i in range(4): L.append(f"v_pk_fma_f32 {Pn(t[i])}, {Pn(t[i])}, {Pn(rs[i])}, {Pn(u[i])} op_sel_hi:[1,0,1]")
        for i in range(4): L.append(f"v_pk_fma_f32 {Pn(u[i])}, {Pn(t[i])}, {Pn(t[i])}, s[64:65] op_sel_hi:[1,1,0]")
        for i in range(4): L.append(f"v_pk_mul_f32 {Pn(u[i])}, {Pn(u[i])}, {Pn(t[i])} neg_lo:[0,1] neg_hi:[0,1]")
        for i in range(8): L.append(f"v_exp_f32 v{u[i>>1]+(i&1)}, v{u[i>>1]+(i&1)}")
        for i in range(4): L.append(f"v_pk_fma_f32 {Pn(u[i])}, {Pn(u[i])}, s[64:65], s[64:65] op_sel:[0,1,1] op_sel_hi:[1,1,1]")
        for i in range(8): L.append(f"v_rcp_f32 v{u[i>>1]+(i&1)}, v{u[i>>1]+(i&1)}")
        for i in range(4): L.append(f"v_pk_mul_f32 {Pn(u[i])}, {Pn(u[i])}, {Pn(t[i])}")
        for i in range(4): L.append(cvt(t[0] + i, u[i]))
        return L
    start2 = ["WAITVM b0 b1\ns_barrier"] + reads2(0, 0)
    A0 = lda(0)
    if not att:
        for ln in range(3):
            A("s_waitcnt lgkmcnt(0)")
            for m in range(8):
                if m in (0, 4): A(ts(f"L{ln}m{m}"))
                d = acc(m, 2 * ln)
                G = gelu8([d, d + 2, d + 4, d + 6], [40 + 2 * m] * 4, [56, 58, 60, 62], [8, 10, 12, 14]); S = []
                if m == 7 and ln < 2: S.append((colreads(ln + 1), 6, 8))
                if ln == 0 and m == 2 and C.NPRE > 8: S.append((dma_b(8), 2, 40))
                if ln == 1 and m == 3: S.append((["WAITVM h0\n" + flag(0)], 2, 3))
                if ln == 2:
                    if m == 0: emit(A, g2_addr)
                    gp, gc, gl_ = C.GF
                    if m == gp: S.append(([poll(1) + " ; @p1"], 20, 21))
                    if m == gc: S.append((["WAITVM p1 h1\n" + flag(1) + "\n" + spin(slow, P + "_f1", poll(1), ptest)], 4, 5))
                    if gc <= m <= gl_:
                        k0, k1 = (8 * (m - gc)) // (gl_ - gc + 1), (8 * (m - gc + 1)) // (gl_ - gc + 1); S.append((A0[k0:k1], 10, 40))
                    if m == 6: S.append(([f"s_mov_b32 s29, {T_B2}\nv_lshl_add_u32 v32, v3, 4, s29"] + [f"ds_read_b128 {R(acc2(1,n))}, v32 offset:{64*n}" for n in range(8)], 2, 30))
                    if m == 7: S.append((start2, 2, 40))
                emit(A, place(G, S))
                A(f"s_mov_b32 s29, {m*A2S + ln*2048}\nbuffer_store_dwordx4 {R(d)}, v18, s[12:15], s29 offen {C.HS_AUX} ; @h{ln}")
    else:
        hx = lambda op, so, base, tag: ([f"buffer_{op}_dwordx4 {R(base[b])}, v28, s[16:19], {so} offen offset:{1024*b} sc1 ; @{tag}" for b in range(2)]
                                        + [f"buffer_{op}_dwordx2 {Pn(base[2+i])}, v32, s[16:19], {so} offen offset:{2048+512*i} sc1 ; @{tag}" for i in range(4)])
        EXP_ = hx("store", "s90", [acc(6, 1), acc(7, 1)] + [acc(6 + b, 2 + db) + 2 for b in range(2) for db in range(2)], "hx")
        IMP_ = hx("load", "s91", [48, 52] + [acc(b, 2 + db) for b in range(2) for db in range(2)], "hi")
        hpoll = "buffer_load_dword v6, v34, s[16:19], 0 offen sc1"
        for m in range(7, -1, -1):
            A("s_waitcnt lgkmcnt(0)")
            if m: A(rowp(22 + 2 * ((m - 1) & 1), 30, 64 * (m - 1))); A(r4(m - 1))
            rs = Pn(22 + 2 * (m & 1)); G = []
            for part in (0, 1):
                src = acc(m, 0) + 8 * part; dst = acc(m, 0) + 4 * part; cs = [8, 40][part]
                for i in range(4): G.append(f"v_pk_mul_f32 {Pn(src+2*i)}, {Pn(src+2*i)}, {rs} op_sel_hi:[1,0]")
                for i in range(4): G.append(f"v_pk_fma_f32 {Pn(src+2*i)}, {Pn(cs+2*i)}, {rs}, {Pn(src+2*i)} op_sel:[0,1,0] op_sel_hi:[1,1,1] neg_lo:[0,1,0] neg_hi:[0,1,0]")
                for i in range(4): G.append(cvt(dst + i, src + 2 * i))
            r, mr = 48 + 8 * (m & 1), 52 + 8 * (m & 1); src = acc(m, 4)
            for i in range(4): G.append(f"v_pk_mul_f32 {Pn(src+2*i)}, {Pn(src+2*i)}, {Pn(r+2*(i&1))}")
            for i in range(4): G.append(f"v_pk_fma_f32 {Pn(src+2*i)}, {Pn(mr+2*(i&1))}, v[36:37], {Pn(src+2*i)} op_sel:[0,{i>>1},0] op_sel_hi:[1,{i>>1},1] neg_lo:[0,1,0] neg_hi:[0,1,0]")
            for i in range(4):
                db, h = i >> 1, i & 1
                for d in [acc(m, 2 + db) + 2 + h] + ([acc(m + 2, 2 + db) + h] if m < 6 else []): G.append(cvt(d, src + 2 * i))
            S = []
            if m == 4: A(ts("e4"))
            if m == 6: S.append(([EXP_[1], EXP_[4], EXP_[5]], 1, 36))
            if m == 5: S.append(([EXP_[0], EXP_[2], EXP_[3]], 1, 36))
            emit(A, place(G, S))
        A(ts("s"))
        mk = [8, 12, 40]
        mrd = lambda k: [f"v_accvgpr_read_b32 v{mk[k]+q}, a{160+4*k+q}" for q in range(4)]
        def smf(m): return [f"{MF} {R(acc(m,4))}, {R(48 + 4*m if m < 2 else acc(m-2,1))}, {R(acc(m,0))}, {R(mk[2] if m < 2 else mk[1])}",
                            f"{MF} {R(acc(m,5))}, {R(acc(m,1))}, {R(acc(m,0))}, {R(mk[0])}"]
        zp = lambda a, b: [x for p in zip(a, b) for x in p]
        def sm2(a):
            def pre(m):
                s = acc(m, 4); mx = 22 + 2 * (m & 1)
                return [f"v_max_f32 v{s+i}, v{s+i}, v{s+4+i}" for i in range(4)] + [f"v_max3_f32 v{mx}, v{s}, v{s+1}, v{s+2}", f"v_max_f32 v{mx}, v{mx}, v{s+3}"]
            def post(m):
                s = acc(m, 4); mx = 22 + 2 * (m & 1); q = acc(m, 0)
                L = [f"v_pk_fma_f32 {Pn(s+2*i)}, {Pn(s+2*i)}, s[86:87], {Pn(mx)} op_sel_hi:[1,1,0] neg_lo:[0,0,1] neg_hi:[0,0,1]" for i in range(2)]
                L += [f"v_exp_f32 v{s+i}, v{s+i}" for i in range(4)] + [cvt(s + 4 + i, s + 2 * i) for i in range(2)]
                return L + [f"v_and_b32 v{q+i}, v{44+i}, v{s+4+i}" for i in range(2)] + [f"v_bfi_b32 v{q+2+i}, v{44+i}, 0, v{s+4+i}" for i in range(2)]
            mid = lines("v_permlane16_swap_b32 v22, v24\nv_max_f32 v22, v22, v24\nv_mov_b32 v24, v22\nv_permlane32_swap_b32 v22, v24\nv_max_f32 v22, v22, v24\n"
                        "v_mul_f32 v22, s86, v22\nv_mov_b32 v24, v22\nv_permlane16_swap_b32 v22, v24")
            return zp(pre(a), pre(a + 1)) + mid + zp(post(a), post(a + 1))
        fill = lambda L: [(L[2*k:2*k+2], p, p) for k, p in enumerate((11, 14, 18)) if L[2*k:2*k+2]]
        def pvf(m):
            q = acc(m, 0)
            return [f"{MF} {R(acc(m,4))}, {R(acc(m,2))}, {R(q)}, 0", f"{MF} {R(acc(m,5))}, {R(acc(m,3))}, {R(q)}, 0", f"{MF} {R(acc(m,2))}, a[136:139], {R(q)}, 0"]
        def fin(m):
            s = acc(m, 4); l = acc(m, 2); q = acc(m, 0)
            L = [f"v_rcp_f32 v{l}, v{l}"]
            for i in range(4): L.append(f"v_pk_mul_f32 {Pn(s+2*i)}, {Pn(s+2*i)}, {Pn(l)} op_sel_hi:[1,0]")
            for i in range(4): L.append(cvt(q + i, s + 2 * i))
            L.append(f"s_mov_b32 s29, {m*A2S}\nbuffer_store_dwordx4 {R(q)}, v18, s[12:15], s29 offen {C.ST_AUX} ; @o")
            return L
        two = lambda f, a: f(a) + f(a + 1)
        fin2 = lambda a: zp(fin(a)[:-1], fin(a + 1)[:-1])
        ost = lambda *ms: [fin(m)[-1] for m in ms]
        def half(mp, S):
            d = [164, 172, 188, 196][mp]
            G = [f"v_accvgpr_read_b32 v{d+i}, a{176+8*mp+i}" for i in range(8)] + gelu8([d, d + 2, d + 4, d + 6], [212 + 4 * mp] * 2 + [214 + 4 * mp] * 2, [228, 230, 228, 230], [248, 250, 248, 250])
            emit(A, place(G, S))
            A(f"v_permlane32_swap_b32 v{d}, v{d+2}\nv_permlane32_swap_b32 v{d+1}, v{d+3}")
            A(f"s_mov_b32 s29, {2*mp*A2S}\nbuffer_store_dwordx4 {R(d)}, v17, s[12:15], s29 offen {C.ST_AUX} ; @h2")
        ir = list(range(48, 56)) + [acc(b, 2 + db) + h for b in range(2) for db in range(2) for h in range(2)]
        itest = "\n".join([f"v_max3_u32 v6, v{ir[0]}, v{ir[1]}, v{ir[2]}", f"v_max3_u32 v34, v{ir[3]}, v{ir[4]}, v{ir[5]}"]
                          + [f"v_max3_u32 v{[6,34][k&1]}, v{[6,34][k&1]}, v{ir[6+2*k]}, v{ir[7+2*k]}" for k in range(5)] + ["v_max_u32 v6, v6, v34", "v_cmp_eq_u32 vcc, -1, v6"])
        emit(A, mrd(0) + mrd(1) + two(smf, 6) + mrd(2) + [cvt(44, 8), cvt(45, 10), "v_pk_ashrrev_i16 v44, 15, v44 op_sel_hi:[0,1]", "v_pk_ashrrev_i16 v45, 15, v45 op_sel_hi:[0,1]"])
        emit(A, place(sm2(6), fill(two(smf, 4))))
        A(ts("s4")); emit(A, place(sm2(4) + fin2(6), fill(two(pvf, 6)) + [(two(smf, 2), 24, 32)]))
        emit(A, place(sm2(2) + fin2(4) + g2_addr, fill(two(pvf, 4)) + [([rowp(212 + 2 * m, 30, 4608 + 64 * m) for m in range(8)] + ["ds_read_b128 v[228:231], v21\nds_read_b128 v[248:251], v21 offset:1024"], 22, 44),
                                                  ([poll(1) + " ; @p1"] + IMP_, C.HP, 72)]))
        A(ts("h")); A("s_waitcnt lgkmcnt(0)")
        half(0, [(two(pvf, 2), 9, 27), (ost(6, 7, 4), 2, 46)])
        A(ts("h1")); emit(A, fin2(2))
        half(1, [(["WAITVM p1\n" + spin(slow, P + "_f1", poll(1), ptest)] + A0[:4], 0, 50)]); A(ts("h2"))
        half(2, [(A0[4:], 6, 50), (["WAITVM hi\n" + spin(slow, P + "_hx", "\n".join(x.split(";")[0] for x in IMP_), itest)] + two(smf, 0), 32, 44)])
        rest = [None] * 5 + ost(5, 2, 3)
        A(ts("h3"))
        emit(A, place(sm2(0), [(rest[5:6], 11, 12), (rest[6:], 26, 44)]))
        A(ts("h4")); half(3, [(two(pvf, 0), 9, 27), (start2, 12, 50)])
        emit(A, fin2(0) + ost(0, 1))

    def mfmas2(j, p):
        L = []; ms = list(range(4 if steps[j][5] else 2)); t = 0
        if j == NK - 1:
            return [f"{MF} {R(acc2(m,n))}, {aR(32*p+4*n)}, {aR(areg(j, p, m))}, {R(acc2(m,n))}" for n in range(8) for m in (ms if n % 2 == 0 else ms[::-1])]
        for c in range(4):
            n = 4 * p + c
            for m in (ms if n % 2 == 0 or j == 0 else ms[::-1]):
                d = R(acc2(m, n)); t += 1
                for q, kk in enumerate((0, 1) if t % 2 else (1, 0)):
                    cc = d if j or q else ("0" if att or m > 1 else R(acc2(1, n)))
                    L.append(f"{MF} {d}, {aR(32*p+8*c+4*kk)}, {aR(areg(j, kk, m))}, {cc}")
        return L
    def sub2(M, Rd, S, D):
        n = len(M); S = [(Rd, 0, n)] + S
        if D: S.append((D, 0, n, 4) if C.GRID & 1 and n >= 4 * len(D) else (D, 1, n + 1) if n >= 3 * len(D) else (D, 0, n - 1))
        S.append((["s_waitcnt lgkmcnt(8)"], n // 2 - 1, n // 2))
        emit(A, place(M, S))
    A("WAITVM a0 | lgkmcnt(0)"); A(ts("g2go")); A(ts("RTg2")); A(ts("g2go2"))
    A(f"{P}_g2:")
    first_need = {}
    for s, st in enumerate(steps): first_need.setdefault(st[3], s)
    bars = [j for j in range(NK - 1) if (j < NW and j % C.KBW == 0) or (j >= NW and (j - NW) % C.KB == 0)]
    checks = {first_need[k] - 4: k for k in first_need if k != 1}
    T = [0]
    for u in range(2 * NK): T.append(T[-1] + (32 if steps[u // 2][5] else 16))
    fixed = {2 * NW - 2 + i: x for i, x in enumerate(C.SFX)}
    UX = 2 * NK - 1 - C.XU[att]; XD = C.XD[att]; UY = UX - 2
    for u in range(UY if att else UX, 2 * NK): fixed[u] = 9
    ok = {k: 2 * (j + 1) + 1 for j, k in checks.items()}; ok[1] = 0
    QA = [(max(2 * aprev(x) + 2, ok[steps[x][3]]), T[2 * x], x) for x in range(1, NK) for _ in range(8 if steps[x][5] else 4)]
    QB = [(2 * next(b for b in bars if b >= x - NB + 1) + 1 if x >= NB else 0, T[2 * max(b for b in bars if b < x) + 1] - C.BM, x) for x in range(C.NPRE, NK) for _ in range(4)]
    plan = []; marg = 999
    for u in range(2 * NK - 1):
        cap = (8 if u == 0 else (C.CAP0 if u < C.UC else C.CAPW) if steps[u // 2][5] else C.CAPN) - fixed.get(u, 0); P_ = []
        while len(P_) < cap:
            c = [q for q in (QA, QB) if q and q[0][0] <= u]
            if not c: break
            q = min(c, key=lambda q: q[0][1])
            if C.BMIX and u >= C.BMIX[0] and steps[u // 2][5]:
                nb = sum(k == "b" for k, _ in P_)
                if len(c) == 2 and QA[0][1] - T[u + 1] >= C.BMIX[2]: q = QB if len(P_) % 3 == 1 else QA
                if q is QB and nb >= C.BMIX[1]:
                    if len(c) == 1: break
                    q = QA
            it = q.pop(0); P_.append(("a" if q is QA else "b", it[2]))
            marg = min(marg, it[1] + (C.BM if q is QB else 0) - T[u + 1])
        plan.append(P_)
    assert not QA and not QB and marg >= 0, marg
    C.marg[att] = marg
    qa = []; qb = []
    def take(u):
        out = []
        for k, x in plan[u]:
            q = qa if k == "a" else qb
            if not q: q.extend(lda(x) if k == "a" else dma_b(x))
            out.append(q.pop(0))
        return out
    busy = {BS(x) for x in range(bars[-1], NK)}
    STG = next(r * 16384 for r in range(NB - 2) if not busy & {(r + x) * 16384 for x in range(3)})
    sub2(mfmas2(0, 0), reads2(0, 1), [(g2_addr2, 3, 28)], take(0))
    xpoll = "buffer_load_dword v33, v34, s[16:19], 0 offen sc1"
    ypoll = "buffer_load_dword v25, v26, s[16:19], 0 offen sc1"
    xl = lambda base, a, tag: [f"buffer_load_dwordx4 {R(base+4*i)}, v{a}, s[56:59], {'s34' if i>=4 else '0'} offen offset:{1024*(i&3)} sc1 ; @{tag}" for i in (0, 4, 1, 5, 2, 6, 3, 7)]
    gl = att and C.GLAST; XL = xl(128, 18 if gl else 13, "xl"); YL = xl(160, 13 if gl else 18, "yl")
    gate = lambda v, sr: f"v_cmp_eq_u32 vcc, 0, v{v}\ns_cmp_eq_u64 vcc, 0\ns_cselect_b32 s58, {16*MB}, 0\ns_mov_b32 s{sr}, s58"
    def extra(u, S, D):
        w = ""
        if u == UX - XD: S.append(([xpoll + " ; @px"], 0, 1))
        if u == UX: w += " px"; S.append(([gate(33, 64)], 0, 1))
        if u in (UX, UX + 1): D += [(None, x) for x in XL[4*(u-UX):4*(u-UX)+4]]
        if att:
            if u == UY - C.YD: S.append(([ypoll + " ; @py"], 0, 1))
            if u == UY: w += " py"; S.append(([gate(25, 65)], 0, 1))
            if u in (UY, UY + 1): D += [(None, x) for x in YL[4*(u-UY):4*(u-UY)+4]]
        if u in C.CG: S.append(([f"s_lshl_b32 s29, s20, 4\nv_add_lshl_u32 v{GT}, s29, v4, 7", f"s_mov_b32 s29, {P}_g2-{P}_base+{8192*(1+C.CG.index(u))}\nbuffer_load_dword v{GT+1}, v{GT}, s[76:79], s29 offen"], 26, 30))
        if u == 2 * NW + C.SWF: w += " sw"; S.append(([flag(1 if att else 4)], 0, 1))
        return w
    blocks = lambda p: [(0, 2 * p), (1, 2 * p), (1, 2 * p + 1), (0, 2 * p + 1)]
    ids = lambda p, base: [f"{MF} {R(acc2(m,n))}, {R(194-2*(n&1))}, {R(base+16*m+4*p)}, {R(acc2(m,n))}" for m, n in blocks(p)]
    def swp(p):
        V = []; D = []
        for m in range(2):
            d = acc2(2 + m, 2 * p); V += [cvt(d + q, d + 2 * q) for q in range(4)]
            D.append(f"buffer_store_dwordx4 {R(d)}, v12, s[56:59], {'s34' if m else '0'} offen offset:{1024*p} sc1 ; @sw")
        return V[:4] + [D[0]] + V[4:] + [D[1]]
    for j in range(NK - 1):
        S = []; bar = j in bars
        nxt = next((b for b in bars if b > j), NK - 1)
        w = "WAITVM" + (f" b{nxt}" if bar else "")
        if j - 1 in checks: w += f" p{checks[j-1]}"
        if j == 1: w += " h2 o" if att else " h2"
        D = take(2 * j + 1); w += extra(2 * j + 1, S, D)
        A((w + " | lgkmcnt(8)" if w != "WAITVM" else "s_waitcnt lgkmcnt(8)") + ("\ns_barrier" if bar else ""))
        if j in (0, 7) or j >= NW - 2: A(ts(f"q{j}"))
        M = mfmas2(j, 1)
        if j - 1 in checks: S.append(([spin(slow, f"{P}_g{checks[j-1]}", poll(checks[j-1]), ptest)], 0, 1))
        if j == 1: S.append(([flag(0 if att else 2)], 0, 1))
        if j in checks: S.append(([poll(checks[j]) + f" ; @p{checks[j]}"], 0, 1))
        if j == 3: S.append(([f"v_and_b32 v27, {0xffffffff ^ (3 << C.FS)}, v20", f"v_lshl_add_u32 v27, v3, {C.FS}, v27"], 4, 10))
        if j == 2:
            sd = [f"s_mul_i32 s29, s37, {C.XST}\ns_add_u32 s29, s29, {5*MB}\nv_lshl_add_u32 v12, v2, 4, s29", f"s_xor_b32 s29, s37, 8\ns_mul_i32 s29, s29, {C.XST}", f"s_add_u32 s29, s29, {5*MB}\nv_lshl_add_u32 v13, v2, 4, s29",
                  "s_lshr_b32 s29, s2, 1\ns_lshl_b32 s29, s29, 2\ns_add_u32 s29, s29, s20", f"s_mul_i32 s29, s29, {C.XST}\nv_lshl_add_u32 v18, v2, 4, s29",
                  f"s_xor_b32 s29, s99, {8 << C.YS_}\nv_mov_b32 v{26 if gl else 34}, s29"]
            if att: sd += [f"v_mov_b32 v{34 if gl else 26}, s67"] + lines(xo_base) + ["v_lshrrev_b32 v10, 3, v2", "v_and_b32 v11, 7, v2", f"v_lshl_add_u32 v21, v10, {11 if C.OT else 12}, s29", "v_lshl_add_u32 v21, v11, 4, v21"]
            S.append((sd, 2, 30))
        if j == 5:
            sd = ["v_and_b32 v22, 1, v4", "v_lshlrev_b32 v22, 4, v22", "v_mov_b32 v23, 0x3f80", "v_lshlrev_b32 v22, v22, v23", "v_lshrrev_b32 v23, 1, v4", "v_lshlrev_b32 v24, 1, v3", "v_sub_u32 v23, v23, v24",
                  "v_cmp_eq_u32 vcc, 0, v23", "v_mov_b32 v192, 0", "v_cndmask_b32 v194, 0, v22, vcc", "v_cmp_eq_u32 vcc, 1, v23", "v_mov_b32 v193, 0", "v_cndmask_b32 v195, 0, v22, vcc", "v_mov_b32 v196, 0", "v_mov_b32 v197, 0"]
            S.append((sd, 2, 32))
        if j == 6:
            if att: sd = ["v_mul_u32_u24 v8, 272, v4", "v_lshl_add_u32 v8, v3, 3, v8", f"s_mul_i32 s29, s20, 8704\ns_add_u32 s29, s29, {STG}\nv_add_u32 v8, s29, v8",
                          *(["v_and_b32 v9, 1, v10", "v_lshl_add_u32 v10, v9, 4, v3"] if C.OT else []), "v_mul_u32_u24 v9, 272, v10", "v_lshl_add_u32 v9, v11, 4, v9", "v_add_u32 v9, s29, v9"]
            else: sd = ["v_sub_u32 v23, v23, v24"] + [x for d in range(8) for x in (f"v_cmp_eq_i32 vcc, {(d&3) - 8*(d>>2)}, v23", f"v_cndmask_b32 v{200+d}, 0, v22, vcc")]
            S.append((sd, 2, 32))
        if j == NW - 1: S.append((swp(1), 4, 16) if C.SWM == 0 else (swp(0) + swp(1), 0, 20)); S.append((swp(2), 20, 32))
        sub2(M, reads2(j + 1, 0), S, D)
        M = mfmas2(j + 1, 0); S = []
        D = take(2 * j + 2); w = extra(2 * j + 2, S, D)
        A(f"WAITVM a{j+1}{w} | lgkmcnt(8)")
        if j == NW - 2 and C.SWM == 0: S.append((swp(0), 20, 32))
        if j == NW - 1: S.append((swp(3), 4, 16))
        sub2(M, reads2(j + 1, 1), S, D)
        if not att and j == 8:
            for n in range(8):
                for m in range(2): A(f"{MF} {R(acc2(m,n))}, {R(200+4*(n&1))}, {aR(208+16*m+4*(n>>1))}, {R(acc2(m,n))}")
    assert not (qa or qb)
    A(ts("RTg2e")); A(ts("g2end"))
    def late(nm, sr, pl, v, L, tail):
        A(f"s_cmp_eq_u32 s{sr}, 0\ns_cbranch_scc1 {P}_{nm}_slow\n{P}_{nm}done:")
        slow.append(f"{P}_{nm}_slow:\ns_mov_b32 s39, {C.SPIN}\ns_mov_b32 s58, {16*MB}\n{P}_{nm}_spin:\n{pl}\ns_waitcnt vmcnt(0)\nv_cmp_eq_u32 vcc, 0, v{v}\ns_cbranch_vccz {P}_{nm}_ok\ns_sleep {C.XSL}\n"
                    f"s_sub_u32 s39, s39, 1\ns_cmp_lg_u32 s39, 0\ns_cbranch_scc1 {P}_{nm}_spin\n{P}_{nm}_ok:\n" + "\n".join(L) + f"\n{tail}s_branch {P}_{nm}done")
    if att: late("y", 65, ypoll, 25, YL, f"s_cmp_eq_u32 s64, 0\ns_cbranch_scc1 {P}_ydone\ns_waitcnt vmcnt(0)\n")
    late("x", 64, xpoll, 33, XL, "")
    A(ts("xgot"))
    if att:
        A("s_mov_b32 s29, 0x8000\n" + ("s_movk_i32 s30, 0x4000\ns_mov_b32 s31, 0xc000\n" if C.OT else "") + "s_waitcnt vmcnt(8)")
        for p in range(4): emit(A, ids(p, 160))
    A("s_waitcnt lgkmcnt(8)")
    reg = mfmas2(NK - 1, 1)
    def post(p):
        L = []
        for m, n in blocks(p):
            d = acc2(m, n); o = 160 + 16 * m + 4 * p
            if att: L += [cvt(d, d), cvt(d + 1, d + 2), f"ds_write_b64 v8, {Pn(d)} offset:{4352*m + 32*n}"]
            else:
                L += [cvt(o + 2 * (n & 1), d), cvt(o + 2 * (n & 1) + 1, d + 2)]
                if n & 1: L.append(f"buffer_store_dwordx4 {R(o)}, v18, s[56:59], {'s34' if m else '0'} offen offset:{1024*p} sc1")
        return L
    rd = lambda h: [f"ds_read_b128 {R(160+16*h+4*i)}, v9 offset:{(1088 if C.OT else 2176)*i + 128*h}" for i in range(4)]
    st = lambda h, i: f"buffer_store_dwordx4 {R(160+16*h+4*i)}, v21, s[52:55], {['0','s30','s29','s31'][i] if C.OT else 's29' if i&1 else '0'} offen offset:{(0 if C.OT else 2048*(i>>1)) + 128*h} {C.OUT_AUX}"
    for p in range(4):
        S = [([f"s_waitcnt vmcnt({6 - 2*p + (0 if att else 2*max(p-1, 0))})"], 3, 4)]
        if p == 0: S.append((["s_waitcnt lgkmcnt(0)"], 7, 8))
        if att and p == 3: S.append((rd(0), 0, 2))
        if p: S.append((post(p - 1), 2, 8))
        emit(A, place(reg[4*p:4*p+4] + ids(p, 128), S))
    if att:
        A("s_waitcnt lgkmcnt(4)"); emit(A, [st(0, 0), st(0, 1)])
        emit(A, post(3) + rd(1) + [st(0, 2), st(0, 3)])
        for i in range(4): A(f"s_waitcnt lgkmcnt({3-i})\n" + st(1, i))
    else:
        emit(A, post(3))
        A(ts("xs")); A("s_waitcnt vmcnt(0)\n" + flag(3))
    stamp_out(A)
    A(f"{P}_fin:\ns_endpgm")
    nl = 1 + att
    if C.PAD: A(f".p2align 6\n{P}_ws:\ns_branch {P}_ret2")
    for s in slow[-nl:][::-1] + slow[:-nl]: A("s_nop 7\n" + s)
    A(f"{P}_end:")

def build(path, **kw):
    global A2S
    for k, v in kw.items(): setattr(C, k, v)
    A2S = 144 * 1024 + C.A2P; assert 8192 <= C.XST <= 10240
    A = Asm(); name = NAME + "_kernel"
    A(f".text\n.globl {name}\n.p2align 8\n.type {name},@function\n{name}:")
    A("s_cmp_ge_u32 s2, 256\ns_cbranch_scc0 L_go\ns_endpgm\nL_go:" + (f"\ns_xor_b32 s2, s2, {C.WX}" if C.WX else ""))
    for r, o in ((60, 0), (8, 8), (68, 32), (16, 80), (40, 16), (44, 48), (72, 40), (48, 72)): A(f"s_load_dwordx2 s[{r}:{r+1}], s[0:1], {o}")
    C.names = []
    if C.FINE == 1: A("s_memtime s[98:99]")
    A(ts("RTstart"))
    A("v_lshrrev_b32 v3, 6, v0\nv_and_b32 v2, 63, v0\nv_readfirstlane_b32 s20, v3\nv_and_b32 v4, 15, v2\nv_lshrrev_b32 v3, 4, v2")
    A("s_lshr_b32 s29, s2, 3\ns_xor_b32 s29, s29, s2\ns_and_b32 s35, s29, 1\ns_cselect_b32 s30, 7, 11")
    A("s_getpc_b64 s[76:77]\nL_pc:\ns_mul_i32 s29, s35, Lg_base-La_base\ns_add_u32 s29, s29, La_base-L_pc\n" + add64(76, "s29") + "\ns_mov_b32 s78, Lg_end-Lg_base\ns_mov_b32 s79, 0x20000")
    if C.PAD: A("s_lshl_b32 s29, s20, 7\nv_lshl_add_u32 v24, v3, 9, s29\nbuffer_load_dword a141, v24, s[76:79], 0 offen\nv_lshl_add_u32 v25, v4, 12, s29\nbuffer_load_dword a141, v25, s[76:79], 0 offen")
    A("v_lshrrev_b32 v24, 3, v2\nv_and_b32 v25, 7, v2")
    A(f"s_bfe_u32 s23, s2, 0x20004\ns_bfe_u32 s3, s2, {0x10002 if C.OWN else 0x10001}\ns_lshl_b32 s29, s3, 2\ns_add_u32 s23, s23, s29" + ("\ns_mov_b32 s3, 0" if C.NOROT else ""))
    A("v_and_b32 v26, 6, v24\nv_xor_b32 v26, v25, v26\nv_lshlrev_b32 v17, 12, v24\nv_lshl_add_u32 v17, v26, 4, v17\ns_lshl_b32 s29, s20, 17\nv_add_u32 v16, s29, v17")
    A("s_lshr_b32 s38, s2, 6\ns_lshl_b32 s80, s38, 15\ns_and_b32 s39, s38, 2\ns_add_u32 s38, s38, s39\ns_lshl_b32 s39, s20, 3\ns_add_u32 s38, s38, s39\ns_lshl_b32 s84, s38, 10")
    A(f"s_lshl_b32 s64, s23, 19\ns_lshl_b32 s39, s3, 10\ns_add_u32 s64, s64, s39\ns_add_u32 s64, s64, {128*C.KO}\n" + srd(4, 255 * 2048 + 128))
    for i in range(1, 4): A(f"s_xor_b32 s{80+i}, s80, {i<<15}\ns_xor_b32 s{84+i}, s84, {((i&1) + 4*(i>>1)) << 10}")
    if C.OWN: A("s_lshr_b32 s24, s2, 6\ns_and_b32 s29, s2, 3\ns_lshl_b32 s29, s29, 2\ns_add_u32 s24, s24, s29")
    else: A("s_lshr_b32 s24, s2, 6\ns_and_b32 s29, s2, 1\ns_lshl_b32 s29, s29, 2\ns_add_u32 s24, s24, s29\ns_and_b32 s29, s2, 4\ns_lshl_b32 s29, s29, 1\ns_add_u32 s24, s24, s29")
    A("s_lshl_b32 s29, s35, 10\ns_add_u32 s36, s29, 6144\ns_lshl_b32 s29, s35, 8\ns_add_u32 s31, s29, 128")
    A("v_and_b32 v26, 2, v24\nv_xor_b32 v25, v25, v26\ns_and_b32 s39, s23, 1\ns_lshl_b32 s29, s39, 2\nv_xor_b32 v25, s29, v25")
    A("s_lshl_b32 s29, s20, 1\ns_add_u32 s29, s29, s39\ns_lshl_b32 s29, s29, 3\nv_add_u32 v26, s29, v24\nv_mul_u32_u24 v26, s36, v26\nv_lshl_add_u32 v18, v25, 4, v26")
    A("s_xor_b32 s29, s29, 8\nv_add_u32 v26, s29, v24\nv_mul_u32_u24 v26, s36, v26\nv_xor_b32 v25, 4, v25\nv_lshl_add_u32 v19, v25, 4, v26")
    A(f"s_lshl_b32 s65, s3, 9\ns_add_u32 s65, s65, {64*C.KO}\ns_mul_i32 s65, s65, s36\ns_mul_i32 s31, s31, s24\ns_add_u32 s65, s65, s31")
    A(f"s_mul_i32 s10, s36, 63\ns_lshl_b32 s29, 2, s30\ns_add_u32 s10, s10, s29\ns_add_u32 s10, s10, 128\ns_mov_b32 s11, 0x20000\ns_mul_i32 s27, s20, 7168\ns_add_u32 s27, s27, {WB}\ns_mul_i32 s39, s39, 3072\ns_and_b32 s38, s23, 2")
    for k in range(3):
        A(f"s_cmp_eq_u32 s38, 0\ns_cselect_b32 s29, {k}, {(k+2)%3}\ns_lshl_b32 s{94+k}, s29, s30\ns_lshl_b32 s29, s29, 10\ns_add_u32 s29, s29, s27")
        A(f"s_add_u32 s{88+k}, s29, s39\ns_sub_u32 s29, s29, s39\ns_add_u32 s{91+k}, s29, 3072")
    if C.FINE == 1: A("s_memtime s[66:67]")
    A("s_mov_b32 m0, s84\ns_waitcnt lgkmcnt(0)")
    if C.FINE == 1:
        A("v_writelane_b32 v1, s100, 0\nv_writelane_b32 v1, s98, 1\ns_mov_b32 s100, s66"); C.names += ["t0", "pre"]
    A(ts("karg"))
    A("s_add_u32 s4, s60, s64\ns_addc_u32 s5, s61, 0")
    xd = lambda i: f"buffer_load_dwordx4 v16, s[4:7], s{80+i} offen lds\nbuffer_load_dwordx4 v16, s[4:7], s{80+i} offen offset:2048 lds"
    A(xd(0))
    A("s_mov_b32 m0, s88\ns_cmp_eq_u32 s35, 0\ns_cselect_b32 s8, s8, s68\ns_cselect_b32 s9, s9, s69\n" + add64(8, "s65"))
    for k in range(3):
        A((f"s_mov_b32 m0, s{88+k}\n" if k else "") + f"buffer_load_dwordx4 v18, s[8:11], s{94+k} offen lds")
    A("s_mov_b32 m0, s85\n" + xd(1))
    A("s_lshr_b32 s21, s20, 1\ns_and_b32 s22, s20, 1\ns_mov_b32 s33, 0x3f803f80")
    A("s_bfe_u32 s25, s2, 0x20003\ns_and_b32 s29, s2, 4\ns_add_u32 s25, s25, s29\ns_lshl_b32 s25, s25, 1\ns_add_u32 s25, s25, s3\ns_lshr_b32 s26, s2, 5".replace("s_add_u32 s25, s25, s3", "s_bfe_u32 s29, s2, 0x10001\ns_add_u32 s25, s25, s29"))
    C.common = C.names
    A("s_cmp_eq_u32 s35, 0\ns_cbranch_scc0 Lg_base\ns_branch La_base")
    role(A, True)
    role(A, False)
    A.lines = resolve_ds(resolve_vm(A.lines))
    if C.EXP:
        reg = None; L = []; nb = 0
        for l in A.lines:
            if l.endswith("_ret1:"): reg = "g1"
            if l.endswith("_epi:"): reg = "epi"
            if l.endswith("_g2:"): reg = "g2"
            if l.endswith("_fin:"): reg = None
            k = False
            if reg == "g2" and C.EXP & 4 and l.startswith("ds_read_b64_tr"): k = True
            if reg == "g2" and C.EXP & 8 and l.startswith("buffer_load_dwordx4") and ("v16" in l or "v19" in l): k = True
            if reg == "g1" and C.EXP & 16 and l.startswith("ds_read") and " a[" in l: k = True
            if reg == "g1" and C.EXP & 32 and l.endswith("lds") and "s31" not in l: k = True
            if reg == "epi" and C.EXP & 64 and l.startswith(("v_exp", "v_rcp", "v_pk_")): continue
            if reg == "g2" and C.EXP & 128 and l.startswith("v_mfma"): l = "s_nop 3"
            if reg == "g1" and C.EXP & 256 and l.startswith("v_mfma"): l = "s_nop 3"
            L.append("s_nop 0" if k else l)
        A.lines = L
    body = A.finish()
    hdr = HEADER + "; @launch grid=(256,1,1) block=(256,1,1) lds=163840\n" + (f"; FINE0 {' '.join(C.allnames[True])}\n; FINE1 {' '.join(C.allnames[False])}\n" if C.FINE else "") + '.amdgcn_target "amdgcn-amd-amdhsa--gfx950"\n'
    if C.AL: body, C.nal = align8(hdr, body, C.AL)
    if C.PAD: body, C.npads = add_pads(hdr, body, [("La_base", "La_fin", "La", "La_ret"), ("Lg_base", "Lg_fin", "Lg", "Lg_ret")], wide=bool(C.AL))
    open(path, "w").write(hdr + body + '.section .rodata,"a"\n.p2align 6\n' + kdesc(name))
    return A.npad

if __name__ == "__main__":
    print("pads", build("v6.s"))
    build("v6_fine.s", FINE=True)
    print({k: len(v) for k, v in C.allnames.items()}, C.npads, C.marg)
```

```python
import sys, math
from asmlib import *
NAME = "parallel_sum__sliding_local_dilated__dense_activation_gelu__prompt"
MB = 1 << 20
WS_A2 = 8 * MB; WS_XCH = 32 * MB; WS_ST = 48 * MB
O_ST, O_CS, O_FL, O_XF, O_YF = 0, 16384, 262144, 262144 + 32768, 262144 + 65536
A2S = 144 * 1024
class C:
    FINE = False; PROBE = None; names = []; allnames = {}
    NFL = 0; A_AUX = "sc1"; ST_AUX = "sc1"; OUT_AUX = "sc1"; PF = True; CPF = True; CPH = False; PAD = True; ROT = True; PRE = 0; STJ = (1, 1); PF0 = (8, 6); NOROT = False
    SPIN = 1 << 16; DA = 4; NW = (14, 14); BM = 0; marg = {}; CAPW = 7; SWF = 4; GLAST = True; XU = (4, 3); GF = (0, 3, 6); YCHK = 3; CAPN = 3; NPRE = 7; NA0 = (2, 2); RP = None; XCHK = 2; XSL = 1; XD = (3, 3); YD = 3; KB = 2; KBW = 2; GRID = 3; RE = 6; CT2 = True; PUB = 99; AB = 4; MAP2 = False; AL = 9; NOC0 = False; OT = True; JIT = 0; CSH = (1, 0, 0); XST = 9216; A2P = 512; HS_AUX = 'sc1'; FS = 8; XS_ = 4; YS_ = 5; FCL = False; OWN = True; QP = True; KO = 0; BMIX = None; WX = 0; PF2 = True; XAUX = ''; WAUX = ''; HAUX = ''; PAUX = ''; HXP = 0; C0 = '0'; SFX = (0, 9, 9, 9); CAP0 = 6; UC = 14; SWM = 1; CJS = (12, 12, 13); CJB = (); CG = (); SPL = (0, 0.4, 0.7, 1); HF = 2; OE = 2; HP = 8; CJ = 5; AD = 3; CF = True; HC = 2; S0E = (8, 20); WS = True; MJ = 0; MRG = "xX:04 wW:016 xX:123|wW:2345"; SEQ = (("w0:345 x0:23 w1:01 x1:0123", "w1:2345 w2:012345"), ("w0:6345 x0:23 x1:0123 w1:601", "w1:2345 w2:601", "x2:0123 w2:2345|w3:6012345")); IDLE = None; XJ = (8, 8, 9, 9, 10, 10, 11, 11); PFL = ((), tuple(range(10, 18)) + tuple(range(10))); PFN = 4; D0 = 1; QS = 12; B0 = -2.0; EXP = 0; XR = 1; SM = 6.0
XS = lambda s: s * 34816
WB = 69632
TB = 155648
T_CS, T_B1, T_B2 = TB + 2560, TB + 3584, TB + 4608
NB = 9
BS = lambda j: ((j + 6) % NB) * 16384
R = lambda d: f"v[{d}:{d+3}]"
aR = lambda d: f"a[{d}:{d+3}]"
Pn = lambda r: f"v[{r}:{r+1}]"
MF = "v_mfma_f32_16x16x32_bf16"
cvt = lambda d, s: f"v_cvt_pk_bf16_f32 v{d}, v{s}, v{s+1}"
srd = lambda r, n: f"s_mov_b32 s{r+2}, {n}\ns_mov_b32 s{r+3}, 0x20000"
add64 = lambda r, x: f"s_add_u32 s{r}, s{r}, {x}\ns_addc_u32 s{r+1}, s{r+1}, 0"
sub64 = lambda r, x: f"s_sub_u32 s{r}, s{r}, {x}\ns_subb_u32 s{r+1}, s{r+1}, 0"

HEADER = """; out = x + attn(LN(x)) @ wo + gelu(LN(x) @ w1 + b1) @ w2 + b2      (S=2048, D=1024, F=3584, 32 heads, window 8, dilation 2)
;    epilogue: rstd*(acc - mean*colsum(W)) with row statistics and column sums computed in the loop and handed over in ws.
"""

def ts(name):
    if C.JIT:
        C.uid = getattr(C, "uid", 0) + 1; u = C.uid
        return (f"s_memtime s[100:101]\ns_waitcnt lgkmcnt(0)\ns_mul_i32 s100, s100, 0x9E3779B1\ns_lshr_b32 s101, s100, 29\ns_cmp_lg_u32 s101, 0\ns_cbranch_scc1 Lj{u}e\n"
                f"s_bfe_u32 s101, s100, {(C.JIT << 16) | 12}\nLj{u}:\ns_sleep 4\ns_sub_u32 s101, s101, 1\ns_cmp_gt_i32 s101, 0\ns_cbranch_scc1 Lj{u}\nLj{u}e:")
    if not C.FINE or (C.FINE == 2 and name not in ("RTstart", "RTend", "x")) or (C.FINE == 3 and name[:2] != "RT" and name != "x"): return ""
    i = len(C.names); C.names.append(name)
    t = f"s_waitcnt lgkmcnt(0)\nv_writelane_b32 v1, s100, {i-1}\n" if i else ""
    return t + ("s_memrealtime s[100:101]" if name.startswith("RT") else "s_memtime s[100:101]")
def stamp_out(A):
    if not C.FINE: return
    A(ts("st")); A("s_waitcnt vmcnt(0)"); A(ts("end")); A(ts("RTend")); A(ts("x")); C.names.pop()
    if C.PROBE:
        a, b, wg = C.PROBE; C.uid = getattr(C, "uid", 0) + 1; u = C.uid
        if a in C.names and b in C.names:
            A(f"s_waitcnt lgkmcnt(0)\ns_cmp_lg_u32 s37, {wg*4}\ns_cbranch_scc1 Lpr{u}e\nv_readlane_b32 s4, v1, {C.names.index(b)}\nv_readlane_b32 s5, v1, {C.names.index(a)}\ns_memrealtime s[8:9]\ns_sub_u32 s4, s4, s5\n{'s_lshl_b32 s4, s4, 2' if a.startswith('RT') else 's_lshr_b32 s4, s4, 2'}\ns_add_u32 s4, s4, 1000\ns_min_u32 s4, s4, 100000")
            A(f"Lpr{u}:\ns_memrealtime s[6:7]\ns_waitcnt lgkmcnt(0)\ns_sub_u32 s6, s6, s8\ns_cmp_lt_u32 s6, s4\ns_cbranch_scc1 Lpr{u}\nLpr{u}e:")
        return
    A("s_load_dwordx2 s[4:5], s[0:1], 80\ns_waitcnt lgkmcnt(0)\n" + add64(4, WS_ST + 0x40000))
    A("s_lshl_b32 s6, s2, 2\ns_add_u32 s6, s6, s20\ns_lshl_b32 s6, s6, 8\nv_lshl_add_u32 v0, v2, 2, s6\nglobal_store_dword v0, v1, s[4:5]")
def emit(A, L):
    for d in L:
        if isinstance(d, str): A(d)
        else:
            for x in d:
                if x: A(x)
def lines(s): return [l for l in s.split("\n") if l.strip()]

def spin(slow, name, loads, test):
    slow.append(f"{name}_slow:\ns_mov_b32 s39, {C.SPIN}\n{name}_spin:\ns_sleep 8\n{loads}\ns_waitcnt vmcnt(0)\n{test}\ns_cbranch_vccz {name}_back\n"
                f"s_sub_u32 s39, s39, 1\ns_cmp_lg_u32 s39, 0\ns_cbranch_scc1 {name}_spin\ns_branch {name}_back")
    return f"{test}\ns_cbranch_vccnz {name}_slow\n{name}_back:"

def g2_steps(att):
    f = abs(C.NFL) // 2; no = C.NW[att] - 12
    pair = lambda i, lo, hi: int((i ^ 1) in range(lo, hi))
    wide = [("h", 3 * i + l, (3, 93, 12), 1 + l, i & 1, True) for l in range(3) for i in range(4)]
    wide += [("o", i, (pair(i, 0, no), 93, 4), 0, i & 1, True) for i in range(no)]
    nar = [("o", 8 * b + i, (pair(i, no, 4), 92, 4), 0, i & 1, False) for b in range(2) for i in range(no, 4)]
    nar += [("h", 48 + u, (pair(u, f, 4), 92, 4), 0, u & 1, False) for u in range(f, 4)]
    if f and att == (C.NFL < 0): nar += [("h", 48 + u + 4 * b, None, 0, 0, False) for u in range(f) for b in range(2)]
    return wide + nar

def role(A0_, att):
    A = A0_
    P = "La" if att else "Lg"
    slow = []
    stride = 6144 if att else 7168
    nblk = 7 if att else 6
    A("VMRESET")
    C.names = list(C.common); C.allnames[att] = C.names
    A("VMFAKE x0 4\nVMFAKE w0 3")
    SEQ = C.SEQ[att]
    base = {"x": 0, "w": 0, "h": 0}; left = {}
    def adv(k, j, n, reg, inc, wrap):
        left[(k, j)] = left.get((k, j), n) - 1; t = []
        while left.get((k, base[k])) == 0:
            t.append(add64(reg, inc) + ("\n" + sub64(reg, wrap) if base[k] in (7 - C.KO, 15 - C.KO) and base[k] < 15 else "")
                     + (f"\ns_sub_u32 {wrap}, {16*inc}, {wrap}" if base[k] == 7 - C.KO else "")); base[k] += 1
        return "\n".join(t) or None
    def px(j, i):
        d = 128 * (j - base["x"]); assert d == 0
        if i == 4: return [(f"s_add_u32 m0, s28, {XS(j%2) - d}", f"buffer_load_dwordx4 v17, s[4:7], 0 offen offset:{d} {C.XAUX} lds ; @x{j}", adv("x", j, 4, 4, 128, "s64"))]
        assert XS(j % 2) >= d
        return [(f"s_add_u32 m0, s{84+i}, {XS(j%2) - d}", f"buffer_load_dwordx4 v16, s[4:7], s{80+i} offen offset:{d} {C.XAUX} lds ; @x{j}"),
                (None, f"buffer_load_dwordx4 v16, s[4:7], s{80+i} offen offset:{d+2048} {C.XAUX} lds ; @x{j}", adv("x", j, 4, 4, 128, "s64"))]
    def pw(j, k):
        if k == 6:
            d = (j - base["h"]) * 64 * 7168
            return [(f"s_add_u32 m0, s27, {(j%3)*28672 + 6144}" + (f"\ns_mov_b32 s31, {d}" if d else ""), f"buffer_load_dwordx4 v20, s[68:71], {'s31' if d else '0'} offen {C.HAUX} lds ; @w{j}", adv("h", j, 1, 68, 64 * 7168, "s97"))]
        d = (j - base["w"]) * 64 * stride; assert d == 0
        return [(f"s_add_u32 m0, s{88+k}, {(j%3)*28672}" + (f"\ns_add_u32 s31, s{94+k%3}, {d}" if d else ""), f"buffer_load_dwordx4 v{18+k//3}, s[8:11], s{31 if d else 94+k%3} offen {C.WAUX} lds ; @w{j}", adv("w", j, 6, 8, 64 * stride, "s65"))]
    def seq(spec):
        L = []
        for t in spec.replace(".", ":").split():
            k, j, ps = t[0], int(t[1:t.index(":")]), t[t.index(":") + 1:]
            if j > 15: continue
            for p in map(int, ps):
                if p < (4 if k == "x" else 6 + att): L += (px if k == "x" else pw)(j, p)
        return L
    seq("x0:01 w0:012")
    A(f".p2align 12\n{P}_base:\ns_load_dwordx2 s[52:53], s[0:1], {64 if att else 56}")
    A("v_lshrrev_b32 v5, 5, v2\nv_and_b32 v6, 3, v2")
    for i in range(4): A(f"v_accvgpr_write_b32 a{136+i}, s33")
    if att:
        A("v_lshrrev_b32 v24, 2, v2\nv_xor_b32 v25, v5, v6\ns_lshl_b32 s29, s20, 4\nv_add_u32 v24, s29, v24\nv_mul_u32_u24 v24, 7168, v24\nv_lshl_add_u32 v20, v25, 4, v24")
        A(f"s_mul_i32 s39, s3, {512*7168}\ns_xor_b32 s38, s24, {C.HXP}\ns_lshl_b32 s38, s38, 6\ns_add_u32 s39, s39, s38\ns_add_u32 s39, s39, {6144 + C.KO*64*7168}\n" + add64(68, "s39") + "\n" + srd(68, 63 * 7168 + 64))
    A(f"s_mov_b32 s78, {P}_end-{P}_base")
    A("s_lshr_b32 s29, s2, 4\ns_lshl_b32 s29, s29, 2\ns_add_u32 s29, s29, s20\ns_lshl_b32 s29, s29, 10\nv_and_b32 v24, 7, v2\nv_lshl_add_u32 v23, v24, 7, s29")
    if C.CPF: A("buffer_load_dword a141, v23, s[76:79], 0 offen")
    A(f"s_lshl_b32 s64, s3, 11\ns_mul_i32 s65, s3, {1024*stride}\ns_mul_i32 s97, s3, {1024*7168}")
    S0 = seq(SEQ[0]); n0 = 7 + att
    A_, U = A, []
    def A(t):
        for l in lines(t):
            if U and l.startswith(("s_addc", "s_subb", "s_cselect")): U[-1] += "\n" + l
            else: U.append(l)
    A("v_and_b32 v27, 6, v4\nv_xor_b32 v27, v27, v3\nv_lshlrev_b32 v27, 4, v27\nv_lshl_add_u32 v28, v4, 7, v27")
    A("s_lshl_b32 s29, s21, 14\nv_add_u32 v8, s29, v28\nv_xor_b32 v9, 64, v8")
    xo_base = "s_lshl_b32 s29, s25, 2\ns_add_u32 s29, s29, s20\ns_lshl_b32 s29, s29, 16\ns_lshl_b32 s39, s26, 8\ns_add_u32 s29, s29, s39"
    if not att: A(xo_base + "\nv_lshl_add_u32 v21, v4, 12, s29\nv_lshl_add_u32 v21, v3, 4, v21")
    A("v_bfe_u32 v27, v2, 2, 2\nv_and_b32 v28, 1, v3")
    A(f"v_mul_u32_u24 v29, 7168, v5\nv_add_u32 v29, {WB}, v29")
    A("v_mul_u32_u24 v23, 3072, v28\nv_add_u32 v23, v29, v23\nv_lshl_add_u32 v23, v27, 7, v23\nv_lshl_add_u32 v23, v6, 3, v23")
    A("v_lshrrev_b32 v24, 1, v27\nv_lshl_or_b32 v24, v28, 1, v24\ns_lshl_b32 s29, s22, 1\nv_xor_b32 v24, s29, v24")
    A("v_lshl_add_u32 v10, v24, 5, v23\nv_xor_b32 v11, 32, v10\nv_add_u32 v13, 57344, v10\nv_add_u32 v14, 57344, v11")
    A("s_and_b32 s38, s23, 3\ns_lshl_b32 s38, s38, 1\ns_add_u32 s38, s38, s21")
    A("s_min_u32 s39, s38, 5\ns_and_b32 s29, s39, 1\ns_lshl_b32 s29, s29, 5\nv_xor_b32 v23, s29, v10\ns_lshr_b32 s29, s39, 1\ns_lshl_b32 s29, s29, 10\nv_add_u32 v23, s29, v23\nv_add_u32 v24, 512, v23")
    A("s_and_b32 s29, s39, 6\ns_add_u32 s29, s29, s22\ns_lshl_b32 s29, s29, 1\ns_and_b32 s39, s39, 1\ns_add_u32 s29, s29, s39\ns_lshl_b32 s29, s29, 4\nv_add_u32 v31, s29, v4")
    if att:
        A("v_lshl_add_u32 v25, v28, 3, v27\nv_lshl_add_u32 v25, v25, 6, v29\nv_add_u32 v25, 6144, v25")
        A("v_and_b32 v26, 2, v6\nv_add_u32 v26, s22, v26\nv_xor_b32 v26, v26, v28\nv_lshl_add_u32 v25, v26, 4, v25")
        A("v_and_b32 v26, 1, v6\nv_lshl_add_u32 v12, v26, 3, v25\nv_add_u32 v15, 57344, v12\nv_add_u32 v25, 256, v12")
        A("v_and_b32 v26, 8, v4\nv_add_u32 v26, v26, v4\ns_lshl_b32 s29, s22, 3\ns_add_u32 s29, s29, 192\nv_add_u32 v26, s29, v26")
        A("s_cmp_ge_u32 s38, 6\ns_cselect_b64 vcc, -1, 0\nv_cndmask_b32 v23, v23, v12, vcc\nv_cndmask_b32 v24, v24, v25, vcc\nv_cndmask_b32 v31, v31, v26, vcc")
    A("v_add_u32 v25, 57344, v23\nv_add_u32 v26, 57344, v24")
    A(f"s_lshl_b32 s66, s24, 12\ns_add_u32 s66, s66, {O_CS + (0 if att else 65536)}\ns_lshr_b32 s29, s23, 2\ns_lshl_b32 s29, s29, 11\ns_add_u32 s29, s29, s66\nv_lshl_add_u32 v31, v31, 3, s29")
    A(f"s_cmp_lt_u32 s38, {nblk}\ns_cselect_b32 s38, 0xffff, 0")
    KS = 32 << C.FS; assert C.FS <= 8 and C.XS_ <= 6 and C.YS_ <= 6
    A(f"s_lshl_b32 s29, s23, 2\ns_lshr_b32 s39, s24, 2\ns_add_u32 s29, s29, s39\ns_lshl_b32 s29, s29, 2\ns_and_b32 s39, s24, 3\ns_add_u32 s29, s29, s39\ns_lshl_b32 s29, s29, 2\ns_add_u32 s29, s29, s20\ns_lshl_b32 s29, s29, {C.FS-4}")
    A(f"s_lshr_b32 s67, s2, 1\ns_lshl_b32 s67, s67, 2\ns_add_u32 s67, s67, s20\ns_lshl_b32 s67, s67, {C.XS_}\ns_add_u32 s67, s67, {O_XF}")
    if att: A(f"s_add_u32 s29, s29, {O_FL}\nv_mov_b32 v29, s29")
    else: A(f"s_add_u32 s29, s29, {O_FL + KS}\nv_lshl_add_u32 v29, v6, {C.FS+5}, s29\nv_writelane_b32 v29, s67, 3")
    A(f"s_lshl_b32 s99, s2, 2\ns_add_u32 s99, s99, s20\ns_lshl_b32 s99, s99, {C.YS_}\ns_add_u32 s99, s99, {O_YF}\nv_writelane_b32 v29, s99, {1 if att else 4}")
    if att:
        A(f"s_lshl_b32 s29, s23, 1\ns_add_u32 s29, s29, s21\ns_lshl_b32 s29, s29, 4\ns_add_u32 s29, s29, s24\ns_lshl_b32 s29, s29, 1\ns_add_u32 s33, s29, s22\ns_lshl_b32 s32, s33, 12\ns_add_u32 s32, s32, {MB}")
        for i in range(4): A(f"v_mov_b32 v{48+i}, -1")
    A("s_mov_b32 s12, s16\ns_mov_b32 s13, s17\ns_mov_b32 s56, s16\ns_mov_b32 s57, s17")
    for r, n in ((16, 4 * MB), (40, 2 * MB), (44, 7 * MB), (48, 256), (52, 4 * MB if att else 2048), (60, 4 * MB), (72, 7168), (56, 16 * MB)): A(srd(r, n))
    A(add64(56, WS_XCH))
    A("s_lshl_b32 s29, s2, 2\ns_add_u32 s37, s29, s20\ns_lshl_b32 s29, s37, 1\nv_lshrrev_b32 v30, 3, v4\nv_add_u32 v30, s29, v30\nv_and_b32 v27, 7, v2\nv_lshl_add_u32 v27, v3, 3, v27\nv_lshlrev_b32 v27, 4, v27\nv_lshl_add_u32 v27, v30, 11, v27")
    A(f"v_lshlrev_b32 v7, 4, v2\nv_mov_b32 v35, 1\nv_and_b32 v34, {C.CSH[0]-1}, v2\nv_lshlrev_b32 v34, {C.CSH[1]}, v34\nv_mov_b32 v32, 0\nv_mov_b32 v33, 0\nv_lshlrev_b32 v30, 3, v30\ns_lshl_b32 s29, s20, 4\nv_add_lshl_u32 v6, s29, v4, 7")
    A("s_lshr_b32 s29, s2, 1\ns_lshl_b32 s29, s29, 2\ns_add_u32 s29, s29, s20\ns_lshl_b32 s35, s29, 10\ns_lshr_b32 s29, s29, 7\ns_mul_i32 s29, s29, 1441792\ns_add_u32 s36, s35, s29")
    if C.PF2 and att:
        A("s_lshr_b32 s29, s35, 15\ns_sub_u32 s29, s29, 11\ns_max_i32 s29, s29, 0\ns_lshl_b32 s29, s29, 14\ns_sub_u32 s35, s35, s29\ns_and_b32 s29, s24, 7\ns_cmp_eq_u32 s29, 3\ns_cselect_b32 s35, 0x40000000, s35")
    A("s_waitcnt lgkmcnt(0)")
    A = A_; nu = len(U) - 1; one = lambda L: ["\n".join(x for x in d if x) for d in L]
    emit(A, place(U, [(one(S0[:n0]), int(nu * C.SPL[0]), int(nu * C.SPL[1])), (one(S0[n0:]), int(nu * C.SPL[2]), int(nu * C.SPL[3]))]))
    def pads(c):
        if not C.PAD: return
        k0 = [1, 5, 13][c]
        A("s_mov_b64 exec, 0")
        for w in range(3): A(f"s_cmp_eq_u32 s20, {w}\ns_cbranch_scc1 {P}_pad{k0+w}")
        A(f"s_branch {P + '_ws' if c == 2 and C.WS else P + '_pad' + str(k0 + 3)}\n{P}_ret{c}:\ns_mov_b64 exec, -1")
    stl = [(None, f"buffer_load_dwordx4 {aR(144+4*i)}, v27, s[60:63], 0 offen offset:{512*i} ; @st") for i in range(4)]
    A(ts("issued")); pads(0)

    acc = lambda m, n: 64 + 4 * (6 * m + n)
    xf = lambda h, i, kk: 32 * h + 8 * i + 4 * kk
    wf = lambda n, kk: 64 + 8 * n + 4 * kk
    def wofs(j):
        u = j % 3; return (u == 2), (0 if u == 2 else u * 28672)
    def rd_w(j, n):
        hiw, wo = wofs(j); wreg = 13 if hiw else 10; L = []
        for kk in range(2):
            for h in range(2):
                b = wf(n, kk) + 2 * h
                L.append(f"ds_read_b64_tr_b16 a[{b}:{b+1}], v{wreg+(n&1)} offset:{wo + kk*14336 + h*512 + (n>>1)*1024} ; @W{j}_{n}" if n < 6 else
                         f"ds_read_b64_tr_b16 a[{b}:{b+1}], v{wreg+2} offset:{wo + kk*14336 + h*256} ; @W{j}_{n}")
        return L
    rd_x = lambda j, h: [f"ds_read_b128 {aR(xf(h,i,kk))}, v{8+kk} offset:{XS(j%2) + (4*h+i)*2048} ; @X{j}_{h}" for i in range(4) for kk in range(2)]
    def rd_e(j):
        hiw, wo = wofs(j); L = []
        if j < 8: L += [f"ds_read_b64_tr_b16 a[{128+4*kk+2*h}:{129+4*kk+2*h}], v{(25 if hiw else 23)+h} offset:{wo + kk*14336}" for kk in range(2) for h in range(2)]
        return L
    def mfmas(j, h):
        L = []; end = []; t = [0]
        def chain(d, fa, fb):
            ks = (0, 1) if t[0] % 2 == 0 else (1, 0); t[0] += 1
            for q, kk in enumerate(ks): L.append(f"{MF} {d}, {aR(fa(kk))}, {aR(fb(kk))}, {(C.C0 if d != 'v[36:39]' else '0') if j == 0 and q == 0 else d}")
        for n in range(nblk):
            W = lambda kk: wf(n, kk)
            rows = [0, 1, 2, 3]
            for i in (rows if n % 2 == 0 else rows[::-1]):
                m = 4 * h + i
                d = R(48 + 4 * (n - 2)) if i == 4 else (R(acc(m, n)) if n < 6 else aR(176 + 4 * m))
                X = (lambda kk: 120 + 4 * kk) if i == 4 else (lambda kk: xf(h, i, kk))
                if att and n in (4, 5): chain(d, X, W)
                else: chain(d, W, X)
            end.append(len(L))
        if j < 8 and h == 1: chain("v[36:39]", lambda kk: 136, lambda kk: 128 + 4 * kk)
        return L, end
    def rs_a(j, end):
        S = [(rd_x(j, 0)[:4], 0, 8, 2), (rd_x(j, 0)[4:], 3, 19, 4)]
        for n in range(nblk - 1): S.append((rd_w(j, n), end[n], end[n] + 8, 2))
        return S
    def rs_b(j, end, n):
        L = (rd_w(j, nblk - 1) if j else []) + rd_x(j, 1) + rd_e(j)
        S = [(L, 0, min(2 * len(L), n - C.RE), 2)]
        for b in range(1, nblk): S.append(([f"WAITDS W{j}_{b}"], end[b - 1] - 1, end[b - 1]))
        return S
    def pf(i):
        if C.PF2:
            if not att or i > 20: return []
            if i < 16: return [(f"s_add_u32 s29, s35, {i*448*1024}", "buffer_load_dwordx4 a[140:143], v7, s[44:47], s29 offen")]
            return [(f"s_add_u32 s29, s35, {(i-16)*448*1024}", "buffer_load_dwordx4 a[140:143], v7, s[40:43], s29 offen")]
        L = C.PFL[att]
        if not C.PF or i >= len(L): return []
        g = L[i]
        if g >= 10: return [(f"s_add_u32 s29, s36, {(3*((g-10)&3)+((g-10)>>2))*131072}", "buffer_load_dwordx4 a[140:143], v7, s[44:47], s29 offen " + C.PAUX)]
        if g < 4: return [(f"s_add_u32 s29, s36, {(3*g+2)*131072}", "buffer_load_dwordx4 a[140:143], v7, s[44:47], s29 offen " + C.PAUX)]
        if g < 8: return [(f"s_add_u32 s29, s35, {(g-4)*524288}", "buffer_load_dwordx4 a[140:143], v7, s[40:43], s29 offen " + C.PAUX)]
        return [(f"s_add_u32 s29, s35, {48*131072 + (g-8)*524288}", "buffer_load_dwordx4 a[140:143], v7, s[44:47], s29 offen " + C.PAUX)]
    cpf = lambda lab, k=0, dst="a141": [(f"s_mov_b32 s29, {lab}-{P}_base+{8192*k}", f"buffer_load_dword {dst}, v6, s[76:79], s29 offen")] if C.CPF else []
    stm = []
    stm += [f"{MF} v[40:43], a[136:139], {aR(144+4*i)}, {'v[40:43]' if i else '0'}" for i in range(4)]
    stm += [f"{MF} v[44:47], {aR(144+4*i)}, {aR(144+4*i)}, {'v[44:47]' if i else '0'}" for i in range(4)]
    dpp = lambda v, m: f"v_add_f32_dpp v{v}, v{v}, v{v} {m} row_mask:0xf bank_mask:0xf"
    rnd = lambda v: [f"v_cvt_pk_bf16_f32 v{v}, v{v}, v{v}", f"v_and_b32 v{v}, 0xffff0000, v{v}"]
    st1 = ["v_lshlrev_b32 v41, 2, v3", "v_sub_u32 v41, v4, v41"]
    for q in range(4): st1 += [f"v_cmp_eq_u32 vcc, {q}, v41", dpp(40, ["quad_perm:[1,0,3,2]", "quad_perm:[2,3,0,1]", "row_half_mirror"][q]) if q < 3 else f"v_mul_f32 v40, {f32(1/1024)}, v40",
                               f"v_cndmask_b32 v42, {'v42' if q else '0'}, v{44+q}, vcc"]
    st1 += [dpp(42, "quad_perm:[1,0,3,2]"), "v_mul_f32 v41, v40, v40", dpp(42, "quad_perm:[2,3,0,1]"), rnd(40)[0], dpp(42, "row_half_mirror"), rnd(40)[1]]
    for sw in (16, 32): st1 += ["v_mov_b32 v43, v42", f"v_permlane{sw}_swap_b32 v42, v43", "v_add_f32 v42, v42, v43"]
    st2 = [f"v_mov_b32 v43, {f32(1/1024)}", "v_fma_f32 v44, v42, v43, -v41", "v_max_f32 v44, 0, v44"] + rnd(44) + [f"v_add_f32 v44, {f32(1e-5)}, v44"] + rnd(44) + ["v_sqrt_f32 v44, v44"] + rnd(44) + ["v_rcp_f32 v44, v44", "v_mul_f32 v45, v44, v40"]
    cph = lambda dst="a141": [("v_lshl_add_u32 v33, v4, 12, s99", f"buffer_load_dword {dst}, v33, s[76:79], 0 offen")] if C.CPH else []

    steps = g2_steps(att); NK = len(steps); DA = C.DA
    cls = {}
    def off(reg, tab, unit, j, imm):
        dc, sl = steps[j][2], steps[j][4]
        if dc is None: return f"s_mov_b32 s{reg}, {imm}"
        t = ""
        if cls.get((tab, sl)) != dc:
            cls[(tab, sl)] = dc
            t = f"s_mul_i32 s{tab+sl}, s{88+sl}, {dc[0]*unit}\ns_mul_i32 s{reg}, s{dc[1]}, {dc[2]*unit}\ns_add_u32 s{tab+sl}, s{tab+sl}, s{reg}\n"
        return t + f"s_add_u32 s{reg}, s{tab+sl}, {imm}"
    NW = C.NW[att]
    areg = lambda j, kk, i: 64 + 32 * (j % 4) + 16 * kk + 4 * i if j < NW else 64 + 16 * ((NW + j) % 8) + 8 * kk + 4 * i
    aprev = lambda j: j - 4 if j < NW else (NW - 4 + (j - NW) // 2 if j < NW + 8 else j - 8)
    def lda(j):
        kind, q = steps[j][:2]; ks = 2 * q + (0 if kind == "o" else 32); L = []
        for b in range(2):
            so = off(30, 80, 2048, j, ks * 1024 + b * A2S)
            for o in range(2 if steps[j][5] else 1):
                for kk in range(2):
                    L.append((so if kk + o == 0 else None, f"buffer_load_dwordx4 {aR(areg(j, kk, 2*o+b))}, v{7 if o else 16}, s[4:7], s30 offen offset:{kk*1024} {C.A_AUX} ; @a{j}"))
        return L
    def dma_b(j):
        kind, q = steps[j][:2]; L = []; sr = "s[40:43]" if kind == "o" else "s[44:47]"
        for hi in range(2):
            so = off(31, 68, 131072, j, q * 131072 + hi * 16384)
            for ln in range(2):
                L.append((f"s_add_u32 m0, s98, {BS(j) + hi*2048 + ln*896}" + ("\n" + so if ln == 0 else ""),
                          f"buffer_load_dwordx4 v19, {sr}, s31 offen offset:{128*ln} lds ; @b{j}"))
        return L
    setup_b = ["s_lshl_b32 s98, s20, 12", "v_lshrrev_b32 v18, 3, v2", "v_and_b32 v19, 7, v2", "v_and_b32 v20, 6, v18", "v_xor_b32 v19, v19, v20",
               "s_lshl_b32 s29, s20, 4\nv_add_u32 v18, s29, v18", "s_lshl_b32 s29, s26, 8\nv_lshl_add_u32 v18, v18, 11, s29", "v_lshl_add_u32 v19, v19, 4, v18",
               f"s_and_b32 s29, s25, 14\ns_lshl_b32 s29, s29, {C.FS+1}\ns_add_u32 s29, s29, {O_FL}", f"v_lshl_add_u32 v20, v4, {C.FS-4}, s29",
               f"s_and_b32 s29, s2, 3\ns_lshl_b32 s29, s29, {C.FS}\nv_add_u32 v20, s29, v20" if C.QP else f"v_lshl_add_u32 v20, v3, {C.FS}, v20"]
    setup_d = [f"s_and_b32 s92, s2, 1\ns_lshr_b32 s29, s2, 4\ns_lshr_b32 s39, s2, {6 if C.MAP2 else 5}\ns_xor_b32 s29, s29, s39", f"s_and_b32 s88, s29, {C.XR}\ns_sub_u32 s89, 0, s88\ns_and_b32 s93, s2, 3"]
    setup_a = ["s_and_b32 s29, s25, 1\ns_lshl_b32 s29, s29, 2\ns_add_u32 s29, s29, s20", f"s_mul_i32 s39, s29, {2*A2S}\nv_lshl_add_u32 v16, v2, 4, s39",
               f"s_xor_b32 s29, s29, 4\ns_mul_i32 s39, s29, {2*A2S}\nv_lshl_add_u32 v7, v2, 4, s39",
               f"s_lshr_b32 s29, s25, 1\ns_mul_i32 s29, s29, {16*A2S}\ns_add_u32 s29, s29, {WS_A2}", f"s_add_u32 s4, s12, s29\ns_addc_u32 s5, s13, 0\ns_mov_b32 s6, {16*A2S}",
               f"s_lshl_b32 s29, s23, 1\ns_add_u32 s29, s29, s21\ns_mul_i32 s29, s29, {8*A2S}", f"s_add_u32 s29, s29, {WS_A2}\n" + add64(12, "s29"), srd(12, 8 * A2S),
               f"s_movk_i32 s34, 0x1000\ns_mov_b32 s94, {KS}", f"s_mov_b32 s32, {2*KS}\ns_mov_b32 s28, {3*KS}"]
    c0 = -2 * math.sqrt(2 / math.pi) * math.log2(math.e); c1 = c0 * 0.044715
    ga = (-c1) ** (1 / 3); gb = -c0 / ga
    sc = 32 ** -0.5 * math.log2(math.e)
    rowp = lambda dst, a, off: f"ds_read_b32 v{dst}, v{a} offset:{off}\nds_read_b32 v{dst+1}, v{a} offset:{off+1280}"
    colreads = lambda ln: [f"ds_read_b128 {R(56+4*c)}, v31 offset:{256*ln+64*c}\nds_read_b128 {R(8+4*c)}, v31 offset:{1024+256*ln+64*c}" for c in range(2)]
    epi = [f"s_lshl_b32 s29, s21, 9\ns_add_u32 s29, s29, {TB}\nv_lshl_add_u32 v30, v4, 2, s29", f"s_mov_b32 s64, {f32(gb)}\ns_mov_b32 s65, {f32(ga)}"]
    if not att:
        epi += [rowp(40 + 2 * m, 30, 64 * m) for m in range(8)]
        epi += [f"s_lshl_b32 s29, s22, 7\ns_add_u32 s29, s29, {T_CS}\nv_lshl_add_u32 v31, v3, 4, s29"] + colreads(0)
        epi += ["s_mul_i32 s29, s24, 6\ns_add_u32 s29, s29, s22\ns_add_u32 s29, s29, 32", "s_lshl_b32 s29, s29, 10\nv_lshl_add_u32 v18, v2, 4, s29"]
    else:
        epi += ["v_lshl_add_u32 v31, v3, 4, s29", f"s_lshl_b32 s29, s22, 7\ns_add_u32 s29, s29, {T_CS}\nv_lshl_add_u32 v26, v3, 4, s29", "v_lshl_add_u32 v27, v4, 2, s29"]
        epi += [f"ds_read_b128 {R([8,12,40,44][n])}, v26 offset:{256*(n>>1)+64*(n&1)}" for n in range(4)]
        r4 = lambda m: f"ds_read_b128 {R(48+8*(m&1))}, v31 offset:{64*m}\nds_read_b128 {R(52+8*(m&1))}, v31 offset:{64*m+1280}"
        epi += ["ds_read_b32 v36, v27 offset:512\nds_read_b32 v37, v27 offset:576", rowp(24, 30, 448), r4(7)]
        epi += ["v_and_b32 v32, 1, v3", "v_lshlrev_b32 v21, 4, v32", "v_lshlrev_b32 v28, 4, v2", "v_lshlrev_b32 v32, 3, v2"]
        epi += [f"s_lshl_b32 s90, s33, 12\ns_add_u32 s90, s90, {MB}\ns_sub_u32 s91, s90, 131072", "s_cmp_lt_u32 s33, 32\ns_cselect_b32 s91, 0x40000000, s91"]
        epi += ["v_lshl_add_u32 v21, v5, 6, v21", f"s_lshl_b32 s29, s22, 5\ns_add_u32 s29, s29, {T_CS+768}\nv_add_u32 v21, s29, v21"]
        epi += ["s_lshl_b32 s29, s24, 1\ns_add_u32 s29, s29, s22\ns_lshl_b32 s29, s29, 10", "v_lshl_add_u32 v18, v2, 4, s29"]
        epi += [f"v_mul_u32_u24 v17, {A2S}, v5", "v_and_b32 v34, 31, v2", "v_lshl_add_u32 v17, v34, 4, v17",
                "s_lshl_b32 s29, s24, 1\ns_add_u32 s29, s29, s22\ns_add_u32 s29, s29, 256", "s_lshl_b32 s29, s29, 9\nv_add_u32 v17, s29, v17"]
        epi += [f"s_mov_b32 s86, {f32(sc)}\ns_mov_b32 s87, {f32(sc)}"]

    A("WAITVM x0 w0\ns_barrier"); A(ts("RTl0") if C.FINE == 3 else ts("land0"))
    emit(A, rd_w(0, 0) + rd_x(0, 0) + sum((rd_w(0, n) for n in range(1, nblk)), []))
    A("WAITDS W0_0 X0_0")
    M, end = mfmas(0, 0); n = len(M)
    DS = lambda L, n, a: (L, 0, n - 3, 4) if C.GRID & 2 and 4 * len(L) <= n and a == 0 else (L, a, n - 6)
    emit(A, place(M, rs_b(0, end, n) + [(seq(SEQ[1]), 0, n - C.S0E[att])]))
    pf0 = C.PF0[att]; STJ = C.STJ[att]; SJ = STJ + 2; AJ = SJ + C.AD; assert C.CJ < 7 and AJ <= 7
    c0load = "buffer_load_dword v33, v34, s[48:51], 0 offen sc1"
    tbl = ["buffer_load_dwordx2 v[40:41], v30, s[16:19], s66 offen sc1", "buffer_load_dwordx2 v[42:43], v30, s[16:19], s66 offen offset:2048 sc1"]
    for j in range(16):
        if j < 2: pads(j + 1)
        if j < 15: A(f"WAITVM x{j+1} w{j+1}" + {SJ: " st", AJ: " clr", 12: " c0", 13: " tb"}.get(j, "") + (" hc" if att and j == 7 else "") + " | lgkmcnt(0)\ns_barrier")
        else: A("s_waitcnt lgkmcnt(0)\ns_barrier")
        A(ts(f"p{j}"))
        if j == 3 and C.FINE == 3: A(ts("RTp3"))
        if C.IDLE and 3 <= j: A(C.IDLE)
        M, end = mfmas(j, 1); n = len(M); S = []; D = []
        if j < 15: S += rs_a(j + 1, end)
        if j == SJ: M = M + stm
        if j == SJ + 1: S.append((st2, 2, 40))
        if j == 11:
            D.append((None, c0load + " ; @c0"))
            sd = [f"v_min_u32 v30, {nblk*32-1}, v0", "v_and_b32 v27, 0xe0, v0", "v_lshl_add_u32 v27, v4, 1, v27", "v_and_b32 v28, 1, v3", "v_add_u32 v27, v27, v28",
                  "s_lshl_b32 s29, s23, 8\nv_add_lshl_u32 v27, v27, s29, 3"]
            if att: sd += ["v_and_b32 v31, 31, v0", "s_lshl_b32 s29, s24, 5\ns_add_u32 s29, s29, 3072\nv_add_lshl_u32 v31, v31, s29, 1"]
            else: sd += ["s_mul_i32 s29, s24, 192\nv_add_lshl_u32 v31, v30, s29, 1", "v_and_b32 v28, 127, v0", "s_lshl_b32 s29, s26, 7\nv_add_lshl_u32 v28, v28, s29, 1"]
            sd += ["v_lshlrev_b32 v30, 3, v30", "v_lshlrev_b32 v32, 2, v0"]
            S.append((sd, 4, 40))
        if j == 12:
            S.append(([spin(slow, P + "_c0", c0load, f"v_cmp_gt_u32 vcc, {0 if C.NOC0 else 256 // C.CSH[0]}, v33")], 0, 1))
            D += [(None, t + " ; @tb") for t in tbl]
            D.append((None, "buffer_load_dwordx2 v[44:45], v27, s[16:19], 0 offen sc1 ; @tb"))
            if not att: D.append((None, "buffer_load_ushort v46, v28, s[52:55], 0 offen ; @tb"))
            D.append((None, "buffer_load_ushort v36, v31, s[72:75], 0 offen ; @tb"))
        if j == 13:
            sd = [spin(slow, P + "_cs", "\n".join(tbl), "v_and_b32 v33, v41, v43\nv_cmp_ne_u32 vcc, 1, v33"), "v_add_f32 v40, v40, v42", f"v_add_u32 v32, {TB}, v32",
                  f"v_mul_f32 v42, {f32(ga)}, v44", f"v_mul_f32 v43, {f32(ga)}, v45", f"ds_write2st64_b32 v32, v42, v43 offset0:{18*att} offset1:{18*att+5}",
                  "v_lshlrev_b32 v36, 16, v36", f"v_mul_f32 v36, {f32(ga)}, v36", "ds_write2st64_b32 v32, v40, v36 offset0:10 offset1:14"]
            if att: sd += ["ds_write2st64_b32 v32, v44, v45 offset0:0 offset1:5"]
            if not att: sd += ["v_lshlrev_b32 v46, 16, v46", f"ds_write_b32 v32, v46 offset:{T_B2-TB}"]
            S.append((sd + setup_b, 1, n - 2))
        if att and j in (9, 10):
            sd = [f"v_mov_b32 v27, {f32(-1e30)}", "v_lshlrev_b32 v28, 2, v3", "v_sub_u32 v28, v28, v4",
                  "s_or_b32 s29, s23, s21\ns_cmp_lg_u32 s29, 0\ns_cselect_b64 s[30:31], -1, 0"]
            for q in range(2 * (j - 9), 2 * (j - 9) + 2):
                sel = lambda k: ["v_cndmask_b32 v33, v27, 0, vcc", f"v_accvgpr_write_b32 a{160+4*k+q}, v33"]
                sd += [f"v_add_u32 v32, {7+q}, v28", "v_cmp_gt_u32 vcc, 8, v32"] + sel(0) + ["v_cmp_lt_i32 vcc, 15, v32"] + sel(1)
                sd += ["s_and_b64 vcc, vcc, s[30:31]"] + sel(2)
            S.append((sd, 2, n - 4))
        sq = SEQ[2 + j] if 2 + j < len(SEQ) else (C.MRG if j < C.MJ else "xX:01234|wW:0123456").replace("X", str(j + 2)).replace("W", str(j + 3))
        D += seq(sq.split("|")[0])
        if j == 14: S.append((setup_a, 2, n - 4)); D += dma_b(1) + dma_b(2)
        if j == 15: S.append((epi, 0, n - 6)); D += dma_b(5) + dma_b(6) + (dma_b(7) if C.NPRE > 7 else [])
        S.append(DS(D, n, int(j == 12)))
        emit(A, place(M, S))
        if j < 15:
            A(f"WAITDS W{j+1}_0 X{j+1}_0")
            M, end = mfmas(j + 1, 0); n = len(M); S = rs_b(j + 1, end, n); D = []
            D += seq(sq.split("|")[1])
            if j == STJ: D += stl
            if j == SJ + 1:
                D = [(f"s_mov_b32 exec_lo, s38\ns_mov_b32 exec_hi, 0\ns_cbranch_execz {P}_ncl\nbuffer_store_dwordx2 v[32:33], v31, s[16:19], 0 offen sc1 ; @cond\n{P}_ncl:\ns_mov_b64 exec, -1", None),
                     (f"s_mov_b64 exec, {3 if att else 31}\nbuffer_store_dword v32, v29, s[16:19], 0 offen sc1 ; @clr\ns_mov_b64 exec, -1", None) if not C.FCL else
                     (f"s_cmp_eq_u32 s20, 3\ns_cbranch_scc0 {P}_nfc\ns_lshl_b32 s29, s2, 9\ns_add_u32 s29, s29, {O_FL}\nv_lshlrev_b32 v28, 3, v2\nbuffer_store_dwordx2 v[32:33], v28, s[16:19], s29 offen sc1 ; @cond\n{P}_nfc:", None),
                     ("s_mov_b64 exec, 0x101\nbuffer_store_dwordx2 v[44:45], v30, s[16:19], 0 offen sc1 ; @clr\ns_mov_b64 exec, -1", None)] + D
            if att and j == C.CJ:
                D = [(None, f"buffer_store_dwordx4 v[48:51], v7, s[16:19], s32 offen offset:{1024*i} sc1 ; @hc") for i in range(4)] + D
            if j == SJ: S.append((st1, 4, n - 1))
            if j in (2, 4, 6, 8, 10): D += cph()
            if not att: D += [(None, f"buffer_load_dwordx4 {aR(208+4*i)}, v21, s[60:63], 0 offen offset:{2048*(i>>2)+64*(i&3)}") for i in range(8) if C.XJ[i] == j]
            if j in (AJ, AJ + 1) and not C.NOC0:
                D.append((f"s_bfe_u32 s29, s2, {0x10000 + C.AB}\ns_lshl_b32 s39, s20, 1\ns_add_u32 s29, s29, s39\ns_cmp_eq_u32 s29, {j-AJ}\ns_cbranch_scc0 {P}_na{j}\ns_lshr_b32 s29, s2, {C.CSH[2]}\ns_and_b32 s29, s29, {C.CSH[0]-1}\ns_lshl_b64 exec, 1, s29\n"
                          f"buffer_atomic_add v35, v34, s[48:51], 0 offen sc1 ; @cond\ns_mov_b64 exec, -1\n{P}_na{j}:", None))
            if j >= pf0: D += sum((pf(C.PFN * (j - pf0) + k) for k in range(C.PFN)), [])
            if j == 7: D.insert(C.PUB, (f"v_mov_b32 v37, 1\ns_mov_b32 exec_lo, s38\ns_mov_b32 exec_hi, 0\ns_cbranch_execz {P}_ncs\nbuffer_store_dwordx2 v[36:37], v31, s[16:19], 0 offen sc1 ; @cond\n{P}_ncs:\ns_mov_b64 exec, -1", None))
            if j == 13: D += [tuple(setup_d)] + dma_b(0)
            D += sum((cpf(P + "_epi", k) for k, jj in enumerate(C.CJS) if jj == j), [])
            D += sum((cpf(P + "_base", k + 1) for k, jj in enumerate(C.CJB) if jj == j), [])
            if j == 14: D += dma_b(3) + dma_b(4)
            S.append(DS(D, n, 0))
            emit(A, place(M, S))
    A(ts("g1end")); A(ts("RTg1")); A(ts("e0"))
    A(f"{P}_epi:")
    flag = lambda lane: f"s_mov_b64 exec, {1<<lane}\nbuffer_store_dword v35, v29, s[16:19], 0 offen sc1\ns_mov_b64 exec, -1"
    poll = lambda kind: f"buffer_load_dword v33, v{20 if kind else 27}, s[16:19], {['0','s94','s32','s28'][kind]} offen sc1"
    ptest = "v_cmp_eq_u32 vcc, 0, v33"
    acc2 = lambda m, n: 64 + 32 * m + 4 * n
    G2A = 236 if att else 232; GT = 252 if att else 244
    g2_addr = lines(f"v_bfe_u32 v{GT}, v2, 2, 3\nv_and_b32 v{GT+1}, 3, v2\nv_lshlrev_b32 v{GT+2}, 11, v5\nv_lshl_add_u32 v{GT+2}, v{GT}, 7, v{GT+2}\nv_lshl_add_u32 v{GT+2}, v{GT+1}, 3, v{GT+2}\n"
                    f"v_lshrrev_b32 v{GT}, 1, v{GT}\nv_lshl_add_u32 v{G2A}, v{GT}, 5, v{GT+2}\nv_add_u32 v{G2A+4}, 0x10000, v{G2A}") + [f"v_xor_b32 v{G2A+4+c}, {32*c}, v{G2A+4}" for c in (1, 2, 3)]
    g2_addr2 = [f"v_add_u32 v{G2A+8+c}, 0x10000, v{G2A+4+c}" for c in range(4)] + [f"v_xor_b32 v{G2A+c}, {32*c}, v{G2A}" for c in (1, 2, 3)]
    def reads2(j, p):
        st = BS(j); w = G2A + 4 * (st >> 16); st &= 0xffff
        fr = [(f >> 1, p, f & 1) if j < NK - 1 else (f & 3, f >> 2, p) for f in range(8)]
        return [f"ds_read_b64_tr_b16 a[{32*p+4*f+2*h}:{32*p+4*f+2*h+1}], v{w+c} offset:{st + (2*kk+h)*4096 + ln*1024}" for f, (c, ln, kk) in enumerate(fr) for h in range(2)]
    def gelu8(t, rs, cs, b1):
        u = [22, 24, 26, 38]; L = []
        for i in range(4): L.append(f"v_pk_fma_f32 {Pn(u[i])}, {Pn(cs[i])}, {Pn(rs[i])}, {Pn(b1[i])} op_sel:[0,1,0] op_sel_hi:[1,1,1] neg_lo:[0,1,0] neg_hi:[0,1,0]")
        for i in range(4): L.append(f"v_pk_fma_f32 {Pn(t[i])}, {Pn(t[i])}, {Pn(rs[i])}, {Pn(u[i])} op_sel_hi:[1,0,1]")
        for i in range(4): L.append(f"v_pk_fma_f32 {Pn(u[i])}, {Pn(t[i])}, {Pn(t[i])}, s[64:65] op_sel_hi:[1,1,0]")
        for i in range(4): L.append(f"v_pk_mul_f32 {Pn(u[i])}, {Pn(u[i])}, {Pn(t[i])} neg_lo:[0,1] neg_hi:[0,1]")
        for i in range(8): L.append(f"v_exp_f32 v{u[i>>1]+(i&1)}, v{u[i>>1]+(i&1)}")
        for i in range(4): L.append(f"v_pk_fma_f32 {Pn(u[i])}, {Pn(u[i])}, s[64:65], s[64:65] op_sel:[0,1,1] op_sel_hi:[1,1,1]")
        for i in range(8): L.append(f"v_rcp_f32 v{u[i>>1]+(i&1)}, v{u[i>>1]+(i&1)}")
        for i in range(4): L.append(f"v_pk_mul_f32 {Pn(u[i])}, {Pn(u[i])}, {Pn(t[i])}")
        for i in range(4): L.append(cvt(t[0] + i, u[i]))
        return L
    start2 = ["WAITVM b0 b1\ns_barrier"] + reads2(0, 0)
    A0 = lda(0)
    if not att:
        for ln in range(3):
            A("s_waitcnt lgkmcnt(0)")
            for m in range(8):
                if m in (0, 4): A(ts(f"L{ln}m{m}"))
                d = acc(m, 2 * ln)
                G = gelu8([d, d + 2, d + 4, d + 6], [40 + 2 * m] * 4, [56, 58, 60, 62], [8, 10, 12, 14]); S = []
                if m == 7 and ln < 2: S.append((colreads(ln + 1), 6, 8))
                if ln == 0 and m == 2 and C.NPRE > 8: S.append((dma_b(8), 2, 40))
                if ln == 1 and m == 3: S.append((["WAITVM h0\n" + flag(0)], 2, 3))
                if ln == 2:
                    if m == 0: emit(A, g2_addr)
                    gp, gc, gl_ = C.GF
                    if m == gp: S.append(([poll(1) + " ; @p1"], 20, 21))
                    if m == gc: S.append((["WAITVM p1 h1\n" + flag(1) + "\n" + spin(slow, P + "_f1", poll(1), ptest)], 4, 5))
                    if gc <= m <= gl_:
                        k0, k1 = (8 * (m - gc)) // (gl_ - gc + 1), (8 * (m - gc + 1)) // (gl_ - gc + 1); S.append((A0[k0:k1], 10, 40))
                    if m == 6: S.append(([f"s_mov_b32 s29, {T_B2}\nv_lshl_add_u32 v32, v3, 4, s29"] + [f"ds_read_b128 {R(acc2(1,n))}, v32 offset:{64*n}" for n in range(8)], 2, 30))
                    if m == 7: S.append((start2, 2, 40))
                emit(A, place(G, S))
                A(f"s_mov_b32 s29, {m*A2S + ln*2048}\nbuffer_store_dwordx4 {R(d)}, v18, s[12:15], s29 offen {C.HS_AUX} ; @h{ln}")
    else:
        hx = lambda op, so, base, tag: ([f"buffer_{op}_dwordx4 {R(base[b])}, v28, s[16:19], {so} offen offset:{1024*b} sc1 ; @{tag}" for b in range(2)]
                                        + [f"buffer_{op}_dwordx2 {Pn(base[2+i])}, v32, s[16:19], {so} offen offset:{2048+512*i} sc1 ; @{tag}" for i in range(4)])
        EXP_ = hx("store", "s90", [acc(6, 1), acc(7, 1)] + [acc(6 + b, 2 + db) + 2 for b in range(2) for db in range(2)], "hx")
        IMP_ = hx("load", "s91", [48, 52] + [acc(b, 2 + db) for b in range(2) for db in range(2)], "hi")
        hpoll = "buffer_load_dword v6, v34, s[16:19], 0 offen sc1"
        for m in range(7, -1, -1):
            A("s_waitcnt lgkmcnt(0)")
            if m: A(rowp(22 + 2 * ((m - 1) & 1), 30, 64 * (m - 1))); A(r4(m - 1))
            rs = Pn(22 + 2 * (m & 1)); G = []
            for part in (0, 1):
                src = acc(m, 0) + 8 * part; dst = acc(m, 0) + 4 * part; cs = [8, 40][part]
                for i in range(4): G.append(f"v_pk_mul_f32 {Pn(src+2*i)}, {Pn(src+2*i)}, {rs} op_sel_hi:[1,0]")
                for i in range(4): G.append(f"v_pk_fma_f32 {Pn(src+2*i)}, {Pn(cs+2*i)}, {rs}, {Pn(src+2*i)} op_sel:[0,1,0] op_sel_hi:[1,1,1] neg_lo:[0,1,0] neg_hi:[0,1,0]")
                for i in range(4): G.append(cvt(dst + i, src + 2 * i))
            r, mr = 48 + 8 * (m & 1), 52 + 8 * (m & 1); src = acc(m, 4)
            for i in range(4): G.append(f"v_pk_mul_f32 {Pn(src+2*i)}, {Pn(src+2*i)}, {Pn(r+2*(i&1))}")
            for i in range(4): G.append(f"v_pk_fma_f32 {Pn(src+2*i)}, {Pn(mr+2*(i&1))}, v[36:37], {Pn(src+2*i)} op_sel:[0,{i>>1},0] op_sel_hi:[1,{i>>1},1] neg_lo:[0,1,0] neg_hi:[0,1,0]")
            for i in range(4):
                db, h = i >> 1, i & 1
                for d in [acc(m, 2 + db) + 2 + h] + ([acc(m + 2, 2 + db) + h] if m < 6 else []): G.append(cvt(d, src + 2 * i))
            S = []
            if m == 4: A(ts("e4"))
            if m == 6: S.append(([EXP_[1], EXP_[4], EXP_[5]], 1, 36))
            if m == 5: S.append(([EXP_[0], EXP_[2], EXP_[3]], 1, 36))
            emit(A, place(G, S))
        A(ts("s"))
        mk = [8, 12, 40]
        mrd = lambda k: [f"v_accvgpr_read_b32 v{mk[k]+q}, a{160+4*k+q}" for q in range(4)]
        def smf(m): return [f"{MF} {R(acc(m,4))}, {R(48 + 4*m if m < 2 else acc(m-2,1))}, {R(acc(m,0))}, {R(mk[2] if m < 2 else mk[1])}",
                            f"{MF} {R(acc(m,5))}, {R(acc(m,1))}, {R(acc(m,0))}, {R(mk[0])}"]
        zp = lambda a, b: [x for p in zip(a, b) for x in p]
        def sm2(a):
            def pre(m):
                s = acc(m, 4); mx = 22 + 2 * (m & 1)
                return [f"v_max_f32 v{s+i}, v{s+i}, v{s+4+i}" for i in range(4)] + [f"v_max3_f32 v{mx}, v{s}, v{s+1}, v{s+2}", f"v_max_f32 v{mx}, v{mx}, v{s+3}"]
            def post(m):
                s = acc(m, 4); mx = 22 + 2 * (m & 1); q = acc(m, 0)
                L = [f"v_pk_fma_f32 {Pn(s+2*i)}, {Pn(s+2*i)}, s[86:87], {Pn(mx)} op_sel_hi:[1,1,0] neg_lo:[0,0,1] neg_hi:[0,0,1]" for i in range(2)]
                L += [f"v_exp_f32 v{s+i}, v{s+i}" for i in range(4)] + [cvt(s + 4 + i, s + 2 * i) for i in range(2)]
                return L + [f"v_and_b32 v{q+i}, v{44+i}, v{s+4+i}" for i in range(2)] + [f"v_bfi_b32 v{q+2+i}, v{44+i}, 0, v{s+4+i}" for i in range(2)]
            mid = lines("v_permlane16_swap_b32 v22, v24\nv_max_f32 v22, v22, v24\nv_mov_b32 v24, v22\nv_permlane32_swap_b32 v22, v24\nv_max_f32 v22, v22, v24\n"
                        "v_mul_f32 v22, s86, v22\nv_mov_b32 v24, v22\nv_permlane16_swap_b32 v22, v24")
            return zp(pre(a), pre(a + 1)) + mid + zp(post(a), post(a + 1))
        fill = lambda L: [(L[2*k:2*k+2], p, p) for k, p in enumerate((11, 14, 18)) if L[2*k:2*k+2]]
        def pvf(m):
            q = acc(m, 0)
            return [f"{MF} {R(acc(m,4))}, {R(acc(m,2))}, {R(q)}, 0", f"{MF} {R(acc(m,5))}, {R(acc(m,3))}, {R(q)}, 0", f"{MF} {R(acc(m,2))}, a[136:139], {R(q)}, 0"]
        def fin(m):
            s = acc(m, 4); l = acc(m, 2); q = acc(m, 0)
            L = [f"v_rcp_f32 v{l}, v{l}"]
            for i in range(4): L.append(f"v_pk_mul_f32 {Pn(s+2*i)}, {Pn(s+2*i)}, {Pn(l)} op_sel_hi:[1,0]")
            for i in range(4): L.append(cvt(q + i, s + 2 * i))
            L.append(f"s_mov_b32 s29, {m*A2S}\nbuffer_store_dwordx4 {R(q)}, v18, s[12:15], s29 offen {C.ST_AUX} ; @o")
            return L
        two = lambda f, a: f(a) + f(a + 1)
        fin2 = lambda a: zp(fin(a)[:-1], fin(a + 1)[:-1])
        ost = lambda *ms: [fin(m)[-1] for m in ms]
        def half(mp, S):
            d = [164, 172, 188, 196][mp]
            G = [f"v_accvgpr_read_b32 v{d+i}, a{176+8*mp+i}" for i in range(8)] + gelu8([d, d + 2, d + 4, d + 6], [212 + 4 * mp] * 2 + [214 + 4 * mp] * 2, [228, 230, 228, 230], [248, 250, 248, 250])
            emit(A, place(G, S))
            A(f"v_permlane32_swap_b32 v{d}, v{d+2}\nv_permlane32_swap_b32 v{d+1}, v{d+3}")
            A(f"s_mov_b32 s29, {2*mp*A2S}\nbuffer_store_dwordx4 {R(d)}, v17, s[12:15], s29 offen {C.ST_AUX} ; @h2")
        ir = list(range(48, 56)) + [acc(b, 2 + db) + h for b in range(2) for db in range(2) for h in range(2)]
        itest = "\n".join([f"v_max3_u32 v6, v{ir[0]}, v{ir[1]}, v{ir[2]}", f"v_max3_u32 v34, v{ir[3]}, v{ir[4]}, v{ir[5]}"]
                          + [f"v_max3_u32 v{[6,34][k&1]}, v{[6,34][k&1]}, v{ir[6+2*k]}, v{ir[7+2*k]}" for k in range(5)] + ["v_max_u32 v6, v6, v34", "v_cmp_eq_u32 vcc, -1, v6"])
        emit(A, mrd(0) + mrd(1) + two(smf, 6) + mrd(2) + [cvt(44, 8), cvt(45, 10), "v_pk_ashrrev_i16 v44, 15, v44 op_sel_hi:[0,1]", "v_pk_ashrrev_i16 v45, 15, v45 op_sel_hi:[0,1]"])
        emit(A, place(sm2(6), fill(two(smf, 4))))
        A(ts("s4")); emit(A, place(sm2(4) + fin2(6), fill(two(pvf, 6)) + [(two(smf, 2), 24, 32)]))
        emit(A, place(sm2(2) + fin2(4) + g2_addr, fill(two(pvf, 4)) + [([rowp(212 + 2 * m, 30, 4608 + 64 * m) for m in range(8)] + ["ds_read_b128 v[228:231], v21\nds_read_b128 v[248:251], v21 offset:1024"], 22, 44),
                                                  ([poll(1) + " ; @p1"] + IMP_, C.HP, 72)]))
        A(ts("h")); A("s_waitcnt lgkmcnt(0)")
        half(0, [(two(pvf, 2), 9, 27), (ost(6, 7, 4), 2, 46)])
        A(ts("h1")); emit(A, fin2(2))
        half(1, [(["WAITVM p1\n" + spin(slow, P + "_f1", poll(1), ptest)] + A0[:4], 0, 50)]); A(ts("h2"))
        half(2, [(A0[4:], 6, 50), (["WAITVM hi\n" + spin(slow, P + "_hx", "\n".join(x.split(";")[0] for x in IMP_), itest)] + two(smf, 0), 32, 44)])
        rest = [None] * 5 + ost(5, 2, 3)
        A(ts("h3"))
        emit(A, place(sm2(0), [(rest[5:6], 11, 12), (rest[6:], 26, 44)]))
        A(ts("h4")); half(3, [(two(pvf, 0), 9, 27), (start2, 12, 50)])
        emit(A, fin2(0) + ost(0, 1))

    def mfmas2(j, p):
        L = []; ms = list(range(4 if steps[j][5] else 2)); t = 0
        if j == NK - 1:
            return [f"{MF} {R(acc2(m,n))}, {aR(32*p+4*n)}, {aR(areg(j, p, m))}, {R(acc2(m,n))}" for n in range(8) for m in (ms if n % 2 == 0 else ms[::-1])]
        for c in range(4):
            n = 4 * p + c
            for m in (ms if n % 2 == 0 or j == 0 else ms[::-1]):
                d = R(acc2(m, n)); t += 1
                for q, kk in enumerate((0, 1) if t % 2 else (1, 0)):
                    cc = d if j or q else ("0" if att or m > 1 else R(acc2(1, n)))
                    L.append(f"{MF} {d}, {aR(32*p+8*c+4*kk)}, {aR(areg(j, kk, m))}, {cc}")
        return L
    def sub2(M, Rd, S, D):
        n = len(M); S = [(Rd, 0, n)] + S
        if D: S.append((D, 0, n, 4) if C.GRID & 1 and n >= 4 * len(D) else (D, 1, n + 1) if n >= 3 * len(D) else (D, 0, n - 1))
        S.append((["s_waitcnt lgkmcnt(8)"], n // 2 - 1, n // 2))
        emit(A, place(M, S))
    A("WAITVM a0 | lgkmcnt(0)"); A(ts("g2go")); A(ts("RTg2")); A(ts("g2go2"))
    A(f"{P}_g2:")
    first_need = {}
    for s, st in enumerate(steps): first_need.setdefault(st[3], s)
    bars = [j for j in range(NK - 1) if (j < NW and j % C.KBW == 0) or (j >= NW and (j - NW) % C.KB == 0)]
    checks = {first_need[k] - 4: k for k in first_need if k != 1}
    T = [0]
    for u in range(2 * NK): T.append(T[-1] + (32 if steps[u // 2][5] else 16))
    fixed = {2 * NW - 2 + i: x for i, x in enumerate(C.SFX)}
    UX = 2 * NK - 1 - C.XU[att]; XD = C.XD[att]; UY = UX - 2
    for u in range(UY if att else UX, 2 * NK): fixed[u] = 9
    ok = {k: 2 * (j + 1) + 1 for j, k in checks.items()}; ok[1] = 0
    QA = [(max(2 * aprev(x) + 2, ok[steps[x][3]]), T[2 * x], x) for x in range(1, NK) for _ in range(8 if steps[x][5] else 4)]
    QB = [(2 * next(b for b in bars if b >= x - NB + 1) + 1 if x >= NB else 0, T[2 * max(b for b in bars if b < x) + 1] - C.BM, x) for x in range(C.NPRE, NK) for _ in range(4)]
    plan = []; marg = 999
    for u in range(2 * NK - 1):
        cap = (8 if u == 0 else (C.CAP0 if u < C.UC else C.CAPW) if steps[u // 2][5] else C.CAPN) - fixed.get(u, 0); P_ = []
        while len(P_) < cap:
            c = [q for q in (QA, QB) if q and q[0][0] <= u]
            if not c: break
            q = min(c, key=lambda q: q[0][1])
            if C.BMIX and u >= C.BMIX[0] and steps[u // 2][5]:
                nb = sum(k == "b" for k, _ in P_)
                if len(c) == 2 and QA[0][1] - T[u + 1] >= C.BMIX[2]: q = QB if len(P_) % 3 == 1 else QA
                if q is QB and nb >= C.BMIX[1]:
                    if len(c) == 1: break
                    q = QA
            it = q.pop(0); P_.append(("a" if q is QA else "b", it[2]))
            marg = min(marg, it[1] + (C.BM if q is QB else 0) - T[u + 1])
        plan.append(P_)
    assert not QA and not QB and marg >= 0, marg
    C.marg[att] = marg
    qa = []; qb = []
    def take(u):
        out = []
        for k, x in plan[u]:
            q = qa if k == "a" else qb
            if not q: q.extend(lda(x) if k == "a" else dma_b(x))
            out.append(q.pop(0))
        return out
    busy = {BS(x) for x in range(bars[-1], NK)}
    STG = next(r * 16384 for r in range(NB - 2) if not busy & {(r + x) * 16384 for x in range(3)})
    sub2(mfmas2(0, 0), reads2(0, 1), [(g2_addr2, 3, 28)], take(0))
    xpoll = "buffer_load_dword v33, v34, s[16:19], 0 offen sc1"
    ypoll = "buffer_load_dword v25, v26, s[16:19], 0 offen sc1"
    xl = lambda base, a, tag: [f"buffer_load_dwordx4 {R(base+4*i)}, v{a}, s[56:59], {'s34' if i>=4 else '0'} offen offset:{1024*(i&3)} sc1 ; @{tag}" for i in (0, 4, 1, 5, 2, 6, 3, 7)]
    gl = att and C.GLAST; XL = xl(128, 18 if gl else 13, "xl"); YL = xl(160, 13 if gl else 18, "yl")
    gate = lambda v, sr: f"v_cmp_eq_u32 vcc, 0, v{v}\ns_cmp_eq_u64 vcc, 0\ns_cselect_b32 s58, {16*MB}, 0\ns_mov_b32 s{sr}, s58"
    def extra(u, S, D):
        w = ""
        if u == UX - XD: S.append(([xpoll + " ; @px"], 0, 1))
        if u == UX: w += " px"; S.append(([gate(33, 64)], 0, 1))
        if u in (UX, UX + 1): D += [(None, x) for x in XL[4*(u-UX):4*(u-UX)+4]]
        if att:
            if u == UY - C.YD: S.append(([ypoll + " ; @py"], 0, 1))
            if u == UY: w += " py"; S.append(([gate(25, 65)], 0, 1))
            if u in (UY, UY + 1): D += [(None, x) for x in YL[4*(u-UY):4*(u-UY)+4]]
        if u in C.CG: S.append(([f"s_lshl_b32 s29, s20, 4\nv_add_lshl_u32 v{GT}, s29, v4, 7", f"s_mov_b32 s29, {P}_g2-{P}_base+{8192*(1+C.CG.index(u))}\nbuffer_load_dword v{GT+1}, v{GT}, s[76:79], s29 offen"], 26, 30))
        if u == 2 * NW + C.SWF: w += " sw"; S.append(([flag(1 if att else 4)], 0, 1))
        return w
    blocks = lambda p: [(0, 2 * p), (1, 2 * p), (1, 2 * p + 1), (0, 2 * p + 1)]
    ids = lambda p, base: [f"{MF} {R(acc2(m,n))}, {R(194-2*(n&1))}, {R(base+16*m+4*p)}, {R(acc2(m,n))}" for m, n in blocks(p)]
    def swp(p):
        V = []; D = []
        for m in range(2):
            d = acc2(2 + m, 2 * p); V += [cvt(d + q, d + 2 * q) for q in range(4)]
            D.append(f"buffer_store_dwordx4 {R(d)}, v12, s[56:59], {'s34' if m else '0'} offen offset:{1024*p} sc1 ; @sw")
        return V[:4] + [D[0]] + V[4:] + [D[1]]
    for j in range(NK - 1):
        S = []; bar = j in bars
        nxt = next((b for b in bars if b > j), NK - 1)
        w = "WAITVM" + (f" b{nxt}" if bar else "")
        if j - 1 in checks: w += f" p{checks[j-1]}"
        if j == 1: w += " h2 o" if att else " h2"
        D = take(2 * j + 1); w += extra(2 * j + 1, S, D)
        A((w + " | lgkmcnt(8)" if w != "WAITVM" else "s_waitcnt lgkmcnt(8)") + ("\ns_barrier" if bar else ""))
        if j in (0, 7) or j >= NW - 2: A(ts(f"q{j}"))
        M = mfmas2(j, 1)
        if j - 1 in checks: S.append(([spin(slow, f"{P}_g{checks[j-1]}", poll(checks[j-1]), ptest)], 0, 1))
        if j == 1: S.append(([flag(0 if att else 2)], 0, 1))
        if j in checks: S.append(([poll(checks[j]) + f" ; @p{checks[j]}"], 0, 1))
        if j == 3: S.append(([f"v_and_b32 v27, {0xffffffff ^ (3 << C.FS)}, v20", f"v_lshl_add_u32 v27, v3, {C.FS}, v27"], 4, 10))
        if j == 2:
            sd = [f"s_mul_i32 s29, s37, {C.XST}\ns_add_u32 s29, s29, {5*MB}\nv_lshl_add_u32 v12, v2, 4, s29", f"s_xor_b32 s29, s37, 8\ns_mul_i32 s29, s29, {C.XST}", f"s_add_u32 s29, s29, {5*MB}\nv_lshl_add_u32 v13, v2, 4, s29",
                  "s_lshr_b32 s29, s2, 1\ns_lshl_b32 s29, s29, 2\ns_add_u32 s29, s29, s20", f"s_mul_i32 s29, s29, {C.XST}\nv_lshl_add_u32 v18, v2, 4, s29",
                  f"s_xor_b32 s29, s99, {8 << C.YS_}\nv_mov_b32 v{26 if gl else 34}, s29"]
            if att: sd += [f"v_mov_b32 v{34 if gl else 26}, s67"] + lines(xo_base) + ["v_lshrrev_b32 v10, 3, v2", "v_and_b32 v11, 7, v2", f"v_lshl_add_u32 v21, v10, {11 if C.OT else 12}, s29", "v_lshl_add_u32 v21, v11, 4, v21"]
            S.append((sd, 2, 30))
        if j == 5:
            sd = ["v_and_b32 v22, 1, v4", "v_lshlrev_b32 v22, 4, v22", "v_mov_b32 v23, 0x3f80", "v_lshlrev_b32 v22, v22, v23", "v_lshrrev_b32 v23, 1, v4", "v_lshlrev_b32 v24, 1, v3", "v_sub_u32 v23, v23, v24",
                  "v_cmp_eq_u32 vcc, 0, v23", "v_mov_b32 v192, 0", "v_cndmask_b32 v194, 0, v22, vcc", "v_cmp_eq_u32 vcc, 1, v23", "v_mov_b32 v193, 0", "v_cndmask_b32 v195, 0, v22, vcc", "v_mov_b32 v196, 0", "v_mov_b32 v197, 0"]
            S.append((sd, 2, 32))
        if j == 6:
            if att: sd = ["v_mul_u32_u24 v8, 272, v4", "v_lshl_add_u32 v8, v3, 3, v8", f"s_mul_i32 s29, s20, 8704\ns_add_u32 s29, s29, {STG}\nv_add_u32 v8, s29, v8",
                          *(["v_and_b32 v9, 1, v10", "v_lshl_add_u32 v10, v9, 4, v3"] if C.OT else []), "v_mul_u32_u24 v9, 272, v10", "v_lshl_add_u32 v9, v11, 4, v9", "v_add_u32 v9, s29, v9"]
            else: sd = ["v_sub_u32 v23, v23, v24"] + [x for d in range(8) for x in (f"v_cmp_eq_i32 vcc, {(d&3) - 8*(d>>2)}, v23", f"v_cndmask_b32 v{200+d}, 0, v22, vcc")]
            S.append((sd, 2, 32))
        if j == NW - 1: S.append((swp(1), 4, 16) if C.SWM == 0 else (swp(0) + swp(1), 0, 20)); S.append((swp(2), 20, 32))
        sub2(M, reads2(j + 1, 0), S, D)
        M = mfmas2(j + 1, 0); S = []
        D = take(2 * j + 2); w = extra(2 * j + 2, S, D)
        A(f"WAITVM a{j+1}{w} | lgkmcnt(8)")
        if j == NW - 2 and C.SWM == 0: S.append((swp(0), 20, 32))
        if j == NW - 1: S.append((swp(3), 4, 16))
        sub2(M, reads2(j + 1, 1), S, D)
        if not att and j == 8:
            for n in range(8):
                for m in range(2): A(f"{MF} {R(acc2(m,n))}, {R(200+4*(n&1))}, {aR(208+16*m+4*(n>>1))}, {R(acc2(m,n))}")
    assert not (qa or qb)
    A(ts("RTg2e")); A(ts("g2end"))
    def late(nm, sr, pl, v, L, tail):
        A(f"s_cmp_eq_u32 s{sr}, 0\ns_cbranch_scc1 {P}_{nm}_slow\n{P}_{nm}done:")
        slow.append(f"{P}_{nm}_slow:\ns_mov_b32 s39, {C.SPIN}\ns_mov_b32 s58, {16*MB}\n{P}_{nm}_spin:\n{pl}\ns_waitcnt vmcnt(0)\nv_cmp_eq_u32 vcc, 0, v{v}\ns_cbranch_vccz {P}_{nm}_ok\ns_sleep {C.XSL}\n"
                    f"s_sub_u32 s39, s39, 1\ns_cmp_lg_u32 s39, 0\ns_cbranch_scc1 {P}_{nm}_spin\n{P}_{nm}_ok:\n" + "\n".join(L) + f"\n{tail}s_branch {P}_{nm}done")
    if att: late("y", 65, ypoll, 25, YL, f"s_cmp_eq_u32 s64, 0\ns_cbranch_scc1 {P}_ydone\ns_waitcnt vmcnt(0)\n")
    late("x", 64, xpoll, 33, XL, "")
    A(ts("xgot"))
    if att:
        A("s_mov_b32 s29, 0x8000\n" + ("s_movk_i32 s30, 0x4000\ns_mov_b32 s31, 0xc000\n" if C.OT else "") + "s_waitcnt vmcnt(8)")
        for p in range(4): emit(A, ids(p, 160))
    A("s_waitcnt lgkmcnt(8)")
    reg = mfmas2(NK - 1, 1)
    def post(p):
        L = []
        for m, n in blocks(p):
            d = acc2(m, n); o = 160 + 16 * m + 4 * p
            if att: L += [cvt(d, d), cvt(d + 1, d + 2), f"ds_write_b64 v8, {Pn(d)} offset:{4352*m + 32*n}"]
            else:
                L += [cvt(o + 2 * (n & 1), d), cvt(o + 2 * (n & 1) + 1, d + 2)]
                if n & 1: L.append(f"buffer_store_dwordx4 {R(o)}, v18, s[56:59], {'s34' if m else '0'} offen offset:{1024*p} sc1")
        return L
    rd = lambda h: [f"ds_read_b128 {R(160+16*h+4*i)}, v9 offset:{(1088 if C.OT else 2176)*i + 128*h}" for i in range(4)]
    st = lambda h, i: f"buffer_store_dwordx4 {R(160+16*h+4*i)}, v21, s[52:55], {['0','s30','s29','s31'][i] if C.OT else 's29' if i&1 else '0'} offen offset:{(0 if C.OT else 2048*(i>>1)) + 128*h} {C.OUT_AUX}"
    for p in range(4):
        S = [([f"s_waitcnt vmcnt({6 - 2*p + (0 if att else 2*max(p-1, 0))})"], 3, 4)]
        if p == 0: S.append((["s_waitcnt lgkmcnt(0)"], 7, 8))
        if att and p == 3: S.append((rd(0), 0, 2))
        if p: S.append((post(p - 1), 2, 8))
        emit(A, place(reg[4*p:4*p+4] + ids(p, 128), S))
    if att:
        A("s_waitcnt lgkmcnt(4)"); emit(A, [st(0, 0), st(0, 1)])
        emit(A, post(3) + rd(1) + [st(0, 2), st(0, 3)])
        for i in range(4): A(f"s_waitcnt lgkmcnt({3-i})\n" + st(1, i))
    else:
        emit(A, post(3))
        A(ts("xs")); A("s_waitcnt vmcnt(0)\n" + flag(3))
    stamp_out(A)
    A(f"{P}_fin:\ns_endpgm")
    nl = 1 + att
    if C.PAD: A(f".p2align 6\n{P}_ws:\ns_branch {P}_ret2")
    for s in slow[-nl:][::-1] + slow[:-nl]: A("s_nop 7\n" + s)
    A(f"{P}_end:")

def build(path, **kw):
    global A2S
    for k, v in kw.items(): setattr(C, k, v)
    A2S = 144 * 1024 + C.A2P; assert 8192 <= C.XST <= 10240
    A = Asm(); name = NAME + "_kernel"
    A(f".text\n.globl {name}\n.p2align 8\n.type {name},@function\n{name}:")
    A("s_cmp_ge_u32 s2, 256\ns_cbranch_scc0 L_go\ns_endpgm\nL_go:" + (f"\ns_xor_b32 s2, s2, {C.WX}" if C.WX else ""))
    for r, o in ((60, 0), (8, 8), (68, 32), (16, 80), (40, 16), (44, 48), (72, 40), (48, 72)): A(f"s_load_dwordx2 s[{r}:{r+1}], s[0:1], {o}")
    C.names = []
    if C.FINE == 1: A("s_memtime s[98:99]")
    A(ts("RTstart"))
    A("v_lshrrev_b32 v3, 6, v0\nv_and_b32 v2, 63, v0\nv_readfirstlane_b32 s20, v3\nv_and_b32 v4, 15, v2\nv_lshrrev_b32 v3, 4, v2")
    A("s_lshr_b32 s29, s2, 3\ns_xor_b32 s29, s29, s2\ns_and_b32 s35, s29, 1\ns_cselect_b32 s30, 7, 11")
    A("s_getpc_b64 s[76:77]\nL_pc:\ns_mul_i32 s29, s35, Lg_base-La_base\ns_add_u32 s29, s29, La_base-L_pc\n" + add64(76, "s29") + "\ns_mov_b32 s78, Lg_end-Lg_base\ns_mov_b32 s79, 0x20000")
    if C.PAD: A("s_lshl_b32 s29, s20, 7\nv_lshl_add_u32 v24, v3, 9, s29\nbuffer_load_dword a141, v24, s[76:79], 0 offen\nv_lshl_add_u32 v25, v4, 12, s29\nbuffer_load_dword a141, v25, s[76:79], 0 offen")
    A("v_lshrrev_b32 v24, 3, v2\nv_and_b32 v25, 7, v2")
    A(f"s_bfe_u32 s23, s2, 0x20004\ns_bfe_u32 s3, s2, {0x10002 if C.OWN else 0x10001}\ns_lshl_b32 s29, s3, 2\ns_add_u32 s23, s23, s29" + ("\ns_mov_b32 s3, 0" if C.NOROT else ""))
    A("v_and_b32 v26, 6, v24\nv_xor_b32 v26, v25, v26\nv_lshlrev_b32 v17, 12, v24\nv_lshl_add_u32 v17, v26, 4, v17\ns_lshl_b32 s29, s20, 17\nv_add_u32 v16, s29, v17")
    A("s_lshr_b32 s38, s2, 6\ns_lshl_b32 s80, s38, 15\ns_and_b32 s39, s38, 2\ns_add_u32 s38, s38, s39\ns_lshl_b32 s39, s20, 3\ns_add_u32 s38, s38, s39\ns_lshl_b32 s84, s38, 10")
    A(f"s_lshl_b32 s64, s23, 19\ns_lshl_b32 s39, s3, 10\ns_add_u32 s64, s64, s39\ns_add_u32 s64, s64, {128*C.KO}\n" + srd(4, 255 * 2048 + 128))
    for i in range(1, 4): A(f"s_xor_b32 s{80+i}, s80, {i<<15}\ns_xor_b32 s{84+i}, s84, {((i&1) + 4*(i>>1)) << 10}")
    if C.OWN: A("s_lshr_b32 s24, s2, 6\ns_and_b32 s29, s2, 3\ns_lshl_b32 s29, s29, 2\ns_add_u32 s24, s24, s29")
    else: A("s_lshr_b32 s24, s2, 6\ns_and_b32 s29, s2, 1\ns_lshl_b32 s29, s29, 2\ns_add_u32 s24, s24, s29\ns_and_b32 s29, s2, 4\ns_lshl_b32 s29, s29, 1\ns_add_u32 s24, s24, s29")
    A("s_lshl_b32 s29, s35, 10\ns_add_u32 s36, s29, 6144\ns_lshl_b32 s29, s35, 8\ns_add_u32 s31, s29, 128")
    A("v_and_b32 v26, 2, v24\nv_xor_b32 v25, v25, v26\ns_and_b32 s39, s23, 1\ns_lshl_b32 s29, s39, 2\nv_xor_b32 v25, s29, v25")
    A("s_lshl_b32 s29, s20, 1\ns_add_u32 s29, s29, s39\ns_lshl_b32 s29, s29, 3\nv_add_u32 v26, s29, v24\nv_mul_u32_u24 v26, s36, v26\nv_lshl_add_u32 v18, v25, 4, v26")
    A("s_xor_b32 s29, s29, 8\nv_add_u32 v26, s29, v24\nv_mul_u32_u24 v26, s36, v26\nv_xor_b32 v25, 4, v25\nv_lshl_add_u32 v19, v25, 4, v26")
    A(f"s_lshl_b32 s65, s3, 9\ns_add_u32 s65, s65, {64*C.KO}\ns_mul_i32 s65, s65, s36\ns_mul_i32 s31, s31, s24\ns_add_u32 s65, s65, s31")
    A(f"s_mul_i32 s10, s36, 63\ns_lshl_b32 s29, 2, s30\ns_add_u32 s10, s10, s29\ns_add_u32 s10, s10, 128\ns_mov_b32 s11, 0x20000\ns_mul_i32 s27, s20, 7168\ns_add_u32 s27, s27, {WB}\ns_mul_i32 s39, s39, 3072\ns_and_b32 s38, s23, 2")
    for k in range(3):
        A(f"s_cmp_eq_u32 s38, 0\ns_cselect_b32 s29, {k}, {(k+2)%3}\ns_lshl_b32 s{94+k}, s29, s30\ns_lshl_b32 s29, s29, 10\ns_add_u32 s29, s29, s27")
        A(f"s_add_u32 s{88+k}, s29, s39\ns_sub_u32 s29, s29, s39\ns_add_u32 s{91+k}, s29, 3072")
    if C.FINE == 1: A("s_memtime s[66:67]")
    A("s_mov_b32 m0, s84\ns_waitcnt lgkmcnt(0)")
    if C.FINE == 1:
        A("v_writelane_b32 v1, s100, 0\nv_writelane_b32 v1, s98, 1\ns_mov_b32 s100, s66"); C.names += ["t0", "pre"]
    A(ts("karg"))
    A("s_add_u32 s4, s60, s64\ns_addc_u32 s5, s61, 0")
    xd = lambda i: f"buffer_load_dwordx4 v16, s[4:7], s{80+i} offen lds\nbuffer_load_dwordx4 v16, s[4:7], s{80+i} offen offset:2048 lds"
    A(xd(0))
    A("s_mov_b32 m0, s88\ns_cmp_eq_u32 s35, 0\ns_cselect_b32 s8, s8, s68\ns_cselect_b32 s9, s9, s69\n" + add64(8, "s65"))
    for k in range(3):
        A((f"s_mov_b32 m0, s{88+k}\n" if k else "") + f"buffer_load_dwordx4 v18, s[8:11], s{94+k} offen lds")
    A("s_mov_b32 m0, s85\n" + xd(1))
    A("s_lshr_b32 s21, s20, 1\ns_and_b32 s22, s20, 1\ns_mov_b32 s33, 0x3f803f80")
    if C.MAP2: A("s_lshl_b32 s25, s23, 1\ns_bfe_u32 s29, s2, 0x10001\ns_add_u32 s25, s25, s29\ns_lshr_b32 s26, s2, 6\ns_lshl_b32 s26, s26, 1\ns_bfe_u32 s29, s2, 0x10003\ns_add_u32 s26, s26, s29")
    else: A("s_bfe_u32 s25, s2, 0x20003\ns_and_b32 s29, s2, 4\ns_add_u32 s25, s25, s29\ns_lshl_b32 s25, s25, 1\ns_bfe_u32 s29, s2, 0x10001\ns_add_u32 s25, s25, s29\n" + ("s_add_u32 s26, s24, 1\ns_and_b32 s26, s26, 3\ns_lshr_b32 s29, s2, 3\ns_and_b32 s29, s29, 4\ns_add_u32 s26, s26, s29" if C.CT2 else "s_lshr_b32 s26, s2, 5"))
    C.common = C.names
    A("s_cmp_eq_u32 s35, 0\ns_cbranch_scc0 Lg_base\ns_branch La_base")
    role(A, True)
    role(A, False)
    A.lines = resolve_ds(resolve_vm(A.lines))
    if C.EXP:
        reg = None; L = []; nb = 0
        for l in A.lines:
            if l.endswith("_ret1:"): reg = "g1"
            if l.endswith("_epi:"): reg = "epi"
            if l.endswith("_g2:"): reg = "g2"
            if l.endswith("_fin:"): reg = None
            k = False
            if reg == "g2" and C.EXP & 4 and l.startswith("ds_read_b64_tr"): k = True
            if reg == "g2" and C.EXP & 8 and l.startswith("buffer_load_dwordx4") and ("v16" in l or "v19" in l): k = True
            if reg == "g1" and C.EXP & 16 and l.startswith("ds_read") and " a[" in l: k = True
            if reg == "g1" and C.EXP & 32 and l.endswith("lds") and "s31" not in l: k = True
            if reg == "epi" and C.EXP & 64 and l.startswith(("v_exp", "v_rcp", "v_pk_")): continue
            if reg == "g2" and C.EXP & 128 and l.startswith("v_mfma"): l = "s_nop 3"
            if reg == "g1" and C.EXP & 256 and l.startswith("v_mfma"): l = "s_nop 3"
            L.append("s_nop 0" if k else l)
        A.lines = L
    body = A.finish()
    hdr = HEADER + "; @launch grid=(256,1,1) block=(256,1,1) lds=163840\n" + (f"; FINE0 {' '.join(C.allnames[True])}\n; FINE1 {' '.join(C.allnames[False])}\n" if C.FINE else "") + '.amdgcn_target "amdgcn-amd-amdhsa--gfx950"\n'
    if C.AL: body, C.nal = align8(hdr, body, C.AL)
    if C.PAD: body, C.npads = add_pads(hdr, body, [("La_base", "La_fin", "La", "La_ret"), ("Lg_base", "Lg_fin", "Lg", "Lg_ret")], wide=bool(C.AL))
    open(path, "w").write(hdr + body + '.section .rodata,"a"\n.p2align 6\n' + kdesc(name))
    return A.npad

if __name__ == "__main__":
    print("pads", build("v6.s"))
    build("v6_fine.s", FINE=True)
    print({k: len(v) for k, v in C.allnames.items()}, C.npads, C.marg)
```
